```python
import torch

def _softmax(x, axis=-1):
    return torch.softmax(x, dim=axis)
def _gelu(x):
    return torch.nn.functional.gelu(x, approximate="tanh")
def _silu(x):
    return torch.nn.functional.silu(x)
def _sigmoid(x):
    return torch.sigmoid(x)
def _layernorm(x, axis=-1, eps=1e-5):
    m = x.mean(dim=axis, keepdim=True)
    v = x.var(dim=axis, keepdim=True, unbiased=False)
    return (x - m) / torch.sqrt(v + eps)
def _scatter_add(tgt, idx, src, axis=0):
    return tgt.clone().index_add_(axis, idx, src)
def _segment_sum(src, seg, n):
    out = torch.zeros((n,) + src.shape[1:], dtype=src.dtype)
    return out.index_add_(0, seg, src)
def _pad(x, pw):
    flat = tuple(v for pair in reversed(pw) for v in pair)
    return torch.nn.functional.pad(x, flat)

kernel_name = 'concat_heads__grouped_kv_mqa__grouped_kv_mqa__prompt'

def setup_inputs():

    _w = (lambda a: (lambda t: t.to(torch.bfloat16) if t.is_floating_point() else t)(torch.as_tensor(a)))
    def _A_setup():
        B, S, D, H = 1, 2048, 1024, 32
        Dh = D // H
        return {
            "x": _w((lambda *s: torch.randn(*s, dtype=torch.bfloat16) * 0.05)(B, S, D)),
            "wq": _w((lambda *s: torch.randn(*s, dtype=torch.bfloat16) * 0.8)(D, H * Dh)),
            "wk": _w((lambda *s: torch.randn(*s, dtype=torch.bfloat16) * 0.8)(D, Dh)),
            "wv": _w((lambda *s: torch.randn(*s, dtype=torch.bfloat16) * 0.05)(D, Dh)),
            "wo": _w((lambda *s: torch.randn(*s, dtype=torch.bfloat16) * 0.05)(H * Dh, D)),
        }
    _A_in = _A_setup()

    def _B_setup():
        B, S, D, H = 1, 2048, 1024, 32
        Dh = D // H
        return {
            "x": _w((lambda *s: torch.randn(*s, dtype=torch.bfloat16) * 0.05)(B, S, D)),
            "wq": _w((lambda *s: torch.randn(*s, dtype=torch.bfloat16) * 0.8)(D, H * Dh)),
            "wk": _w((lambda *s: torch.randn(*s, dtype=torch.bfloat16) * 0.8)(D, Dh)),
            "wv": _w((lambda *s: torch.randn(*s, dtype=torch.bfloat16) * 0.05)(D, Dh)),
            "wo": _w((lambda *s: torch.randn(*s, dtype=torch.bfloat16) * 0.05)(H * Dh, D)),
        }
    _B_in = _B_setup()

    return {
        "A_x": _A_in["x"],
        "A_wq": _A_in["wq"],
        "A_wk": _A_in["wk"],
        "A_wv": _A_in["wv"],
        "A_wo": _A_in["wo"],
        "B_x": _B_in["x"],
        "B_wq": _B_in["wq"],
        "B_wk": _B_in["wk"],
        "B_wv": _B_in["wv"],
        "B_wo": _B_in["wo"],
    }

def reference(A_x, A_wq, A_wk, A_wv, A_wo, B_x, B_wq, B_wk, B_wv, B_wo):
    def _A_ref(x, wq, wk, wv, wo):
        B, S, D = x.shape
        H = 32
        Dh = D // H
        q = (lambda x, *d: x.permute(*d))((x @ wq).reshape(B, S, H, Dh), 0, 2, 1, 3)
        k = x @ wk
        v = x @ wv
        scores = torch.einsum("bhqd,bkd->bhqk", q, k) * (Dh ** -0.5)
        p = _softmax(scores, axis=-1)
        o = torch.einsum("bhqk,bkd->bhqd", p, v)
        return (lambda x, *d: x.permute(*d))(o, 0, 2, 1, 3).reshape(B, S, H * Dh) @ wo

    def _B_ref(x, wq, wk, wv, wo):
        B, S, D = x.shape
        H = 32
        Dh = D // H
        q = (lambda x, *d: x.permute(*d))((x @ wq).reshape(B, S, H, Dh), 0, 2, 1, 3)
        k = x @ wk
        v = x @ wv
        scores = torch.einsum("bhqd,bkd->bhqk", q, k) * (Dh ** -0.5)
        p = _softmax(scores, axis=-1)
        o = torch.einsum("bhqk,bkd->bhqd", p, v)
        return (lambda x, *d: x.permute(*d))(o, 0, 2, 1, 3).reshape(B, S, H * Dh) @ wo

    a = _A_ref(A_x, A_wq, A_wk, A_wv, A_wo)
    b = _B_ref(B_x, B_wq, B_wk, B_wv, B_wo)
    return torch.concatenate([a, b], axis=-1)
```

```python
class Asm:
    def __init__(self):
        self.lines = []
        self.uid = 0
    def __call__(self, s=""):
        for ln in s.split("\n"):
            ln = ln.rstrip()
            if ln.strip() == "":
                continue
            t = ln.strip()
            if t.endswith(":") or t.startswith(".") or t.startswith(";"):
                self.lines.append(t if not t.startswith(";") else "    " + t)
            else:
                self.lines.append("    " + t)
    def label(self, name):
        self.lines.append(name + ":")
    def c(self, s):
        self.lines.append("    ; " + s)
    def newlabel(self, base):
        self.uid += 1
        return f"L_{base}_{self.uid}"
    def nop(self, n):
        while n > 0:
            k = min(n, 16)
            self.lines.append(f"    s_nop {k-1}")
            n -= k
    def text(self):
        return "\n".join(self.lines) + "\n"

def vr(base, n=1):
    return f"v{base}" if n == 1 else f"v[{base}:{base+n-1}]"
def sr(base, n=1):
    return f"s{base}" if n == 1 else f"s[{base}:{base+n-1}]"

def srd(a, dst, basepair, nbytes, tmp=None):
    a(f"s_mov_b32 s{dst}, s{basepair}")
    a(f"s_and_b32 s{dst+1}, s{basepair+1}, 0xffff")
    a(f"s_mov_b32 s{dst+2}, {hex(nbytes)}")
    a(f"s_mov_b32 s{dst+3}, 0x00020000")

def kernel_desc(name, vgpr, sgpr=102, accum=None):
    if accum is None:
        accum = (vgpr + 3) // 4 * 4
    return f""".amdhsa_kernel {name}
  .amdhsa_next_free_vgpr {vgpr}
  .amdhsa_next_free_sgpr {sgpr}
  .amdhsa_accum_offset {accum}
  .amdhsa_group_segment_fixed_size 0
  .amdhsa_kernarg_size 104
  .amdhsa_user_sgpr_count 2
  .amdhsa_user_sgpr_kernarg_segment_ptr 1
  .amdhsa_system_sgpr_workgroup_id_x 1
.end_amdhsa_kernel
"""
```

```python
import sys, math
sys.path.insert(0, __file__.rsplit("/", 1)[0])
from asmlib import *

NAME = "concat_heads__grouped_kv_mqa__grouped_kv_mqa__prompt"
WS_KV = 0
WS_O = 1 << 20
CSCALE = math.log2(math.e) / math.sqrt(32.0)
import struct
def fbits(x): return "0x%08x" % struct.unpack("<I", struct.pack("<f", x))[0]

WRING = 0
XRING = 65536
KVRING = 98304
QH = 131072
LDS_MAIN = 147456

def load_args(a, p_sgpr):
    a("s_load_dwordx16 s[16:31], s[0:1], 0")
    a("s_load_dwordx4 s[32:35], s[0:1], 64")
    a("s_load_dwordx2 s[50:51], s[0:1], 80")
    a("s_load_dwordx2 s[52:53], s[0:1], 96")
    a("s_waitcnt lgkmcnt(0)")
    a(f"s_cmp_eq_u32 s{p_sgpr}, 0")
    for i in range(5):
        for h in range(2):
            a(f"s_cselect_b32 s{40+2*i+h}, s{16+2*i+h}, s{26+2*i+h}")

def gen_kv(a):
    name = "kv_kernel"
    a(f".globl {name}\n.p2align 8\n.type {name},@function")
    a.label(name)
    a("s_cmp_ge_u32 s2, 256")
    a("s_cbranch_scc1 L_kv_end")
    a("s_lshr_b32 s3, s2, 7")
    a("s_lshr_b32 s4, s2, 1")
    a("s_and_b32 s4, s4, 63")
    a("s_and_b32 s5, s2, 1")
    load_args(a, 3)
    a("v_lshrrev_b32 v1, 6, v0")
    a("v_and_b32 v2, 63, v0")
    a("v_readfirstlane_b32 s6, v1")
    srd(a, 8, 40, 4 << 20)
    a("s_cmp_eq_u32 s5, 0")
    a("s_cselect_b32 s54, s44, s46")
    a("s_cselect_b32 s55, s45, s47")
    srd(a, 12, 54, 65536)
    srd(a, 56, 52, 16 << 20)
    a("v_and_b32 v3, 31, v2")
    a("v_lshrrev_b32 v4, 5, v2")
    a("s_lshl_b32 s7, s4, 5")
    a("v_add_u32 v3, s7, v3")
    a("v_lshlrev_b32 v3, 11, v3")
    a("s_lshl_b32 s7, s6, 8")
    a("v_lshl_add_u32 v5, v4, 4, s7")
    a("v_add_u32 v3, v3, v5")
    for s in range(8):
        a(f"buffer_load_dwordx4 {vr(32+4*s,4)}, v3, s[8:11], 0 offen offset:{32*s}")
    a("v_lshlrev_b32 v6, 4, v2")
    a("s_lshl_b32 s7, s6, 13")
    a("s_mov_b32 m0, s7")
    a("v_add_u32 v6, s7, v6")
    for j in range(4):
        a(f"buffer_load_dwordx4 v6, s[12:15], 0 offen offset:{1024*j} lds")
    a("s_add_u32 s60, s7, 4096")
    a("s_mov_b32 m0, s60")
    a("s_movk_i32 s61, 4096")
    for j in range(4):
        a(f"buffer_load_dwordx4 v6, s[12:15], s61 offen offset:{1024*j} lds")
    a("v_bfe_u32 v7, v2, 2, 2")
    a("v_lshl_add_u32 v7, v4, 3, v7")
    a("v_lshlrev_b32 v7, 6, v7")
    a("v_bfe_u32 v8, v2, 4, 1")
    a("v_lshl_add_u32 v7, v8, 5, v7")
    a("v_and_b32 v8, 3, v2")
    a("v_lshl_add_u32 v7, v8, 3, v7")
    a("v_add_u32 v7, s7, v7")
    for i in range(16):
        a(f"v_mov_b32 v{16+i}, 0")
    a("s_waitcnt vmcnt(0)")
    for s in range(8):
        a(f"ds_read_b64_tr_b16 {vr(64+4*s,2)}, v7 offset:{1024*s}")
        a(f"ds_read_b64_tr_b16 {vr(66+4*s,2)}, v7 offset:{1024*s+256}")
    a("s_waitcnt lgkmcnt(0)")
    a("s_cmp_eq_u32 s5, 0")
    a("s_cbranch_scc0 L_kv_isv")
    for s in range(8):
        a(f"v_mfma_f32_32x32x16_bf16 v[16:31], {vr(64+4*s,4)}, {vr(32+4*s,4)}, v[16:31]")
    a("s_branch L_kv_red")
    a.label("L_kv_isv")
    for s in range(8):
        a(f"v_mfma_f32_32x32x16_bf16 v[16:31], {vr(32+4*s,4)}, {vr(64+4*s,4)}, v[16:31]")
    a.label("L_kv_red")
    a.nop(16)
    a("s_lshl_b32 s7, s6, 12")
    a("s_add_u32 s7, s7, 65536")
    a("v_lshlrev_b32 v9, 4, v2")
    a("v_add_u32 v10, s7, v9")
    for q in range(4):
        a(f"ds_write_b128 v10, {vr(16+4*q,4)} offset:{1024*q}")
    a("s_waitcnt lgkmcnt(0)")
    a("s_barrier")
    a("s_cmp_ge_u32 s6, 2")
    a("s_cbranch_scc1 L_kv_end")
    a("s_lshl_b32 s7, s6, 11")
    a("s_add_u32 s7, s7, 65536")
    a("v_add_u32 v10, s7, v9")
    for w in range(8):
        a(f"ds_read_b128 {vr(32+8*w,4)}, v10 offset:{4096*w}")
        a(f"ds_read_b128 {vr(36+8*w,4)}, v10 offset:{4096*w+1024}")
    a("s_waitcnt lgkmcnt(0)")
    for w in range(1, 8):
        for r in range(8):
            a(f"v_add_f32 v{32+r}, v{32+r}, v{32+8*w+r}")
    for d in range(4):
        a(f"v_cvt_pk_bf16_f32 v{16+d}, v{32+2*d}, v{33+2*d}")
    a("s_sub_u32 s7, s4, 2")
    a("s_and_b32 s7, s7, 63")
    a("s_cmp_eq_u32 s5, 0")
    a("s_cselect_b32 s7, s7, s4")
    a("s_lshl_b32 s7, s7, 12")
    a("s_lshl_b32 s60, s5, 11")
    a("s_add_u32 s7, s7, s60")
    a("s_lshl_b32 s60, s6, 10")
    a("s_add_u32 s7, s7, s60")
    a("s_lshl_b32 s60, s3, 18")
    a("s_add_u32 s7, s7, s60")
    if WS_KV: a(f"s_add_u32 s7, s7, {WS_KV}")
    a("buffer_store_dwordx4 v[16:19], v9, s[56:59], s7 offen")
    a("s_waitcnt vmcnt(0)")
    a.label("L_kv_end")
    a("s_endpgm")
    return name, 128, 98304

G_WOFF = 4
G_XOFF = 8
G_AADDR = 10
G_BADDR = 12
G_KVOFF = 16
G_ACC = 20
G_AF = 52
G_BF = 68
G_TMP = 76
S_XSRD = 8
S_WSRD = 12
S_WSSRD = 56
S_GW = 62
S_M0W = 63
S_M0X = 64
S_M0KV = 65
S_WSOFF = 66
S_XSOFF = 67
S_KVSOFF = 68
S_CNT = 69
S_T0 = 70
S_T1 = 71

def gemm_setup_lane(a, mode, lane, xrow0_sgpr=None):
    t0, t1, t2, t3 = G_TMP, G_TMP+1, G_TMP+2, G_TMP+3
    a(f"v_lshrrev_b32 v{t0}, 4, v{lane}")
    a(f"v_bfe_u32 v{t1}, v{lane}, 2, 2")
    a(f"v_xor_b32 v{t1}, v{t1}, v{t0}")
    a(f"v_lshlrev_b32 v{t1}, 6, v{t1}")
    a(f"v_lshl_add_u32 v{t1}, v{t0}, 11, v{t1}")
    a(f"v_and_b32 v{t2}, 3, v{lane}")
    a(f"v_lshl_add_u32 v{t1}, v{t2}, 4, v{t1}")
    a(f"s_lshl_b32 s{S_T0}, s{S_GW}, 15")
    a(f"s_add_u32 s{S_T0}, s{S_T0}, s{S_T1}")
    a(f"v_add_u32 v{G_WOFF}, s{S_T0}, v{t1}")
    for j in range(1, 4):
        a(f"v_add_u32 v{G_WOFF+j}, {j*(8192-1024)}, v{G_WOFF}")
    a(f"v_bfe_u32 v{t0}, v{lane}, 2, 2")
    a(f"v_lshrrev_b32 v{t1}, 5, v{lane}")
    a(f"v_lshl_add_u32 v{t1}, v{t1}, {3 if mode=='q' else 2}, v{t0}")
    a(f"v_lshlrev_b32 v{t1}, 8, v{t1}")
    a(f"v_bfe_u32 v{t2}, v{lane}, 4, 1")
    a(f"v_lshl_add_u32 v{t1}, v{t2}, 5, v{t1}")
    a(f"v_and_b32 v{t2}, 3, v{lane}")
    a(f"v_lshl_add_u32 v{t1}, v{t2}, 3, v{t1}")
    a(f"s_lshr_b32 s{S_T0}, s{S_GW}, 1")
    a(f"s_lshl_b32 s{S_T0}, s{S_T0}, 1")
    for hd in range(2):
        a(f"s_add_u32 s{S_CNT}, s{S_T0}, {hd}")
        a(f"v_xor_b32 v{t2}, s{S_CNT}, v{t0}")
        a(f"v_lshl_add_u32 v{G_AADDR+hd}, v{t2}, 6, v{t1}")
        if WRING: a(f"v_add_u32 v{G_AADDR+hd}, {WRING}, v{G_AADDR+hd}")
    if mode == 'q':
        a(f"s_and_b32 s{S_T0}, s{S_GW}, 1")
        a(f"s_lshl_b32 s{S_T0}, s{S_T0}, 5")
        a(f"v_and_b32 v{t0}, 31, v{lane}")
        a(f"v_add_u32 v{t0}, s{S_T0}, v{t0}")
        a(f"v_bfe_u32 v{t1}, v{t0}, 1, 3")
        a(f"v_lshrrev_b32 v{t2}, 5, v{lane}")
        a(f"v_lshlrev_b32 v{t0}, 7, v{t0}")
        a(f"v_add_u32 v{t0}, {XRING}, v{t0}")
        for j in range(4):
            a(f"v_or_b32 v{t3}, {2*j}, v{t2}")
            a(f"v_xor_b32 v{t3}, v{t3}, v{t1}")
            a(f"v_lshl_add_u32 v{G_BADDR+j}, v{t3}, 4, v{t0}")
        a(f"v_lshrrev_b32 v{t0}, 3, v{lane}")
        a(f"s_lshl_b32 s{S_T0}, s{S_GW}, 4")
        a(f"s_add_u32 s{S_T0}, s{S_T0}, s{xrow0_sgpr}")
        a(f"v_add_u32 v{t0}, s{S_T0}, v{t0}")
        a(f"v_lshlrev_b32 v{t0}, 11, v{t0}")
        a(f"v_and_b32 v{t1}, 7, v{lane}")
        a(f"v_lshrrev_b32 v{t2}, 4, v{lane}")
        a(f"v_xor_b32 v{t1}, v{t1}, v{t2}")
        a(f"v_lshl_add_u32 v{G_XOFF}, v{t1}, 4, v{t0}")
        a(f"v_xor_b32 v{t1}, 4, v{t1}")
        a(f"v_lshl_add_u32 v{G_XOFF+1}, v{t1}, 4, v{t0}")
        a(f"v_add_u32 v{G_XOFF+1}, {8*2048-1024}, v{G_XOFF+1}")
    else:
        a(f"s_and_b32 s{S_T0}, s{S_GW}, 1")
        a(f"s_lshl_b32 s{S_T0}, s{S_T0}, 12")
        a(f"s_add_u32 s{S_T0}, s{S_T0}, {XRING}")
        a(f"v_lshlrev_b32 v{t0}, 4, v{lane}")
        a(f"v_add_u32 v{G_BADDR}, s{S_T0}, v{t0}")
        a(f"s_lshr_b32 s{S_T0}, s{S_GW}, 1")
        a(f"s_lshl_b32 s{S_T0}, s{S_T0}, 16")
        a(f"s_and_b32 s{S_CNT}, s{S_GW}, 1")
        a(f"s_lshl_b32 s{S_CNT}, s{S_CNT}, 11")
        a(f"s_add_u32 s{S_T0}, s{S_T0}, s{S_CNT}")
        a(f"v_add_u32 v{G_XOFF}, s{S_T0}, v{t0}")
    a(f"s_lshl_b32 s{S_M0W}, s{S_GW}, 12")
    if WRING: a(f"s_add_u32 s{S_M0W}, s{S_M0W}, {WRING}")
    if mode == 'q':
        a(f"s_lshl_b32 s{S_M0X}, s{S_GW}, 11")
    else:
        a(f"s_lshl_b32 s{S_M0X}, s{S_GW}, 11")
    a(f"s_add_u32 s{S_M0X}, s{S_M0X}, {XRING}")

def gemm_dma(a, mode, slot):
    a(f"s_add_u32 m0, s{S_M0W}, {slot*16384}")
    a("s_nop 0")
    for j in range(4):
        a(f"buffer_load_dwordx4 v{G_WOFF+j}, s[{S_WSRD}:{S_WSRD+3}], s{S_WSOFF} offen offset:{1024*j} lds")
    a(f"s_add_u32 m0, s{S_M0X}, {slot*8192}")
    a(f"s_add_u32 s{S_WSOFF}, s{S_WSOFF}, {64*2048}")
    if mode == 'q':
        a(f"buffer_load_dwordx4 v{G_XOFF}, s[{S_XSRD}:{S_XSRD+3}], s{S_XSOFF} offen lds")
        a(f"buffer_load_dwordx4 v{G_XOFF+1}, s[{S_XSRD}:{S_XSRD+3}], s{S_XSOFF} offen offset:1024 lds")
        a(f"s_add_u32 s{S_XSOFF}, s{S_XSOFF}, 128")
    else:
        a(f"buffer_load_dwordx4 v{G_XOFF}, s[{S_XSRD}:{S_XSRD+3}], s{S_XSOFF} offen lds")
        a(f"buffer_load_dwordx4 v{G_XOFF}, s[{S_XSRD}:{S_XSRD+3}], s{S_XSOFF} offen offset:1024 lds")
        a(f"s_add_u32 s{S_XSOFF}, s{S_XSOFF}, 4096")

def kv_dma(a, kvslot):
    a(f"s_add_u32 m0, s{S_M0KV}, {kvslot*16384}")
    a("s_nop 0")
    for j in range(4):
        a(f"buffer_load_dwordx4 v{G_KVOFF}, s[{S_WSSRD}:{S_WSSRD+3}], s{S_KVSOFF} offen offset:{1024*j} lds")
    a(f"s_add_u32 s{S_KVSOFF}, s{S_KVSOFF}, 16384")

def gemm_reads(a, mode, slot, j, buf):
    af = G_AF + 8*buf
    bf = G_BF + 4*buf
    second = 1024 if mode == 'q' else 2048
    if mode == 'q':
        a(f"ds_read_b128 {vr(bf,4)}, v{G_BADDR+j} offset:{slot*8192}")
    else:
        a(f"ds_read_b128 {vr(bf,4)}, v{G_BADDR} offset:{slot*8192 + j*1024}")
    for hd in range(2):
        a(f"ds_read_b64_tr_b16 {vr(af+4*hd,2)}, v{G_AADDR+hd} offset:{slot*16384 + j*4096}")
        a(f"ds_read_b64_tr_b16 {vr(af+4*hd+2,2)}, v{G_AADDR+hd} offset:{slot*16384 + j*4096 + second}")

def gemm_compute(a, mode, slot):
    gemm_reads(a, mode, slot, 0, 0)
    for j in range(4):
        if j < 3:
            gemm_reads(a, mode, slot, j+1, (j+1) & 1)
            a("s_waitcnt lgkmcnt(5)")
        else:
            a("s_waitcnt lgkmcnt(0)")
        af = G_AF + 8*(j & 1); bf = G_BF + 4*(j & 1)
        for hd in range(2):
            acc = G_ACC + 16*hd
            a(f"v_mfma_f32_32x32x16_bf16 {vr(acc,16)}, {vr(af+4*hd,4)}, {vr(bf,4)}, {vr(acc,16)}")

def gemm_zero_acc(a):
    for i in range(32):
        a(f"v_mov_b32 v{G_ACC+i}, 0")

def q_epilogue(a, lane):
    a.nop(12)
    a(f"s_mov_b32 s{S_T0}, {fbits(CSCALE)}")
    for i in range(32):
        a(f"v_mul_f32 v{G_ACC+i}, s{S_T0}, v{G_ACC+i}")
    for hd in range(2):
        for d in range(8):
            a(f"v_cvt_pk_bf16_f32 v{G_AF+8*hd+d}, v{G_ACC+16*hd+2*d}, v{G_ACC+16*hd+2*d+1}")
    a(f"s_lshr_b32 s{S_T0}, s{S_GW}, 1")
    a(f"s_lshl_b32 s{S_T0}, s{S_T0}, 2")
    a(f"s_and_b32 s{S_T1}, s{S_GW}, 1")
    a(f"s_add_u32 s{S_T0}, s{S_T0}, s{S_T1}")
    a(f"s_lshl_b32 s{S_T0}, s{S_T0}, 11")
    a(f"s_add_u32 s{S_T0}, s{S_T0}, {QH}")
    a(f"v_lshlrev_b32 v{G_TMP}, 4, v{lane}")
    a(f"v_add_u32 v{G_TMP}, s{S_T0}, v{G_TMP}")
    for hd in range(2):
        for i in range(2):
            a(f"ds_write_b128 v{G_TMP}, {vr(G_AF+8*hd+4*i,4)} offset:{hd*4096 + i*1024}")
    a("s_waitcnt lgkmcnt(0)")

A_KVADDR = 1
A_SEL = 2
A_IDX = 6
A_LANE = 7
A_Q = 8
A_O = 16
A_L = 32
A_S = [36, 52]
A_P = [68, 76]
A_K = [84, 92]
A_V = [100, 108]
A_T = 116

def attn_step(a, t, kvslot, tile, first=False, prio=None):
    par = t & 1
    S = A_S[par]; Sn = A_S[par ^ 1]
    P = A_P[par]; Pp = A_P[par ^ 1]
    Kn = A_K[par ^ 1]
    Kl = A_K[par]
    Vp = A_V[par ^ 1]
    Vl = A_V[par]
    off = kvslot*16384 + tile*4096
    E = lambda i: a(f"v_exp_f32 v{S+i}, v{S+i}")
    C = lambda i: a(f"v_cvt_pk_bf16_f32 v{P+i//2}, v{S+i}, v{S+i+1}")
    if prio is not None:
        a(f"s_setprio {prio}")
    a(f"v_mfma_f32_32x32x16_bf16 {vr(Sn,16)}, {vr(Kn,4)}, {vr(A_Q,4)}, 0")
    a(f"ds_read_b128 {vr(Kl,4)}, v{A_KVADDR} offset:{off}")
    E(0); E(1); E(2); E(3)
    a(f"v_mfma_f32_32x32x16_bf16 {vr(Sn,16)}, {vr(Kn+4,4)}, {vr(A_Q+4,4)}, {vr(Sn,16)}")
    a(f"ds_read_b128 {vr(Kl+4,4)}, v{A_KVADDR} offset:{off+1024}")
    E(4); E(5); E(6); C(0); C(2)
    a(f"v_mfma_f32_32x32x16_bf16 {vr(A_O,16)}, {vr(Vp,4)}, {vr(Pp,4)}, {vr(A_O,16)}")
    a(f"ds_read_b128 {vr(Vl,4)}, v{A_KVADDR} offset:{off+2048}")
    E(7); E(8); E(9); C(4); C(6)
    a(f"v_mfma_f32_32x32x16_bf16 {vr(A_O,16)}, {vr(Vp+4,4)}, {vr(Pp+4,4)}, {vr(A_O,16)}")
    a(f"ds_read_b128 {vr(Vl+4,4)}, v{A_KVADDR} offset:{off+3072}")
    E(10); E(11); E(12); C(8); C(10)
    a(f"v_smfmac_f32_16x16x64_bf16 {vr(A_L,4)}, {vr(A_SEL,4)}, {vr(Pp,8)}, v{A_IDX}")
    E(13); E(14); E(15); C(12); C(14)

def attn_phase_prologue(a, wave_sgpr):
    a(f"s_lshl_b32 s{S_T0}, s{wave_sgpr}, 11")
    a(f"s_add_u32 s{S_T0}, s{S_T0}, {QH}")
    a(f"v_lshlrev_b32 v{A_T}, 4, v{A_LANE}")
    a(f"v_add_u32 v{A_T}, s{S_T0}, v{A_T}")
    a(f"ds_read_b128 {vr(A_Q,4)}, v{A_T}")
    a(f"ds_read_b128 {vr(A_Q+4,4)}, v{A_T} offset:1024")

def attn_phase_start(a):
    for i in range(16): a(f"v_mov_b32 v{A_O+i}, 0")
    for i in range(4): a(f"v_mov_b32 v{A_L+i}, 0")
    for i in range(8): a(f"v_mov_b32 v{A_P[1]+i}, 0")
    a("s_waitcnt lgkmcnt(0)")
    a(f"v_mfma_f32_32x32x16_bf16 {vr(A_S[0],16)}, {vr(A_K[0],4)}, {vr(A_Q,4)}, 0")
    a(f"v_mfma_f32_32x32x16_bf16 {vr(A_S[0],16)}, {vr(A_K[0]+4,4)}, {vr(A_Q+4,4)}, {vr(A_S[0],16)}")
    a.nop(16)

def attn_drain(a):
    Vp = A_V[1]; Pp = A_P[1]
    a("s_waitcnt lgkmcnt(0)")
    a("s_nop 1")
    a(f"v_mfma_f32_32x32x16_bf16 {vr(A_O,16)}, {vr(Vp,4)}, {vr(Pp,4)}, {vr(A_O,16)}")
    a(f"v_mfma_f32_32x32x16_bf16 {vr(A_O,16)}, {vr(Vp+4,4)}, {vr(Pp+4,4)}, {vr(A_O,16)}")
    a(f"v_smfmac_f32_16x16x64_bf16 {vr(A_L,4)}, {vr(A_SEL,4)}, {vr(Pp,8)}, v{A_IDX}")

def attn_epilogue(a, ooff_sgpr):
    a.nop(16)
    a(f"v_add_f32 v{A_T}, v{A_L}, v{A_L+1}")
    a(f"v_rcp_f32 v{A_T+1}, v{A_T}")
    a("s_nop 0")
    for i in range(16):
        a(f"v_mul_f32 v{A_O+i}, v{A_T+1}, v{A_O+i}")
    for d in range(8):
        a(f"v_cvt_pk_bf16_f32 v{A_T+4+d}, v{A_O+2*d}, v{A_O+2*d+1}")
    a(f"v_lshlrev_b32 v{A_T+2}, 4, v{A_LANE}")
    a(f"buffer_store_dwordx4 {vr(A_T+4,4)}, v{A_T+2}, s[{S_WSSRD}:{S_WSSRD+3}], s{ooff_sgpr} offen")
    a(f"buffer_store_dwordx4 {vr(A_T+8,4)}, v{A_T+2}, s[{S_WSSRD}:{S_WSSRD+3}], s{ooff_sgpr} offen offset:1024")

PRIO = [2, 1, 0, 0]

def gen_main(a, prio_mode=True):
    name = "main_kernel"
    a(f".globl {name}\n.p2align 8\n.type {name},@function")
    a.label(name)
    a("s_cmp_ge_u32 s2, 256")
    a("s_cbranch_scc1 L_main_end")
    a("s_and_b32 s4, s2, 7")
    a("s_lshr_b32 s5, s2, 3")
    a("s_lshr_b32 s3, s4, 2")
    a("s_and_b32 s4, s4, 3")
    a("s_lshl_b32 s4, s4, 2")
    a("s_lshr_b32 s6, s5, 3")
    a("s_add_u32 s4, s4, s6")
    a("s_and_b32 s5, s5, 7")
    load_args(a, 3)
    a("v_lshrrev_b32 v1, 6, v0")
    a("v_and_b32 v2, 63, v0")
    a("v_readfirstlane_b32 s6, v1")
    srd(a, S_WSSRD, 52, 16 << 20)
    a("s_lshl_b32 s7, s4, 7")
    a("s_cmp_ge_u32 s6, 8")
    a("s_cbranch_scc1 L_gemm_role")
    a(f"v_mov_b32 v{A_LANE}, v2")
    a(f"v_lshlrev_b32 v{A_KVADDR}, 4, v{A_LANE}")
    a("s_lshl_b32 s60, s3, 18")
    a(f"s_add_u32 s60, s60, {WS_KV + 62*4096}")
    a(f"buffer_load_dwordx4 {vr(A_K[0],4)}, v{A_KVADDR}, s[{S_WSSRD}:{S_WSSRD+3}], s60 offen")
    a(f"buffer_load_dwordx4 {vr(A_K[0]+4,4)}, v{A_KVADDR}, s[{S_WSSRD}:{S_WSSRD+3}], s60 offen offset:1024")
    a("s_add_u32 s60, s60, 4096")
    a(f"buffer_load_dwordx4 {vr(A_K[1],4)}, v{A_KVADDR}, s[{S_WSSRD}:{S_WSSRD+3}], s60 offen")
    a(f"buffer_load_dwordx4 {vr(A_K[1]+4,4)}, v{A_KVADDR}, s[{S_WSSRD}:{S_WSSRD+3}], s60 offen offset:1024")
    a(f"v_add_u32 v{A_KVADDR}, {KVRING}, v{A_KVADDR}")
    a(f"v_and_b32 v{A_T}, 6, v{A_LANE}")
    a(f"v_mov_b32 v{A_T+1}, 0x3f803f80")
    a(f"v_cmp_eq_u32 vcc, 0, v{A_T}")
    a("s_nop 1")
    a(f"v_cndmask_b32 v{A_SEL}, 0, v{A_T+1}, vcc")
    a(f"v_cndmask_b32 v{A_SEL+1}, 0, v{A_T+1}, vcc")
    a(f"v_cmp_eq_u32 vcc, 4, v{A_T}")
    a("s_nop 1")
    a(f"v_cndmask_b32 v{A_SEL+2}, 0, v{A_T+1}, vcc")
    a(f"v_cndmask_b32 v{A_SEL+3}, 0, v{A_T+1}, vcc")
    a(f"v_and_b32 v{A_T}, 1, v{A_LANE}")
    a(f"v_mov_b32 v{A_T+1}, 0x4444")
    a(f"v_mov_b32 v{A_T+2}, 0xeeee")
    a(f"v_cmp_eq_u32 vcc, 0, v{A_T}")
    a("s_nop 1")
    a(f"v_cndmask_b32 v{A_IDX}, v{A_T+2}, v{A_T+1}, vcc")
    for i in range(8): a(f"v_mov_b32 v{A_V[1]+i}, 0")
    a("s_lshl_b32 s61, s3, 22")
    a(f"s_add_u32 s61, s61, {WS_O}")
    a("s_lshl_b32 s60, s4, 2")
    a("s_and_b32 s62, s6, 1")
    a("s_add_u32 s60, s60, s62")
    a("s_lshl_b32 s60, s60, 16")
    a("s_add_u32 s61, s61, s60")
    a("s_lshl_b32 s60, s5, 2")
    a("s_lshr_b32 s62, s6, 1")
    a("s_add_u32 s60, s60, s62")
    a("s_lshl_b32 s60, s60, 11")
    a("s_add_u32 s61, s61, s60")
    for i in range(17):
        a("s_barrier")
    a("s_waitcnt vmcnt(0)")
    a("s_mov_b32 s63, 2")
    a.label("L_att_phase")
    attn_phase_prologue(a, 6)
    attn_phase_start(a)
    a("s_mov_b32 s64, 8")
    a("s_branch L_att_entry")
    a(".p2align 6")
    a.label("L_att_loop")
    a("s_waitcnt lgkmcnt(0)")
    a("s_barrier")
    a.label("L_att_entry")
    for c in range(2):
        for tl in range(4):
            if not (tl == 0):
                a("s_waitcnt lgkmcnt(0)")
            elif c == 1:
                a("s_waitcnt lgkmcnt(0)")
                a("s_barrier")
            attn_step(a, tl, c, tl, prio=(PRIO[tl] if prio_mode else None))
    a("s_sub_u32 s64, s64, 1")
    a("s_cmp_lg_u32 s64, 0")
    a("s_cbranch_scc1 L_att_loop")
    attn_drain(a)
    a("s_barrier")
    a("s_sub_u32 s63, s63, 1")
    a("s_cmp_eq_u32 s63, 0")
    a("s_cbranch_scc1 L_att_last")
    attn_epilogue(a, 61)
    a(f"s_add_u32 s61, s61, {2*65536}")
    a("s_branch L_att_phase")
    a.label("L_att_last")
    attn_epilogue(a, 61)
    a("s_waitcnt vmcnt(0)")
    a("s_endpgm")

    a.label("L_gemm_role")
    a(f"s_sub_u32 s{S_GW}, s6, 8")
    a("s_setprio 3")
    srd(a, S_XSRD, 40, 4 << 20)
    srd(a, S_WSRD, 42, 2 << 20)
    a(f"s_lshl_b32 s{S_T1}, s5, 8")
    gemm_setup_lane(a, 'q', 2, xrow0_sgpr=7)
    a(f"v_lshlrev_b32 v{G_KVOFF}, 4, v2")
    a(f"s_lshl_b32 s{S_T0}, s{S_GW}, 12")
    a(f"v_add_u32 v{G_KVOFF}, s{S_T0}, v{G_KVOFF}")
    a(f"s_add_u32 s{S_M0KV}, s{S_T0}, {KVRING}")
    a(f"s_lshl_b32 s72, s3, 18")
    if WS_KV: a(f"s_add_u32 s72, s72, {WS_KV}")
    a(f"s_mov_b32 s{S_KVSOFF}, s72")
    a(f"s_mov_b32 s{S_WSOFF}, 0")
    a(f"s_mov_b32 s{S_XSOFF}, 0")
    gemm_zero_acc(a)
    for c in range(3):
        gemm_dma(a, 'q', c)
    a(f"s_mov_b32 s{S_CNT}, 0")
    a.label("L_pre_loop")
    for r in range(4):
        a("s_waitcnt vmcnt(12)")
        a("s_barrier")
        lab = a.newlabel("pre_skip")
        a(f"s_cmp_ge_u32 s{S_CNT}, {13 - r}")
        a(f"s_cbranch_scc1 {lab}_tail")
        gemm_dma(a, 'q', (r + 3) & 3)
        gemm_compute(a, 'q', r)
        a(f"s_branch {lab}_done")
        a.label(f"{lab}_tail")
        gemm_compute(a, 'q', r)
        a("s_waitcnt vmcnt(0)")
        a.label(f"{lab}_done")
    a(f"s_add_u32 s{S_CNT}, s{S_CNT}, 4")
    a(f"s_cmp_lt_u32 s{S_CNT}, 16")
    a("s_cbranch_scc1 L_pre_loop")
    kv_dma(a, 0)
    a(f"v_add_u32 v{G_XOFF}, {64*2048}, v{G_XOFF}")
    a(f"v_add_u32 v{G_XOFF+1}, {64*2048}, v{G_XOFF+1}")
    a(f"s_mov_b32 s{S_WSOFF}, 0")
    a(f"s_mov_b32 s{S_XSOFF}, 0")
    q_epilogue(a, 2)
    gemm_zero_acc(a)
    a("s_waitcnt vmcnt(0)")
    a("s_barrier")
    for j in range(16):
        kv_dma(a, (j + 1) & 1)
        if j == 15:
            a(f"s_mov_b32 s{S_KVSOFF}, s72")
        if j == 14:
            a(f"s_mov_b32 s{S_KVSOFF}, s72")
        n_g = 0
        if j == 0:
            for c in range(3):
                gemm_dma(a, 'q', c); n_g += 1
        elif j + 2 < 16:
            gemm_dma(a, 'q', (j + 2) & 3); n_g += 1
        if j >= 1:
            gemm_compute(a, 'q', (j - 1) & 3)
        if j == 15:
            gemm_compute(a, 'q', 15 & 3)
            q_epilogue(a, 2)
        if j == 0:
            a("s_waitcnt vmcnt(12)")
        else:
            a(f"s_waitcnt vmcnt({6*n_g})")
        a("s_barrier")
    a(f"s_add_u32 s{S_KVSOFF}, s72, 16384")
    for j in range(16):
        if j < 15:
            kv_dma(a, (j + 1) & 1)
        a("s_waitcnt vmcnt(0)")
        a("s_barrier")
    a("s_endpgm")
    a.label("L_main_end")
    a("s_endpgm")
    return name, 128, LDS_MAIN

def o_epilogue(a, lane, out_srd, rowoff_sgpr):
    a.nop(12)
    t = G_TMP
    a(f"v_and_b32 v{t}, 31, v{lane}")
    a(f"v_lshlrev_b32 v{t}, 12, v{t}")
    a(f"v_lshrrev_b32 v{t+1}, 5, v{lane}")
    a(f"v_lshl_add_u32 v{t}, v{t+1}, 4, v{t}")
    for hd in range(2):
        for d in range(8):
            a(f"v_cvt_pk_bf16_f32 v{G_AF+8*hd+d}, v{G_ACC+16*hd+2*d}, v{G_ACC+16*hd+2*d+1}")
    a("s_nop 1")
    for hd in range(2):
        for qd in range(2):
            b = G_AF + 8*hd + 4*qd
            a(f"v_permlane32_swap_b32 v{b}, v{b+2}")
            a(f"v_permlane32_swap_b32 v{b+1}, v{b+3}")
    a("s_nop 1")
    for hd in range(2):
        for qd in range(2):
            b = G_AF + 8*hd + 4*qd
            a(f"buffer_store_dwordx4 {vr(b,4)}, v{t}, s[{out_srd}:{out_srd+3}], s{rowoff_sgpr} offen offset:{hd*64 + qd*32}")

def gen_oproj(a):
    name = "oproj_kernel"
    a(f".globl {name}\n.p2align 8\n.type {name},@function")
    a.label(name)
    a("s_cmp_ge_u32 s2, 512")
    a("s_cbranch_scc1 L_op_end")
    a("s_and_b32 s4, s2, 7")
    a("s_lshr_b32 s5, s2, 3")
    a("s_lshr_b32 s3, s4, 2")
    a("s_and_b32 s4, s4, 3")
    a("s_lshl_b32 s4, s4, 3")
    a("s_lshr_b32 s6, s5, 3")
    a("s_add_u32 s4, s4, s6")
    a("s_and_b32 s5, s5, 7")
    load_args(a, 3)
    a("v_lshrrev_b32 v1, 6, v0")
    a("v_and_b32 v2, 63, v0")
    a(f"v_readfirstlane_b32 s{S_GW}, v1")
    srd(a, S_XSRD, 52, 16 << 20)
    srd(a, S_WSRD, 48, 2 << 20)
    srd(a, 76, 50, 8 << 20)
    a(f"s_lshl_b32 s{S_T1}, s5, 8")
    gemm_setup_lane(a, 'o', 2)
    a(f"s_mov_b32 s{S_WSOFF}, 0")
    a(f"s_lshl_b32 s{S_XSOFF}, s3, 22")
    a(f"s_lshl_b32 s7, s4, 17")
    a(f"s_add_u32 s{S_XSOFF}, s{S_XSOFF}, s7")
    a(f"s_add_u32 s{S_XSOFF}, s{S_XSOFF}, {WS_O}")
    gemm_zero_acc(a)
    for c in range(3):
        gemm_dma(a, 'o', c)
    a(f"s_mov_b32 s{S_CNT}, 0")
    a.label("L_op_loop")
    for r in range(4):
        a("s_waitcnt vmcnt(12)")
        a("s_barrier")
        lab = a.newlabel("op_skip")
        a(f"s_cmp_ge_u32 s{S_CNT}, {13 - r}")
        a(f"s_cbranch_scc1 {lab}_tail")
        gemm_dma(a, 'o', (r + 3) & 3)
        gemm_compute(a, 'o', r)
        a(f"s_branch {lab}_done")
        a.label(f"{lab}_tail")
        gemm_compute(a, 'o', r)
        a("s_waitcnt vmcnt(0)")
        a.label(f"{lab}_done")
    a(f"s_add_u32 s{S_CNT}, s{S_CNT}, 4")
    a(f"s_cmp_lt_u32 s{S_CNT}, 16")
    a("s_cbranch_scc1 L_op_loop")
    a(f"s_lshl_b32 s7, s4, 6")
    a(f"s_and_b32 s6, s{S_GW}, 1")
    a(f"s_lshl_b32 s6, s6, 5")
    a(f"s_add_u32 s7, s7, s6")
    a(f"s_lshl_b32 s7, s7, 12")
    a(f"s_lshl_b32 s6, s3, 11")
    a(f"s_add_u32 s7, s7, s6")
    a(f"s_lshl_b32 s6, s5, 8")
    a(f"s_add_u32 s7, s7, s6")
    a(f"s_lshr_b32 s6, s{S_GW}, 1")
    a(f"s_lshl_b32 s6, s6, 7")
    a(f"s_add_u32 s7, s7, s6")
    o_epilogue(a, 2, 76, 7)
    a("s_waitcnt vmcnt(0)")
    a.label("L_op_end")
    a("s_endpgm")
    return name, 128, 98304

def main(out_path):
    ref = open("cdna_kernels/" + NAME + ".s.ref").read().split("\n")
    header = [l for l in ref if l.startswith(";") and "@launch" not in l and "Override" not in l and "grid=ceil" not in l]
    a = Asm()
    ks = []
    ks.append(gen_kv(a) + (256, 512))
    ks.append(gen_main(a) + (256, 768))
    ks.append(gen_oproj(a) + (512, 256))
    txt = "\n".join(header) + "\n"
    for (name, vg, lds, grid, block) in ks:
        txt += f"; @launch kernel={name} grid=({grid},1,1) block=({block},1,1) lds={lds}\n"
    txt += '.amdgcn_target "amdgcn-amd-amdhsa--gfx950"\n.text\n'
    txt += a.text()
    txt += '.section .rodata,"a"\n'
    for (name, vg, lds, grid, block) in ks:
        txt += ".p2align 6\n" + kernel_desc(name, vg)
    open(out_path, "w").write(txt)

if __name__ == "__main__":
    main(sys.argv[1] if len(sys.argv) > 1 else "cdna_kernels/" + NAME + ".s")
```

```python
import sys, math, os, struct
sys.path.insert(0, __file__.rsplit("/", 1)[0])
from asmlib import *

NAME = "concat_heads__grouped_kv_mqa__grouped_kv_mqa__prompt"
WS_KV = 0
WS_O = 1 << 20
CSCALE = math.log2(math.e) / math.sqrt(32.0)
def fbits(x): return "0x%08x" % struct.unpack("<I", struct.pack("<f", x))[0]
OPT = dict(kv.split("=") for kv in os.environ.get("GENOPT", "").split(",") if "=" in kv)

WRING = 0
XRING = 65536
KVR = [131072, 0, 32768]
LDS_MAIN = 163840
NVGPR = 176

PROF = False
WS_PROF = 12 << 20
V_PROF = 175
S_WSSRD = 56
def stamp(a, idx, real=False):
    if not PROF: return
    if real:
        a("s_memrealtime s[80:81]")
        a("s_waitcnt lgkmcnt(0)")
        a(f"v_writelane_b32 v{V_PROF}, s80, {idx}")
        return
    a("s_memtime s[80:81]")
    a("s_memrealtime s[84:85]")
    a("s_waitcnt lgkmcnt(0)")
    a(f"v_writelane_b32 v{V_PROF}, s80, {idx}")
    a(f"v_writelane_b32 v{V_PROF}, s84, {idx+32}")
def stamp_init(a):
    if not PROF: return
    a(f"v_mov_b32 v{V_PROF}, 0")
def stamp_flush(a, kern, nwaves, wave_sgpr, lane_v):
    if not PROF: return
    a(f"s_mul_i32 s82, s2, {nwaves}")
    a(f"s_add_u32 s82, s82, s{wave_sgpr}")
    a(f"s_lshl_b32 s82, s82, 8")
    a(f"s_add_u32 s82, s82, {WS_PROF + kern*(1<<20)}")
    a(f"v_lshlrev_b32 v{V_PROF-1}, 2, v{lane_v}")
    a(f"buffer_store_dword v{V_PROF}, v{V_PROF-1}, s[{S_WSSRD}:{S_WSSRD+3}], s82 offen")
    a("s_waitcnt vmcnt(0)")

def load_args(a, p_sgpr):
    a("s_load_dwordx16 s[16:31], s[0:1], 0")
    a("s_load_dwordx4 s[32:35], s[0:1], 64")
    a("s_load_dwordx2 s[50:51], s[0:1], 80")
    a("s_load_dwordx2 s[52:53], s[0:1], 96")
    a("s_waitcnt lgkmcnt(0)")
    a(f"s_cmp_eq_u32 s{p_sgpr}, 0")
    for i in range(5):
        for h in range(2):
            a(f"s_cselect_b32 s{40+2*i+h}, s{16+2*i+h}, s{26+2*i+h}")

def gen_kv(a):
    name = "kv_kernel"
    a(f".globl {name}\n.p2align 8\n.type {name},@function")
    a.label(name)
    a("s_cmp_ge_u32 s2, 256")
    a("s_cbranch_scc1 L_kv_end")
    a("s_lshr_b32 s3, s2, 7")
    a("s_lshr_b32 s4, s2, 1")
    a("s_and_b32 s4, s4, 63")
    a("s_and_b32 s5, s2, 1")
    load_args(a, 3)
    a("v_lshrrev_b32 v1, 6, v0")
    a("v_and_b32 v2, 63, v0")
    a("v_readfirstlane_b32 s6, v1")
    srd(a, 8, 40, 4 << 20)
    a("s_cmp_eq_u32 s5, 0")
    a("s_cselect_b32 s54, s44, s46")
    a("s_cselect_b32 s55, s45, s47")
    srd(a, 12, 54, 65536)
    srd(a, 56, 52, 16 << 20)
    stamp_init(a); stamp(a, 0); stamp(a, 10, True)
    a("v_and_b32 v3, 31, v2")
    a("v_lshrrev_b32 v4, 5, v2")
    a("s_lshl_b32 s7, s4, 5")
    a("v_add_u32 v3, s7, v3")
    a("v_lshlrev_b32 v3, 11, v3")
    a("s_lshl_b32 s7, s6, 8")
    a("v_lshl_add_u32 v5, v4, 4, s7")
    a("v_add_u32 v3, v3, v5")
    for s in range(8):
        a(f"buffer_load_dwordx4 {vr(32+4*s,4)}, v3, s[8:11], 0 offen offset:{32*s}")
    a("v_lshlrev_b32 v6, 4, v2")
    a("s_lshl_b32 s7, s6, 13")
    a("s_mov_b32 m0, s7")
    a("v_add_u32 v6, s7, v6")
    for j in range(4):
        a(f"buffer_load_dwordx4 v6, s[12:15], 0 offen offset:{1024*j} lds")
    a("s_add_u32 s60, s7, 4096")
    a("s_mov_b32 m0, s60")
    a("s_movk_i32 s61, 4096")
    for j in range(4):
        a(f"buffer_load_dwordx4 v6, s[12:15], s61 offen offset:{1024*j} lds")
    a("v_bfe_u32 v7, v2, 2, 2")
    a("v_lshl_add_u32 v7, v4, 3, v7")
    a("v_lshlrev_b32 v7, 6, v7")
    a("v_bfe_u32 v8, v2, 4, 1")
    a("v_lshl_add_u32 v7, v8, 5, v7")
    a("v_and_b32 v8, 3, v2")
    a("v_lshl_add_u32 v7, v8, 3, v7")
    a("v_add_u32 v7, s7, v7")
    for i in range(16):
        a(f"v_mov_b32 v{16+i}, 0")
    a("s_waitcnt vmcnt(0)")
    for s in range(8):
        a(f"ds_read_b64_tr_b16 {vr(64+4*s,2)}, v7 offset:{1024*s}")
        a(f"ds_read_b64_tr_b16 {vr(66+4*s,2)}, v7 offset:{1024*s+256}")
    a("s_waitcnt lgkmcnt(0)")
    a("s_cmp_eq_u32 s5, 0")
    a("s_cbranch_scc0 L_kv_isv")
    for s in range(8):
        a(f"v_mfma_f32_32x32x16_bf16 v[16:31], {vr(64+4*s,4)}, {vr(32+4*s,4)}, v[16:31]")
    a("s_branch L_kv_red")
    a.label("L_kv_isv")
    for s in range(8):
        a(f"v_mfma_f32_32x32x16_bf16 v[16:31], {vr(32+4*s,4)}, {vr(64+4*s,4)}, v[16:31]")
    a.label("L_kv_red")
    a.nop(16)
    a("s_lshl_b32 s7, s6, 12")
    a("s_add_u32 s7, s7, 65536")
    a("v_lshlrev_b32 v9, 4, v2")
    a("v_add_u32 v10, s7, v9")
    for q in range(4):
        a(f"ds_write_b128 v10, {vr(16+4*q,4)} offset:{1024*q}")
    a("s_waitcnt lgkmcnt(0)")
    a("s_barrier")
    a("s_cmp_ge_u32 s6, 2")
    a("s_cbranch_scc1 L_kv_end")
    a("s_lshl_b32 s7, s6, 11")
    a("s_add_u32 s7, s7, 65536")
    a("v_add_u32 v10, s7, v9")
    for w in range(8):
        a(f"ds_read_b128 {vr(32+8*w,4)}, v10 offset:{4096*w}")
        a(f"ds_read_b128 {vr(36+8*w,4)}, v10 offset:{4096*w+1024}")
    a("s_waitcnt lgkmcnt(0)")
    for w in range(1, 8):
        for r in range(8):
            a(f"v_add_f32 v{32+r}, v{32+r}, v{32+8*w+r}")
    for d in range(4):
        a(f"v_cvt_pk_bf16_f32 v{16+d}, v{32+2*d}, v{33+2*d}")
    a("s_lshl_b32 s7, s4, 12")
    a("s_lshl_b32 s60, s5, 11")
    a("s_add_u32 s7, s7, s60")
    a("s_lshl_b32 s60, s6, 10")
    a("s_add_u32 s7, s7, s60")
    a("s_lshl_b32 s60, s3, 18")
    a("s_add_u32 s7, s7, s60")
    if WS_KV: a(f"s_add_u32 s7, s7, {WS_KV}")
    a("buffer_store_dwordx4 v[16:19], v9, s[56:59], s7 offen")
    a("s_waitcnt vmcnt(0)")
    stamp(a, 1); stamp(a, 11, True)
    stamp_flush(a, 0, 8, 6, 2)
    a.label("L_kv_end")
    a("s_endpgm")
    return name, NVGPR, 98304

V_LANE = 2
A_KVADDR = 1
A_SEL = 8
A_IDX = 12
A_Q = [16, 24]
A_O = [32, 48]
A_L = [64, 68]
A_S = [72, 88]
A_P = [104, 112]
A_K = [120, 128]
A_V = [136, 144]
A_T = 152
G_ACC = 32
G_AF = 72
G_BF = 104
G_WOFF = 120
G_XOFF = 122
G_AADDR = 124
G_BADDR = 128
G_TMP = 132
S_XSRD = 8
S_WSRD = 12
S_W = 6
S_M0W = 63
S_M0X = 64
S_WSOFF = 66
S_XSOFF = 67
S_CNT = 69
S_T0 = 70
S_T1 = 71

def gemm_setup(a, mode, xrow0_sgpr=None):
    lane = V_LANE
    t0, t1, t2, t3 = G_TMP, G_TMP+1, G_TMP+2, G_TMP+3
    a(f"v_lshrrev_b32 v{t0}, 4, v{lane}")
    a(f"v_bfe_u32 v{t1}, v{lane}, 2, 2")
    a(f"v_xor_b32 v{t1}, v{t1}, v{t0}")
    a(f"v_lshlrev_b32 v{t1}, 6, v{t1}")
    a(f"v_lshl_add_u32 v{t1}, v{t0}, 11, v{t1}")
    a(f"v_and_b32 v{t2}, 3, v{lane}")
    a(f"v_lshl_add_u32 v{t1}, v{t2}, 4, v{t1}")
    a(f"s_lshl_b32 s{S_T0}, s{S_W}, 14")
    a(f"s_add_u32 s{S_T0}, s{S_T0}, s{S_T1}")
    a(f"v_add_u32 v{G_WOFF}, s{S_T0}, v{t1}")
    a(f"v_add_u32 v{G_WOFF+1}, {4*2048-1024}, v{G_WOFF}")
    a(f"v_bfe_u32 v{t0}, v{lane}, 2, 2")
    a(f"v_lshrrev_b32 v{t1}, 5, v{lane}")
    a(f"v_lshl_add_u32 v{t1}, v{t1}, {3 if mode=='q' else 2}, v{t0}")
    a(f"v_lshlrev_b32 v{t1}, 8, v{t1}")
    a(f"v_bfe_u32 v{t2}, v{lane}, 4, 1")
    a(f"v_lshl_add_u32 v{t1}, v{t2}, 5, v{t1}")
    a(f"v_and_b32 v{t2}, 3, v{lane}")
    a(f"v_lshl_add_u32 v{t1}, v{t2}, 3, v{t1}")
    a(f"s_lshr_b32 s{S_T0}, s{S_W}, 2")
    a(f"s_lshl_b32 s{S_T0}, s{S_T0}, 1")
    for hd in range(2):
        a(f"s_add_u32 s{S_CNT}, s{S_T0}, {hd}")
        a(f"v_xor_b32 v{t2}, s{S_CNT}, v{t0}")
        a(f"v_lshl_add_u32 v{G_AADDR+hd}, v{t2}, 6, v{t1}")
        if WRING: a(f"v_add_u32 v{G_AADDR+hd}, {WRING}, v{G_AADDR+hd}")
    if mode == 'q':
        a(f"s_and_b32 s{S_T0}, s{S_W}, 3")
        a(f"s_lshl_b32 s{S_T0}, s{S_T0}, 5")
        a(f"v_and_b32 v{t0}, 31, v{lane}")
        a(f"v_add_u32 v{t0}, s{S_T0}, v{t0}")
        a(f"v_bfe_u32 v{t1}, v{t0}, 1, 3")
        a(f"v_lshrrev_b32 v{t2}, 5, v{lane}")
        a(f"v_lshlrev_b32 v{t0}, 7, v{t0}")
        a(f"v_add_u32 v{t0}, {XRING}, v{t0}")
        for j in range(4):
            a(f"v_or_b32 v{t3}, {2*j}, v{t2}")
            a(f"v_xor_b32 v{t3}, v{t3}, v{t1}")
            a(f"v_lshl_add_u32 v{G_BADDR+j}, v{t3}, 4, v{t0}")
        a(f"v_lshrrev_b32 v{t0}, 3, v{lane}")
        a(f"s_lshl_b32 s{S_T0}, s{S_W}, 4")
        a(f"s_add_u32 s{S_T0}, s{S_T0}, s{xrow0_sgpr}")
        a(f"v_add_u32 v{t0}, s{S_T0}, v{t0}")
        a(f"v_lshlrev_b32 v{t0}, 11, v{t0}")
        a(f"v_and_b32 v{t1}, 7, v{lane}")
        a(f"v_lshrrev_b32 v{t2}, 4, v{lane}")
        a(f"v_xor_b32 v{t1}, v{t1}, v{t2}")
        a(f"v_lshl_add_u32 v{G_XOFF}, v{t1}, 4, v{t0}")
        a(f"v_xor_b32 v{t1}, 4, v{t1}")
        a(f"v_lshl_add_u32 v{G_XOFF+1}, v{t1}, 4, v{t0}")
        a(f"v_add_u32 v{G_XOFF+1}, {8*2048-1024}, v{G_XOFF+1}")
    else:
        a(f"s_and_b32 s{S_T0}, s{S_W}, 3")
        a(f"s_lshl_b32 s{S_T0}, s{S_T0}, 12")
        a(f"s_add_u32 s{S_T0}, s{S_T0}, {XRING}")
        a(f"v_lshlrev_b32 v{t0}, 4, v{lane}")
        a(f"v_add_u32 v{G_BADDR}, s{S_T0}, v{t0}")
        a(f"s_lshr_b32 s{S_T0}, s{S_W}, 1")
        a(f"s_lshl_b32 s{S_T0}, s{S_T0}, 16")
        a(f"s_and_b32 s{S_CNT}, s{S_W}, 1")
        a(f"s_lshl_b32 s{S_CNT}, s{S_CNT}, 11")
        a(f"s_add_u32 s{S_T0}, s{S_T0}, s{S_CNT}")
        a(f"v_add_u32 v{G_XOFF}, s{S_T0}, v{t0}")
    a(f"s_lshl_b32 s{S_M0W}, s{S_W}, 11")
    if WRING: a(f"s_add_u32 s{S_M0W}, s{S_M0W}, {WRING}")
    a(f"s_lshl_b32 s{S_M0X}, s{S_W}, 11")
    a(f"s_add_u32 s{S_M0X}, s{S_M0X}, {XRING}")

def gemm_dma_piece(a, mode, slot, k):
    if k == 0:
        a(f"s_add_u32 m0, s{S_M0W}, {slot*16384}")
        a("s_nop 0")
        a(f"buffer_load_dwordx4 v{G_WOFF}, s[{S_WSRD}:{S_WSRD+3}], s{S_WSOFF} offen lds")
    elif k == 1:
        a(f"buffer_load_dwordx4 v{G_WOFF+1}, s[{S_WSRD}:{S_WSRD+3}], s{S_WSOFF} offen offset:1024 lds")
        a(f"s_add_u32 s{S_WSOFF}, s{S_WSOFF}, {64*2048}")
    elif k == 2:
        a(f"s_add_u32 m0, s{S_M0X}, {slot*16384}")
        a("s_nop 0")
        a(f"buffer_load_dwordx4 v{G_XOFF}, s[{S_XSRD}:{S_XSRD+3}], s{S_XSOFF} offen lds")
    else:
        x1 = G_XOFF + 1 if mode == 'q' else G_XOFF
        a(f"buffer_load_dwordx4 v{x1}, s[{S_XSRD}:{S_XSRD+3}], s{S_XSOFF} offen offset:1024 lds")
        a(f"s_add_u32 s{S_XSOFF}, s{S_XSOFF}, {128 if mode == 'q' else 4096}")

def gemm_dma(a, mode, slot):
    for k in range(4):
        gemm_dma_piece(a, mode, slot, k)

def gemm_reads(a, mode, slot, j):
    buf = j
    af = G_AF + 8*buf
    bf = G_BF + 4*buf
    second = 1024 if mode == 'q' else 2048
    if mode == 'q':
        a(f"ds_read_b128 {vr(bf,4)}, v{G_BADDR+j} offset:{slot*16384}")
    else:
        a(f"ds_read_b128 {vr(bf,4)}, v{G_BADDR} offset:{slot*16384 + j*1024}")
    for hd in range(2):
        a(f"ds_read_b64_tr_b16 {vr(af+4*hd,2)}, v{G_AADDR+hd} offset:{slot*16384 + j*4096}")
        a(f"ds_read_b64_tr_b16 {vr(af+4*hd+2,2)}, v{G_AADDR+hd} offset:{slot*16384 + j*4096 + second}")

def gemm_chunk(a, mode, slot, dma, wait_vm, barrier, next_reads):
    if wait_vm is not None:
        a(f"s_waitcnt vmcnt({wait_vm})")
    if barrier:
        a("s_barrier")
    for j in range(4):
        if j < 2:
            gemm_reads(a, mode, slot, j + 2)
            a("s_waitcnt lgkmcnt(10)")
        elif next_reads:
            gemm_reads(a, mode, (slot + 1) & 3, j - 2)
            a("s_waitcnt lgkmcnt(10)")
        else:
            a(f"s_waitcnt lgkmcnt({5 if j == 2 else 0})")
        af = G_AF + 8*j; bf = G_BF + 4*j
        for hd in range(2):
            acc = G_ACC + 16*hd
            a(f"v_mfma_f32_32x32x16_bf16 {vr(acc,16)}, {vr(af+4*hd,4)}, {vr(bf,4)}, {vr(acc,16)}")
        if dma:
            gemm_dma_piece(a, mode, (slot + 3) & 3, j)

def gemm_loop(a, mode, tag, pre_issued=False):
    for i in range(32):
        a(f"v_mov_b32 v{G_ACC+i}, 0")
    if not pre_issued:
        for c in range(3):
            gemm_dma(a, mode, c)
    a("s_waitcnt vmcnt(8)")
    a("s_barrier")
    gemm_reads(a, mode, 0, 0)
    gemm_reads(a, mode, 0, 1)
    a(f"s_mov_b32 s{S_CNT}, 3")
    a(".p2align 6")
    a.label(f"L_{tag}_loop")
    for r in range(4):
        gemm_chunk(a, mode, r, True, 4, True, True)
    a(f"s_sub_u32 s{S_CNT}, s{S_CNT}, 1")
    a(f"s_cmp_lg_u32 s{S_CNT}, 0")
    a(f"s_cbranch_scc1 L_{tag}_loop")
    gemm_chunk(a, mode, 0, True, 4, True, True)
    gemm_chunk(a, mode, 1, False, 4, True, True)
    gemm_chunk(a, mode, 2, False, 0, True, True)
    gemm_chunk(a, mode, 3, False, None, False, False)

PRIO = OPT.get("prio", "none")
def attn_step(a, t, r, read, off, do_qk=True):
    u = r
    S = A_S[r]; Sn = A_S[r ^ 1]
    P = A_P[r]; Pp = A_P[r ^ 1]
    tn = t if r == 0 else t + 1
    Kn = A_K[tn & 1]; Qn = A_Q[r ^ 1]
    tp = t - 1 if r == 0 else t
    Vp = A_V[tp & 1]; Op = A_O[r ^ 1]; Lp = A_L[r ^ 1]
    E = lambda i: a(f"v_exp_f32 v{S+i}, v{S+i}")
    C = lambda i: a(f"v_cvt_pk_bf16_f32 v{P+i//2}, v{S+i}, v{S+i+1}")
    def RD(i):
        if read == 'K': a(f"ds_read_b128 {vr(A_K[(t+1)&1]+4*i,4)}, v{A_KVADDR} offset:{off+1024*i}")
        if read == 'V': a(f"ds_read_b128 {vr(A_V[(t+1)&1]+4*i,4)}, v{A_KVADDR} offset:{off+2048+1024*i}")
    if do_qk: a(f"v_mfma_f32_32x32x16_bf16 {vr(Sn,16)}, {vr(Kn,4)}, {vr(Qn,4)}, 0")
    RD(0)
    E(0); E(1); E(2); E(3)
    if do_qk: a(f"v_mfma_f32_32x32x16_bf16 {vr(Sn,16)}, {vr(Kn+4,4)}, {vr(Qn+4,4)}, {vr(Sn,16)}")
    RD(1)
    E(4); E(5); E(6); C(0); C(2)
    a(f"v_mfma_f32_32x32x16_bf16 {vr(Op,16)}, {vr(Vp,4)}, {vr(Pp,4)}, {vr(Op,16)}")
    E(7); E(8); E(9); C(4); C(6)
    a(f"v_mfma_f32_32x32x16_bf16 {vr(Op,16)}, {vr(Vp+4,4)}, {vr(Pp+4,4)}, {vr(Op,16)}")
    E(10); E(11); E(12); C(8); C(10)
    a(f"v_smfmac_f32_16x16x64_bf16 {vr(Lp,4)}, {vr(A_SEL,4)}, {vr(Pp,8)}, v{A_IDX}")
    E(13); E(14); E(15); C(12); C(14)

S_KVM0 = 72
S_KVSOFF = 73
S_RING = 74
def kv_dma(a, m0_sgpr):
    a(f"s_mov_b32 m0, s{m0_sgpr}")
    a("s_nop 0")
    for j in range(4):
        a(f"buffer_load_dwordx4 v3, s[{S_WSSRD}:{S_WSSRD+3}], s{S_KVSOFF} offen offset:{1024*j} lds")
    a(f"s_add_u32 s{S_KVSOFF}, s{S_KVSOFF}, 32768")

def gen_main(a):
    name = "main_kernel"
    a(f".globl {name}\n.p2align 8\n.type {name},@function")
    a.label(name)
    a("s_cmp_ge_u32 s2, 256")
    a("s_cbranch_scc1 L_main_end")
    a("s_and_b32 s4, s2, 7")
    a("s_lshr_b32 s5, s2, 3")
    a("s_lshr_b32 s3, s4, 2")
    a("s_and_b32 s4, s4, 3")
    a("s_lshl_b32 s4, s4, 2")
    a("s_lshr_b32 s6, s5, 3")
    a("s_add_u32 s4, s4, s6")
    a("s_and_b32 s5, s5, 7")
    load_args(a, 3)
    a("v_lshrrev_b32 v1, 6, v0")
    a(f"v_and_b32 v{V_LANE}, 63, v0")
    a(f"v_readfirstlane_b32 s{S_W}, v1")
    srd(a, S_WSSRD, 52, 16 << 20)
    srd(a, S_XSRD, 40, 4 << 20)
    srd(a, S_WSRD, 42, 2 << 20)
    a("s_lshl_b32 s7, s4, 7")
    stamp_init(a); stamp(a, 0); stamp(a, 10, True)
    a(f"v_lshlrev_b32 v3, 4, v{V_LANE}")
    a(f"s_lshl_b32 s{S_T0}, s{S_W}, 12")
    a(f"v_add_u32 v3, s{S_T0}, v3")
    a(f"s_lshl_b32 s{S_KVSOFF}, s3, 18")
    if WS_KV: a(f"s_add_u32 s{S_KVSOFF}, s{S_KVSOFF}, {WS_KV}")
    a(f"s_add_u32 s60, s{S_T0}, {KVR[0]}")
    kv_dma(a, 60)
    a(f"s_lshl_b32 s{S_T1}, s5, 8")
    gemm_setup(a, 'q', xrow0_sgpr=7)
    a(f"s_mov_b32 s{S_WSOFF}, 0")
    a(f"s_mov_b32 s{S_XSOFF}, 0")
    gemm_loop(a, 'q', "q")
    stamp(a, 1)
    a("s_barrier")
    a(f"s_lshl_b32 s{S_T0}, s{S_W}, 12")
    a(f"s_add_u32 s60, s{S_T0}, {KVR[1]}")
    kv_dma(a, 60)
    a.nop(8)
    a(f"s_mov_b32 s{S_T0}, {fbits(CSCALE)}")
    for i in range(32):
        a(f"v_mul_f32 v{G_ACC+i}, s{S_T0}, v{G_ACC+i}")
    for hd in range(2):
        for d in range(8):
            a(f"v_cvt_pk_bf16_f32 v{A_Q[hd]+d}, v{G_ACC+16*hd+2*d}, v{G_ACC+16*hd+2*d+1}")
    a(f"v_and_b32 v{A_T}, 6, v{V_LANE}")
    a(f"v_mov_b32 v{A_T+1}, 0x3f803f80")
    a(f"v_cmp_eq_u32 vcc, 0, v{A_T}")
    a("s_nop 1")
    a(f"v_cndmask_b32 v{A_SEL}, 0, v{A_T+1}, vcc")
    a(f"v_cndmask_b32 v{A_SEL+1}, 0, v{A_T+1}, vcc")
    a(f"v_cmp_eq_u32 vcc, 4, v{A_T}")
    a("s_nop 1")
    a(f"v_cndmask_b32 v{A_SEL+2}, 0, v{A_T+1}, vcc")
    a(f"v_cndmask_b32 v{A_SEL+3}, 0, v{A_T+1}, vcc")
    a(f"v_and_b32 v{A_T}, 1, v{V_LANE}")
    a(f"v_mov_b32 v{A_T+1}, 0x4444")
    a(f"v_mov_b32 v{A_T+2}, 0xeeee")
    a(f"v_cmp_eq_u32 vcc, 0, v{A_T}")
    a("s_nop 1")
    a(f"v_cndmask_b32 v{A_IDX}, v{A_T+2}, v{A_T+1}, vcc")
    for r in range(2):
        for i in range(16): a(f"v_mov_b32 v{A_O[r]+i}, 0")
        for i in range(4): a(f"v_mov_b32 v{A_L[r]+i}, 0")
    for i in range(8): a(f"v_mov_b32 v{A_P[1]+i}, 0")
    for i in range(8): a(f"v_mov_b32 v{A_V[1]+i}, 0")
    a("s_lshl_b32 s61, s3, 22")
    a(f"s_add_u32 s61, s61, {WS_O}")
    a("s_lshl_b32 s60, s4, 2")
    a(f"s_and_b32 s62, s{S_W}, 3")
    a("s_add_u32 s60, s60, s62")
    a("s_lshl_b32 s60, s60, 16")
    a("s_add_u32 s61, s61, s60")
    a("s_lshl_b32 s60, s5, 2")
    a(f"s_lshr_b32 s62, s{S_W}, 2")
    a("s_lshl_b32 s62, s62, 1")
    a("s_add_u32 s60, s60, s62")
    a("s_lshl_b32 s60, s60, 11")
    a("s_add_u32 s61, s61, s60")
    a("s_waitcnt vmcnt(4)")
    a("s_barrier")
    a(f"v_lshlrev_b32 v{A_KVADDR}, 4, v{V_LANE}")
    a(f"v_add_u32 v{A_KVADDR}, {KVR[0]}, v{A_KVADDR}")
    for i in range(2):
        a(f"ds_read_b128 {vr(A_K[0]+4*i,4)}, v{A_KVADDR} offset:{1024*i}")
    for i in range(2):
        a(f"ds_read_b128 {vr(A_V[0]+4*i,4)}, v{A_KVADDR} offset:{2048+1024*i}")
    a(f"s_lshl_b32 s{S_T0}, s{S_W}, 12")
    a(f"s_add_u32 s60, s{S_T0}, {KVR[2]}")
    kv_dma(a, 60)
    a("s_waitcnt lgkmcnt(0)")
    a(f"v_mfma_f32_32x32x16_bf16 {vr(A_S[0],16)}, {vr(A_K[0],4)}, {vr(A_Q[0],4)}, 0")
    a(f"v_mfma_f32_32x32x16_bf16 {vr(A_S[0],16)}, {vr(A_K[0]+4,4)}, {vr(A_Q[0]+4,4)}, {vr(A_S[0],16)}")
    a.nop(16)
    stamp(a, 2)
    a(f"s_lshl_b32 s{S_T0}, s{S_W}, 12")
    a(f"s_mov_b32 s75, {KVR[0]}")
    a(f"s_mov_b32 s76, {KVR[1]}")
    a(f"s_mov_b32 s77, {KVR[2]}")
    a(f"s_mov_b32 s{S_CNT}, 0")
    a("s_branch L_att_entry")
    a(".p2align 6")
    a.label("L_att_loop")
    a("s_waitcnt vmcnt(4) lgkmcnt(0)")
    a("s_barrier")
    a(f"s_cmp_ge_u32 s{S_CNT}, 6")
    a("s_cbranch_scc1 L_att_nodma")
    a(f"s_add_u32 s60, s75, s{S_T0}")
    kv_dma(a, 60)
    a("s_branch L_att_dmadone")
    a.label("L_att_nodma")
    a("s_nop 0")
    a.label("L_att_dmadone")
    a("s_mov_b32 s60, s75")
    a("s_mov_b32 s75, s76")
    a("s_mov_b32 s76, s77")
    a("s_mov_b32 s77, s60")
    a(f"v_lshlrev_b32 v{A_KVADDR}, 4, v{V_LANE}")
    a(f"v_add_u32 v{A_KVADDR}, s75, v{A_KVADDR}")
    for i in range(8):
        t = i - 1
        if i == 1:
            a.label("L_att_entry")
        for r in range(2):
            if r == 1:
                a("s_waitcnt lgkmcnt(0)")
            attn_step(a, t & 1 if t >= 0 else 1, r, 'K' if r == 0 else 'V', i*4096)
    a(f"s_add_u32 s{S_CNT}, s{S_CNT}, 1")
    a(f"s_cmp_lt_u32 s{S_CNT}, 8")
    a("s_cbranch_scc1 L_att_loop_pre")
    a("s_branch L_att_tail")
    a.label("L_att_loop_pre")
    a(f"s_cmp_ge_u32 s{S_CNT}, 7")
    a("s_cbranch_scc0 L_att_loop")
    a("s_waitcnt vmcnt(0)")
    a("s_branch L_att_loop")
    a.label("L_att_tail")
    attn_step(a, 1, 0, None, 0)
    a("s_waitcnt lgkmcnt(0)")
    attn_step(a, 1, 1, None, 0, do_qk=False)
    a("s_nop 1")
    Vp = A_V[1]; Pp = A_P[1]
    a(f"v_mfma_f32_32x32x16_bf16 {vr(A_O[1],16)}, {vr(Vp,4)}, {vr(Pp,4)}, {vr(A_O[1],16)}")
    a(f"v_mfma_f32_32x32x16_bf16 {vr(A_O[1],16)}, {vr(Vp+4,4)}, {vr(Pp+4,4)}, {vr(A_O[1],16)}")
    a(f"v_smfmac_f32_16x16x64_bf16 {vr(A_L[1],4)}, {vr(A_SEL,4)}, {vr(Pp,8)}, v{A_IDX}")
    stamp(a, 3)
    a.nop(16)
    a(f"v_lshlrev_b32 v{A_T+2}, 4, v{V_LANE}")
    for r in range(2):
        a(f"v_add_f32 v{A_T}, v{A_L[r]}, v{A_L[r]+1}")
        a(f"v_rcp_f32 v{A_T+1}, v{A_T}")
        a("s_nop 0")
        for i in range(16):
            a(f"v_mul_f32 v{A_O[r]+i}, v{A_T+1}, v{A_O[r]+i}")
        for d in range(8):
            a(f"v_cvt_pk_bf16_f32 v{A_S[r]+d}, v{A_O[r]+2*d}, v{A_O[r]+2*d+1}")
        a(f"buffer_store_dwordx4 {vr(A_S[r],4)}, v{A_T+2}, s[{S_WSSRD}:{S_WSSRD+3}], s61 offen offset:{2048*r}")
        a(f"buffer_store_dwordx4 {vr(A_S[r]+4,4)}, v{A_T+2}, s[{S_WSSRD}:{S_WSSRD+3}], s61 offen offset:{2048*r+1024}")
    a("s_waitcnt vmcnt(0)")
    stamp(a, 4); stamp(a, 11, True)
    stamp_flush(a, 1, 8, S_W, V_LANE)
    a.label("L_main_end")
    a("s_endpgm")
    return name, NVGPR, LDS_MAIN

def o_epilogue(a, out_srd, rowoff_sgpr):
    a.nop(12)
    t = G_TMP
    lane = V_LANE
    a(f"v_and_b32 v{t}, 31, v{lane}")
    a(f"v_lshlrev_b32 v{t}, 12, v{t}")
    a(f"v_lshrrev_b32 v{t+1}, 5, v{lane}")
    a(f"v_lshl_add_u32 v{t}, v{t+1}, 4, v{t}")
    for hd in range(2):
        for d in range(8):
            a(f"v_cvt_pk_bf16_f32 v{G_AF+8*hd+d}, v{G_ACC+16*hd+2*d}, v{G_ACC+16*hd+2*d+1}")
    a("s_nop 1")
    for hd in range(2):
        for qd in range(2):
            b = G_AF + 8*hd + 4*qd
            a(f"v_permlane32_swap_b32 v{b}, v{b+2}")
            a(f"v_permlane32_swap_b32 v{b+1}, v{b+3}")
    a("s_nop 1")
    for hd in range(2):
        for qd in range(2):
            b = G_AF + 8*hd + 4*qd
            a(f"buffer_store_dwordx4 {vr(b,4)}, v{t}, s[{out_srd}:{out_srd+3}], s{rowoff_sgpr} offen offset:{hd*64 + qd*32}")

def gen_oproj(a):
    name = "oproj_kernel"
    a(f".globl {name}\n.p2align 8\n.type {name},@function")
    a.label(name)
    a("s_cmp_ge_u32 s2, 256")
    a("s_cbranch_scc1 L_op_end")
    a("s_and_b32 s4, s2, 7")
    a("s_lshr_b32 s5, s2, 3")
    a("s_lshr_b32 s3, s4, 2")
    a("s_and_b32 s4, s4, 3")
    a("s_lshl_b32 s4, s4, 2")
    a("s_lshr_b32 s6, s5, 3")
    a("s_add_u32 s4, s4, s6")
    a("s_and_b32 s5, s5, 7")
    load_args(a, 3)
    a("v_lshrrev_b32 v1, 6, v0")
    a(f"v_and_b32 v{V_LANE}, 63, v0")
    a(f"v_readfirstlane_b32 s{S_W}, v1")
    srd(a, S_XSRD, 52, 16 << 20)
    srd(a, S_WSSRD, 52, 16 << 20)
    stamp_init(a); stamp(a, 0); stamp(a, 10, True)
    srd(a, S_WSRD, 48, 2 << 20)
    srd(a, 76, 50, 8 << 20)
    a(f"s_lshl_b32 s{S_T1}, s5, 8")
    gemm_setup(a, 'o')
    a(f"s_mov_b32 s{S_WSOFF}, 0")
    a(f"s_lshl_b32 s{S_XSOFF}, s3, 22")
    a(f"s_lshl_b32 s7, s4, 18")
    a(f"s_add_u32 s{S_XSOFF}, s{S_XSOFF}, s7")
    a(f"s_add_u32 s{S_XSOFF}, s{S_XSOFF}, {WS_O}")
    gemm_loop(a, 'o', "o")
    a(f"s_lshl_b32 s7, s4, 7")
    a(f"s_and_b32 s60, s{S_W}, 3")
    a(f"s_lshl_b32 s60, s60, 5")
    a(f"s_add_u32 s7, s7, s60")
    a(f"s_lshl_b32 s7, s7, 12")
    a(f"s_lshl_b32 s60, s3, 11")
    a(f"s_add_u32 s7, s7, s60")
    a(f"s_lshl_b32 s60, s5, 8")
    a(f"s_add_u32 s7, s7, s60")
    a(f"s_lshr_b32 s60, s{S_W}, 2")
    a(f"s_lshl_b32 s60, s60, 7")
    a(f"s_add_u32 s7, s7, s60")
    stamp(a, 1)
    o_epilogue(a, 76, 7)
    a("s_waitcnt vmcnt(0)")
    stamp(a, 2); stamp(a, 11, True)
    stamp_flush(a, 2, 8, S_W, V_LANE)
    a.label("L_op_end")
    a("s_endpgm")
    return name, NVGPR, 131072

def main(out_path):
    ref = open("cdna_kernels/" + NAME + ".s.ref").read().split("\n")
    header = [l for l in ref if l.startswith(";") and "@launch" not in l and "Override" not in l and "grid=ceil" not in l]
    a = Asm()
    ks = []
    ks.append(gen_kv(a) + (256, 512))
    ks.append(gen_main(a) + (256, 512))
    ks.append(gen_oproj(a) + (256, 512))
    txt = "\n".join(header) + "\n"
    for (name, vg, lds, grid, block) in ks:
        txt += f"; @launch kernel={name} grid=({grid},1,1) block=({block},1,1) lds={lds}\n"
    txt += '.amdgcn_target "amdgcn-amd-amdhsa--gfx950"\n.text\n'
    txt += a.text()
    txt += '.section .rodata,"a"\n'
    for (name, vg, lds, grid, block) in ks:
        txt += ".p2align 6\n" + kernel_desc(name, vg)
    open(out_path, "w").write(txt)

if __name__ == "__main__":
    if "--prof" in sys.argv:
        PROF = True
        sys.argv.remove("--prof")
    main(sys.argv[1] if len(sys.argv) > 1 else "cdna_kernels/" + NAME + ".s")
```

```python
import sys, math, os, struct
sys.path.insert(0, __file__.rsplit("/", 1)[0])
from asmlib import *

NAME = "concat_heads__grouped_kv_mqa__grouped_kv_mqa__prompt"
WS_KV = 0
WS_O = 1 << 20
CSCALE = math.log2(math.e) / math.sqrt(32.0)
def fbits(x): return "0x%08x" % struct.unpack("<I", struct.pack("<f", x))[0]
OPT = dict(kv.split("=") for kv in os.environ.get("GENOPT", "").split(",") if "=" in kv)

WRING = 0
XRING = 65536
KVR = [131072, 0, 32768]
LDS_MAIN = 163840
NVGPR = 168

PROF = False
WS_PROF = 12 << 20
V_PROF = 167
S_WSSRD = 56
def stamp(a, idx, real=False):
    if not PROF: return
    if real:
        a("s_memrealtime s[80:81]")
        a("s_waitcnt lgkmcnt(0)")
        a(f"v_writelane_b32 v{V_PROF}, s80, {idx}")
        return
    a("s_memtime s[80:81]")
    a("s_memrealtime s[84:85]")
    a("s_waitcnt lgkmcnt(0)")
    a(f"v_writelane_b32 v{V_PROF}, s80, {idx}")
    a(f"v_writelane_b32 v{V_PROF}, s84, {idx+32}")
def stamp_init(a):
    if not PROF: return
    a(f"v_mov_b32 v{V_PROF}, 0")
def stamp_flush(a, kern, nwaves, wave_sgpr, lane_v):
    if not PROF: return
    a(f"s_mul_i32 s82, s2, {nwaves}")
    a(f"s_add_u32 s82, s82, s{wave_sgpr}")
    a(f"s_lshl_b32 s82, s82, 8")
    a(f"s_add_u32 s82, s82, {WS_PROF + kern*(1<<20)}")
    a(f"v_lshlrev_b32 v{V_PROF-1}, 2, v{lane_v}")
    a(f"buffer_store_dword v{V_PROF}, v{V_PROF-1}, s[{S_WSSRD}:{S_WSSRD+3}], s82 offen")
    a("s_waitcnt vmcnt(0)")

def load_args(a, p_sgpr):
    a("s_load_dwordx16 s[16:31], s[0:1], 0")
    a("s_load_dwordx4 s[32:35], s[0:1], 64")
    a("s_load_dwordx2 s[50:51], s[0:1], 80")
    a("s_load_dwordx2 s[52:53], s[0:1], 96")
    a("s_waitcnt lgkmcnt(0)")
    a(f"s_cmp_eq_u32 s{p_sgpr}, 0")
    for i in range(5):
        for h in range(2):
            a(f"s_cselect_b32 s{40+2*i+h}, s{16+2*i+h}, s{26+2*i+h}")

def gen_kv(a):
    name = "kv_kernel"
    a(f".globl {name}\n.p2align 8\n.type {name},@function")
    a.label(name)
    a("s_cmp_ge_u32 s2, 256")
    a("s_cbranch_scc1 L_kv_end")
    a("s_lshr_b32 s3, s2, 7")
    a("s_lshr_b32 s4, s2, 1")
    a("s_and_b32 s4, s4, 63")
    a("s_and_b32 s5, s2, 1")
    load_args(a, 3)
    a("v_lshrrev_b32 v1, 6, v0")
    a("v_and_b32 v2, 63, v0")
    a("v_readfirstlane_b32 s6, v1")
    srd(a, 8, 40, 4 << 20)
    a("s_cmp_eq_u32 s5, 0")
    a("s_cselect_b32 s54, s44, s46")
    a("s_cselect_b32 s55, s45, s47")
    srd(a, 12, 54, 65536)
    srd(a, 56, 52, 16 << 20)
    stamp_init(a); stamp(a, 0); stamp(a, 10, True)
    if OPT.get("dbgt") == "1":
        a("s_load_dwordx2 s[90:91], s[0:1], 88")
        a("s_memtime s[92:93]")
        a("s_waitcnt lgkmcnt(0)")
    a("v_and_b32 v3, 31, v2")
    a("v_lshrrev_b32 v4, 5, v2")
    a("s_lshl_b32 s7, s4, 5")
    a("v_add_u32 v3, s7, v3")
    a("v_lshlrev_b32 v3, 11, v3")
    a("s_lshl_b32 s7, s6, 8")
    a("v_lshl_add_u32 v5, v4, 4, s7")
    a("v_add_u32 v3, v3, v5")
    for s in range(8):
        a(f"buffer_load_dwordx4 {vr(32+4*s,4)}, v3, s[8:11], 0 offen offset:{32*s}")
    a("v_lshlrev_b32 v6, 4, v2")
    a("s_lshl_b32 s7, s6, 13")
    a("s_mov_b32 m0, s7")
    a("v_add_u32 v6, s7, v6")
    for j in range(4):
        a(f"buffer_load_dwordx4 v6, s[12:15], 0 offen offset:{1024*j} lds")
    a("s_add_u32 s60, s7, 4096")
    a("s_mov_b32 m0, s60")
    a("s_movk_i32 s61, 4096")
    for j in range(4):
        a(f"buffer_load_dwordx4 v6, s[12:15], s61 offen offset:{1024*j} lds")
    a("v_bfe_u32 v7, v2, 2, 2")
    a("v_lshl_add_u32 v7, v4, 3, v7")
    a("v_lshlrev_b32 v7, 6, v7")
    a("v_bfe_u32 v8, v2, 4, 1")
    a("v_lshl_add_u32 v7, v8, 5, v7")
    a("v_and_b32 v8, 3, v2")
    a("v_lshl_add_u32 v7, v8, 3, v7")
    a("v_add_u32 v7, s7, v7")
    for i in range(16):
        a(f"v_mov_b32 v{16+i}, 0")
    a("s_waitcnt vmcnt(0)")
    for s in range(8):
        a(f"ds_read_b64_tr_b16 {vr(64+4*s,2)}, v7 offset:{1024*s}")
        a(f"ds_read_b64_tr_b16 {vr(66+4*s,2)}, v7 offset:{1024*s+256}")
    a("s_waitcnt lgkmcnt(0)")
    a("s_cmp_eq_u32 s5, 0")
    a("s_cbranch_scc0 L_kv_isv")
    for s in range(8):
        a(f"v_mfma_f32_32x32x16_bf16 v[16:31], {vr(64+4*s,4)}, {vr(32+4*s,4)}, v[16:31]")
    a("s_branch L_kv_red")
    a.label("L_kv_isv")
    for s in range(8):
        a(f"v_mfma_f32_32x32x16_bf16 v[16:31], {vr(32+4*s,4)}, {vr(64+4*s,4)}, v[16:31]")
    a.label("L_kv_red")
    a.nop(16)
    a("s_lshl_b32 s7, s6, 12")
    a("s_add_u32 s7, s7, 65536")
    a("v_lshlrev_b32 v9, 4, v2")
    a("v_add_u32 v10, s7, v9")
    for q in range(4):
        a(f"ds_write_b128 v10, {vr(16+4*q,4)} offset:{1024*q}")
    a("s_waitcnt lgkmcnt(0)")
    a("s_barrier")
    a("s_cmp_ge_u32 s6, 2")
    a("s_cbranch_scc1 L_kv_end")
    a("s_lshl_b32 s7, s6, 11")
    a("s_add_u32 s7, s7, 65536")
    a("v_add_u32 v10, s7, v9")
    for w in range(8):
        a(f"ds_read_b128 {vr(32+8*w,4)}, v10 offset:{4096*w}")
        a(f"ds_read_b128 {vr(36+8*w,4)}, v10 offset:{4096*w+1024}")
    a("s_waitcnt lgkmcnt(0)")
    for w in range(1, 8):
        for r in range(8):
            a(f"v_add_f32 v{32+r}, v{32+r}, v{32+8*w+r}")
    for d in range(4):
        a(f"v_cvt_pk_bf16_f32 v{16+d}, v{32+2*d}, v{33+2*d}")
    a("s_lshl_b32 s7, s4, 12")
    a("s_lshl_b32 s60, s5, 11")
    a("s_add_u32 s7, s7, s60")
    a("s_lshl_b32 s60, s6, 10")
    a("s_add_u32 s7, s7, s60")
    a("s_lshl_b32 s60, s3, 18")
    a("s_add_u32 s7, s7, s60")
    if WS_KV: a(f"s_add_u32 s7, s7, {WS_KV}")
    a("buffer_store_dwordx4 v[16:19], v9, s[56:59], s7 offen")
    a("s_waitcnt vmcnt(0)")
    if OPT.get("dbgt") == "1":
        a("s_memtime s[94:95]")
        a("s_waitcnt lgkmcnt(0)")
        a("s_sub_u32 s94, s94, s92")
        a("s_and_b32 s95, s2, 15")
        a("s_lshl_b32 s95, s95, 2")
        a("v_mov_b32 v20, s95")
        a("v_mov_b32 v21, s94")
        a("global_store_dword v20, v21, s[90:91]")
        a("s_waitcnt vmcnt(0)")
    stamp(a, 1); stamp(a, 11, True)
    stamp_flush(a, 0, 8, 6, 2)
    a.label("L_kv_end")
    a("s_endpgm")
    return name, NVGPR, 98304

V_LANE = 2
A_KVADDR = 1
A_SEL = 8
A_IDX = 12
A_Q = [16, 24]
A_O = [32, 48]
A_L = [64, 68]
A_S = [72, 88]
A_P = [104, 112]
A_K = [120, 128]
A_V = [136, 144]
A_T = 152
G_ACC = 32
G_AF = 72
G_BF = 104
G_WOFF = 120
G_XOFF = 122
G_AADDR = 124
G_BADDR = 128
G_TMP = 132
S_XSRD = 8
S_WSRD = 12
S_W = 6
S_M0W = 63
S_M0X = 64
S_WSOFF = 66
S_XSOFF = 67
S_CNT = 69
S_T0 = 70
S_T1 = 71

def gemm_setup(a, mode, xrow0_sgpr=None):
    lane = V_LANE
    t0, t1, t2, t3 = G_TMP, G_TMP+1, G_TMP+2, G_TMP+3
    a(f"v_lshrrev_b32 v{t0}, 4, v{lane}")
    a(f"v_bfe_u32 v{t1}, v{lane}, 2, 2")
    a(f"v_xor_b32 v{t1}, v{t1}, v{t0}")
    a(f"v_lshlrev_b32 v{t1}, 6, v{t1}")
    a(f"v_lshl_add_u32 v{t1}, v{t0}, 11, v{t1}")
    a(f"v_and_b32 v{t2}, 3, v{lane}")
    a(f"v_lshl_add_u32 v{t1}, v{t2}, 4, v{t1}")
    a(f"s_lshl_b32 s{S_T0}, s{S_W}, 14")
    a(f"s_add_u32 s{S_T0}, s{S_T0}, s{S_T1}")
    a(f"v_add_u32 v{G_WOFF}, s{S_T0}, v{t1}")
    a(f"v_add_u32 v{G_WOFF+1}, {4*2048-1024}, v{G_WOFF}")
    a(f"v_bfe_u32 v{t0}, v{lane}, 2, 2")
    a(f"v_lshrrev_b32 v{t1}, 5, v{lane}")
    a(f"v_lshl_add_u32 v{t1}, v{t1}, {3 if mode=='q' else 2}, v{t0}")
    a(f"v_lshlrev_b32 v{t1}, 8, v{t1}")
    a(f"v_bfe_u32 v{t2}, v{lane}, 4, 1")
    a(f"v_lshl_add_u32 v{t1}, v{t2}, 5, v{t1}")
    a(f"v_and_b32 v{t2}, 3, v{lane}")
    a(f"v_lshl_add_u32 v{t1}, v{t2}, 3, v{t1}")
    a(f"s_lshr_b32 s{S_T0}, s{S_W}, 2")
    a(f"s_lshl_b32 s{S_T0}, s{S_T0}, 1")
    for hd in range(2):
        a(f"s_add_u32 s{S_CNT}, s{S_T0}, {hd}")
        a(f"v_xor_b32 v{t2}, s{S_CNT}, v{t0}")
        a(f"v_lshl_add_u32 v{G_AADDR+hd}, v{t2}, 6, v{t1}")
        if WRING: a(f"v_add_u32 v{G_AADDR+hd}, {WRING}, v{G_AADDR+hd}")
    if mode == 'q':
        a(f"s_and_b32 s{S_T0}, s{S_W}, 3")
        a(f"s_lshl_b32 s{S_T0}, s{S_T0}, 5")
        a(f"v_and_b32 v{t0}, 31, v{lane}")
        a(f"v_add_u32 v{t0}, s{S_T0}, v{t0}")
        a(f"v_bfe_u32 v{t1}, v{t0}, 1, 3")
        a(f"v_lshrrev_b32 v{t2}, 5, v{lane}")
        a(f"v_lshlrev_b32 v{t0}, 7, v{t0}")
        a(f"v_add_u32 v{t0}, {XRING}, v{t0}")
        for j in range(4):
            a(f"v_or_b32 v{t3}, {2*j}, v{t2}")
            a(f"v_xor_b32 v{t3}, v{t3}, v{t1}")
            a(f"v_lshl_add_u32 v{G_BADDR+j}, v{t3}, 4, v{t0}")
        a(f"v_lshrrev_b32 v{t0}, 3, v{lane}")
        a(f"s_lshl_b32 s{S_T0}, s{S_W}, 4")
        a(f"s_add_u32 s{S_T0}, s{S_T0}, s{xrow0_sgpr}")
        a(f"v_add_u32 v{t0}, s{S_T0}, v{t0}")
        a(f"v_lshlrev_b32 v{t0}, 11, v{t0}")
        a(f"v_and_b32 v{t1}, 7, v{lane}")
        a(f"v_lshrrev_b32 v{t2}, 4, v{lane}")
        a(f"v_xor_b32 v{t1}, v{t1}, v{t2}")
        a(f"v_lshl_add_u32 v{G_XOFF}, v{t1}, 4, v{t0}")
        a(f"v_xor_b32 v{t1}, 4, v{t1}")
        a(f"v_lshl_add_u32 v{G_XOFF+1}, v{t1}, 4, v{t0}")
        a(f"v_add_u32 v{G_XOFF+1}, {8*2048-1024}, v{G_XOFF+1}")
    else:
        a(f"s_and_b32 s{S_T0}, s{S_W}, 3")
        a(f"s_lshl_b32 s{S_T0}, s{S_T0}, 12")
        a(f"s_add_u32 s{S_T0}, s{S_T0}, {XRING}")
        a(f"v_lshlrev_b32 v{t0}, 4, v{lane}")
        a(f"v_add_u32 v{G_BADDR}, s{S_T0}, v{t0}")
        a(f"s_lshr_b32 s{S_T0}, s{S_W}, 1")
        a(f"s_lshl_b32 s{S_T0}, s{S_T0}, 16")
        a(f"s_and_b32 s{S_CNT}, s{S_W}, 1")
        a(f"s_lshl_b32 s{S_CNT}, s{S_CNT}, 11")
        a(f"s_add_u32 s{S_T0}, s{S_T0}, s{S_CNT}")
        a(f"v_add_u32 v{G_XOFF}, s{S_T0}, v{t0}")
    a(f"s_lshl_b32 s{S_M0W}, s{S_W}, 11")
    if WRING: a(f"s_add_u32 s{S_M0W}, s{S_M0W}, {WRING}")
    a(f"s_lshl_b32 s{S_M0X}, s{S_W}, 11")
    a(f"s_add_u32 s{S_M0X}, s{S_M0X}, {XRING}")

def gemm_dma_piece(a, mode, slot, k):
    if OPT.get("nodma") == "1": return
    if k == 0:
        a(f"s_add_u32 m0, s{S_M0W}, {slot*16384}")
        a("s_nop 0")
        a(f"buffer_load_dwordx4 v{G_WOFF}, s[{S_WSRD}:{S_WSRD+3}], s{S_WSOFF} offen lds")
    elif k == 1:
        a(f"buffer_load_dwordx4 v{G_WOFF+1}, s[{S_WSRD}:{S_WSRD+3}], s{S_WSOFF} offen offset:1024 lds")
        a(f"s_add_u32 s{S_WSOFF}, s{S_WSOFF}, {64*2048}")
        a(f"s_and_b32 s{S_WSOFF}, s{S_WSOFF}, 0x1fffff")
    elif k == 2:
        a(f"s_add_u32 m0, s{S_M0X}, {slot*16384}")
        a("s_nop 0")
        a(f"buffer_load_dwordx4 v{G_XOFF}, s[{S_XSRD}:{S_XSRD+3}], s{S_XSOFF} offen lds")
    else:
        x1 = G_XOFF + 1 if mode == 'q' else G_XOFF
        a(f"buffer_load_dwordx4 v{x1}, s[{S_XSRD}:{S_XSRD+3}], s{S_XSOFF} offen offset:1024 lds")
        a(f"s_add_u32 s{S_XSOFF}, s{S_XSOFF}, {128 if mode == 'q' else 4096}")
        a(f"s_and_b32 s{S_XSOFF}, s{S_XSOFF}, {2047 if mode == 'q' else 65535}")

def gemm_dma(a, mode, slot):
    for k in range(4):
        gemm_dma_piece(a, mode, slot, k)

def gemm_reads(a, mode, slot, j):
    if OPT.get("noreads") == "1": return
    buf = j
    af = G_AF + 8*buf
    bf = G_BF + 4*buf
    second = 1024 if mode == 'q' else 2048
    if mode == 'q':
        a(f"ds_read_b128 {vr(bf,4)}, v{G_BADDR+j} offset:{slot*16384}")
    else:
        a(f"ds_read_b128 {vr(bf,4)}, v{G_BADDR} offset:{slot*16384 + j*1024}")
    for hd in range(2):
        a(f"ds_read_b64_tr_b16 {vr(af+4*hd,2)}, v{G_AADDR+hd} offset:{slot*16384 + j*4096}")
        a(f"ds_read_b64_tr_b16 {vr(af+4*hd+2,2)}, v{G_AADDR+hd} offset:{slot*16384 + j*4096 + second}")

def gemm_chunk(a, mode, slot, dma, wait_vm, barrier, next_reads):
    if wait_vm is not None:
        a(f"s_waitcnt vmcnt({wait_vm})")
    if barrier and OPT.get("nogbar") != "1":
        a("s_barrier")
    for j in range(4):
        if j < 2:
            gemm_reads(a, mode, slot, j + 2)
            a("s_waitcnt lgkmcnt(10)")
        elif next_reads:
            gemm_reads(a, mode, (slot + 1) & 3, j - 2)
            a("s_waitcnt lgkmcnt(10)")
        else:
            a(f"s_waitcnt lgkmcnt({5 if j == 2 else 0})")
        af = G_AF + 8*j; bf = G_BF + 4*j
        for hd in range(2):
            acc = G_ACC + 16*hd
            if OPT.get("nomfma") != "1": a(f"v_mfma_f32_32x32x16_bf16 {vr(acc,16)}, {vr(af+4*hd,4)}, {vr(bf,4)}, {vr(acc,16)}")
        if dma:
            gemm_dma_piece(a, mode, (slot + 3) & 3, j)

def gemm_loop(a, mode, tag, pre_issued=False):
    for i in range(32):
        a(f"v_mov_b32 v{G_ACC+i}, 0")
    if not pre_issued:
        for c in range(3):
            gemm_dma(a, mode, c)
    a("s_waitcnt vmcnt(8)")
    a("s_barrier")
    gemm_reads(a, mode, 0, 0)
    gemm_reads(a, mode, 0, 1)
    a(f"s_mov_b32 s{S_CNT}, 3")
    a(".p2align 6")
    a.label(f"L_{tag}_loop")
    for r in range(4):
        gemm_chunk(a, mode, r, True, 4, True, True)
    a(f"s_sub_u32 s{S_CNT}, s{S_CNT}, 1")
    a(f"s_cmp_lg_u32 s{S_CNT}, 0")
    a(f"s_cbranch_scc1 L_{tag}_loop")
    gemm_chunk(a, mode, 0, True, 4, True, True)
    gemm_chunk(a, mode, 1, False, 4, True, True)
    gemm_chunk(a, mode, 2, False, 0, True, True)
    gemm_chunk(a, mode, 3, False, None, False, False)

def prefetch_wave(a, xsrd, wsrd, x_first_row_sgpr, colbase_sgpr, qbl_sgpr, hg_sgpr, do_x=True, xo_base_sgpr=None):
    L = V_LANE
    if do_x:
        a(f"s_lshl_b32 s60, s{hg_sgpr}, 4")
        a(f"s_add_u32 s60, s60, s{x_first_row_sgpr}")
        a(f"s_lshl_b32 s60, s60, 11")
        a(f"v_lshlrev_b32 v4, 6, v{L}")
        for e in range(8):
            a(f"buffer_load_dword v{8+e}, v4, s[{xsrd}:{xsrd+3}], s60 offen")
            a(f"s_add_u32 s60, s60, 4096")
    if xo_base_sgpr is not None:
        a(f"s_lshl_b32 s60, s{hg_sgpr}, 15")
        a(f"s_add_u32 s60, s60, s{xo_base_sgpr}")
        a(f"v_lshlrev_b32 v4, 6, v{L}")
        for e in range(8):
            a(f"buffer_load_dword v{8+e}, v4, s[{xsrd}:{xsrd+3}], s60 offen")
            a(f"s_add_u32 s60, s60, 4096")
    a(f"v_lshrrev_b32 v5, 2, v{L}")
    a(f"v_lshlrev_b32 v5, 11, v5")
    a(f"v_and_b32 v6, 3, v{L}")
    a(f"v_lshl_add_u32 v5, v6, 6, v5")
    a(f"s_lshl_b32 s60, s{qbl_sgpr}, 19")
    a(f"s_add_u32 s60, s60, s{colbase_sgpr}")
    for e in range(16):
        a(f"buffer_load_dword v{16+e}, v5, s[{wsrd}:{wsrd+3}], s60 offen")
        a(f"s_add_u32 s60, s60, {16*2048}")
    a("s_endpgm")

PRIO = OPT.get("prio", "none")
def attn_step(a, t, r, read, off, do_qk=True):
    u = r
    S = A_S[r]; Sn = A_S[r ^ 1]
    P = A_P[r]; Pp = A_P[r ^ 1]
    tn = t if r == 0 else t + 1
    Kn = A_K[tn & 1]; Qn = A_Q[r ^ 1]
    tp = t - 1 if r == 0 else t
    Vp = A_V[tp & 1]; Op = A_O[r ^ 1]; Lp = A_L[r ^ 1]
    E = lambda i: a(f"v_exp_f32 v{S+i}, v{S+i}")
    C = lambda i: a(f"v_cvt_pk_bf16_f32 v{P+i//2}, v{S+i}, v{S+i+1}")
    def RD(i):
        if read == 'K': a(f"ds_read_b128 {vr(A_K[(t+1)&1]+4*i,4)}, v{A_KVADDR} offset:{off+1024*i}")
        if read == 'V': a(f"ds_read_b128 {vr(A_V[(t+1)&1]+4*i,4)}, v{A_KVADDR} offset:{off+2048+1024*i}")
    if do_qk: a(f"v_mfma_f32_32x32x16_bf16 {vr(Sn,16)}, {vr(Kn,4)}, {vr(Qn,4)}, 0")
    RD(0)
    E(0); E(1); E(2); E(3)
    if do_qk: a(f"v_mfma_f32_32x32x16_bf16 {vr(Sn,16)}, {vr(Kn+4,4)}, {vr(Qn+4,4)}, {vr(Sn,16)}")
    RD(1)
    E(4); E(5); E(6); C(0); C(2)
    a(f"v_mfma_f32_32x32x16_bf16 {vr(Op,16)}, {vr(Vp,4)}, {vr(Pp,4)}, {vr(Op,16)}")
    E(7); E(8); E(9); C(4); C(6)
    a(f"v_mfma_f32_32x32x16_bf16 {vr(Op,16)}, {vr(Vp+4,4)}, {vr(Pp+4,4)}, {vr(Op,16)}")
    E(10); E(11); E(12); C(8); C(10)
    a(f"v_smfmac_f32_16x16x64_bf16 {vr(Lp,4)}, {vr(A_SEL,4)}, {vr(Pp,8)}, v{A_IDX}")
    E(13); E(14); E(15); C(12); C(14)

S_KVM0 = 72
S_KVSOFF = 73
S_RING = 74
def kv_dma(a, m0_sgpr):
    a(f"s_mov_b32 m0, s{m0_sgpr}")
    a("s_nop 0")
    for j in range(4):
        a(f"buffer_load_dwordx4 v3, s[{S_WSSRD}:{S_WSSRD+3}], s{S_KVSOFF} offen offset:{1024*j} lds")
    a(f"s_add_u32 s{S_KVSOFF}, s{S_KVSOFF}, 32768")

def gen_main(a):
    name = "main_kernel"
    a(f".globl {name}\n.p2align 8\n.type {name},@function")
    a.label(name)
    a("s_cmp_ge_u32 s2, 256")
    a("s_cbranch_scc1 L_main_end")
    a("s_and_b32 s4, s2, 7")
    a("s_lshr_b32 s5, s2, 3")
    a("s_lshr_b32 s3, s4, 2")
    a("s_and_b32 s4, s4, 3")
    a("s_lshl_b32 s4, s4, 2")
    a("s_lshr_b32 s6, s5, 3")
    a("s_add_u32 s4, s4, s6")
    a("s_and_b32 s5, s5, 7")
    load_args(a, 3)
    a("v_lshrrev_b32 v1, 6, v0")
    a(f"v_and_b32 v{V_LANE}, 63, v0")
    a(f"v_readfirstlane_b32 s{S_W}, v1")
    srd(a, S_WSSRD, 52, 16 << 20)
    srd(a, S_XSRD, 40, 4 << 20)
    srd(a, S_WSRD, 42, 2 << 20)
    a("s_lshl_b32 s7, s4, 7")
    if OPT.get("pf","0") == "1":
        a(f"s_cmp_lt_u32 s{S_W}, 8")
        a(f"s_cbranch_scc1 L_main_nopf")
        a(f"s_lshl_b32 s62, s5, 8")
        a(f"s_and_b32 s63, s4, 3")
        prefetch_wave(a, S_XSRD, S_WSRD, 7, 62, 63, 5)
        a.label("L_main_nopf")
    stamp_init(a); stamp(a, 0); stamp(a, 10, True)
    a(f"v_lshlrev_b32 v3, 4, v{V_LANE}")
    a(f"s_lshl_b32 s{S_T0}, s{S_W}, 12")
    a(f"v_add_u32 v3, s{S_T0}, v3")
    a(f"s_lshl_b32 s{S_KVSOFF}, s3, 18")
    if WS_KV: a(f"s_add_u32 s{S_KVSOFF}, s{S_KVSOFF}, {WS_KV}")
    a(f"s_add_u32 s60, s{S_T0}, {KVR[0]}")
    kv_dma(a, 60)
    a(f"s_lshl_b32 s{S_T1}, s5, 8")
    gemm_setup(a, 'q', xrow0_sgpr=7)
    if OPT.get("rot","1") == "1":
        a("s_and_b32 s60, s4, 3")
        a("s_lshl_b32 s60, s60, 2")
        a("s_lshl_b32 s62, s5, 1")
        a("s_add_u32 s60, s60, s62")
        a("s_and_b32 s60, s60, 15")
    else:
        a("s_mov_b32 s60, 0")
    a(f"s_lshl_b32 s{S_WSOFF}, s60, 17")
    a(f"s_lshl_b32 s{S_XSOFF}, s60, 7")
    gemm_loop(a, 'q', "q")
    stamp(a, 1)
    a("s_barrier")
    a(f"s_lshl_b32 s{S_T0}, s{S_W}, 12")
    a(f"s_add_u32 s60, s{S_T0}, {KVR[1]}")
    kv_dma(a, 60)
    a.nop(8)
    a(f"s_mov_b32 s{S_T0}, {fbits(CSCALE)}")
    for i in range(32):
        a(f"v_mul_f32 v{G_ACC+i}, s{S_T0}, v{G_ACC+i}")
    for hd in range(2):
        for d in range(8):
            a(f"v_cvt_pk_bf16_f32 v{A_Q[hd]+d}, v{G_ACC+16*hd+2*d}, v{G_ACC+16*hd+2*d+1}")
    a(f"v_and_b32 v{A_T}, 6, v{V_LANE}")
    a(f"v_mov_b32 v{A_T+1}, 0x3f803f80")
    a(f"v_cmp_eq_u32 vcc, 0, v{A_T}")
    a("s_nop 1")
    a(f"v_cndmask_b32 v{A_SEL}, 0, v{A_T+1}, vcc")
    a(f"v_cndmask_b32 v{A_SEL+1}, 0, v{A_T+1}, vcc")
    a(f"v_cmp_eq_u32 vcc, 4, v{A_T}")
    a("s_nop 1")
    a(f"v_cndmask_b32 v{A_SEL+2}, 0, v{A_T+1}, vcc")
    a(f"v_cndmask_b32 v{A_SEL+3}, 0, v{A_T+1}, vcc")
    a(f"v_and_b32 v{A_T}, 1, v{V_LANE}")
    a(f"v_mov_b32 v{A_T+1}, 0x4444")
    a(f"v_mov_b32 v{A_T+2}, 0xeeee")
    a(f"v_cmp_eq_u32 vcc, 0, v{A_T}")
    a("s_nop 1")
    a(f"v_cndmask_b32 v{A_IDX}, v{A_T+2}, v{A_T+1}, vcc")
    for r in range(2):
        for i in range(16): a(f"v_mov_b32 v{A_O[r]+i}, 0")
        for i in range(4): a(f"v_mov_b32 v{A_L[r]+i}, 0")
    for i in range(8): a(f"v_mov_b32 v{A_P[1]+i}, 0")
    for i in range(8): a(f"v_mov_b32 v{A_V[1]+i}, 0")
    a("s_lshl_b32 s61, s3, 22")
    a(f"s_add_u32 s61, s61, {WS_O}")
    a("s_lshl_b32 s60, s4, 2")
    a(f"s_and_b32 s62, s{S_W}, 3")
    a("s_add_u32 s60, s60, s62")
    a("s_lshl_b32 s60, s60, 16")
    a("s_add_u32 s61, s61, s60")
    a("s_lshl_b32 s60, s5, 2")
    a(f"s_lshr_b32 s62, s{S_W}, 2")
    a("s_lshl_b32 s62, s62, 1")
    a("s_add_u32 s60, s60, s62")
    a("s_lshl_b32 s60, s60, 11")
    a("s_add_u32 s61, s61, s60")
    a("s_waitcnt vmcnt(4)")
    a("s_barrier")
    a(f"v_lshlrev_b32 v{A_KVADDR}, 4, v{V_LANE}")
    a(f"v_add_u32 v{A_KVADDR}, {KVR[0]}, v{A_KVADDR}")
    for i in range(2):
        a(f"ds_read_b128 {vr(A_K[0]+4*i,4)}, v{A_KVADDR} offset:{1024*i}")
    for i in range(2):
        a(f"ds_read_b128 {vr(A_V[0]+4*i,4)}, v{A_KVADDR} offset:{2048+1024*i}")
    a(f"s_lshl_b32 s{S_T0}, s{S_W}, 12")
    a(f"s_add_u32 s60, s{S_T0}, {KVR[2]}")
    kv_dma(a, 60)
    a("s_waitcnt lgkmcnt(0)")
    a(f"v_mfma_f32_32x32x16_bf16 {vr(A_S[0],16)}, {vr(A_K[0],4)}, {vr(A_Q[0],4)}, 0")
    a(f"v_mfma_f32_32x32x16_bf16 {vr(A_S[0],16)}, {vr(A_K[0]+4,4)}, {vr(A_Q[0]+4,4)}, {vr(A_S[0],16)}")
    a.nop(16)
    stamp(a, 2)
    a(f"s_lshl_b32 s{S_T0}, s{S_W}, 12")
    a(f"s_mov_b32 s75, {KVR[0]}")
    a(f"s_mov_b32 s76, {KVR[1]}")
    a(f"s_mov_b32 s77, {KVR[2]}")
    a(f"s_mov_b32 s{S_CNT}, 0")
    a("s_branch L_att_entry")
    a(".p2align 6")
    a.label("L_att_loop")
    a("s_waitcnt vmcnt(4) lgkmcnt(0)")
    a("s_barrier")
    a(f"s_cmp_ge_u32 s{S_CNT}, 6")
    a("s_cbranch_scc1 L_att_nodma")
    a(f"s_add_u32 s60, s75, s{S_T0}")
    kv_dma(a, 60)
    a("s_branch L_att_dmadone")
    a.label("L_att_nodma")
    a("s_nop 0")
    a.label("L_att_dmadone")
    a("s_mov_b32 s60, s75")
    a("s_mov_b32 s75, s76")
    a("s_mov_b32 s76, s77")
    a("s_mov_b32 s77, s60")
    a(f"v_lshlrev_b32 v{A_KVADDR}, 4, v{V_LANE}")
    a(f"v_add_u32 v{A_KVADDR}, s75, v{A_KVADDR}")
    for i in range(8):
        t = i - 1
        if i == 1:
            a.label("L_att_entry")
        for r in range(2):
            if r == 1:
                a("s_waitcnt lgkmcnt(0)")
            attn_step(a, t & 1 if t >= 0 else 1, r, 'K' if r == 0 else 'V', i*4096)
    a(f"s_add_u32 s{S_CNT}, s{S_CNT}, 1")
    a(f"s_cmp_lt_u32 s{S_CNT}, 8")
    a("s_cbranch_scc1 L_att_loop_pre")
    a("s_branch L_att_tail")
    a.label("L_att_loop_pre")
    a(f"s_cmp_ge_u32 s{S_CNT}, 7")
    a("s_cbranch_scc0 L_att_loop")
    a("s_waitcnt vmcnt(0)")
    a("s_branch L_att_loop")
    a.label("L_att_tail")
    attn_step(a, 1, 0, None, 0)
    a("s_waitcnt lgkmcnt(0)")
    attn_step(a, 1, 1, None, 0, do_qk=False)
    a("s_nop 1")
    Vp = A_V[1]; Pp = A_P[1]
    a(f"v_mfma_f32_32x32x16_bf16 {vr(A_O[1],16)}, {vr(Vp,4)}, {vr(Pp,4)}, {vr(A_O[1],16)}")
    a(f"v_mfma_f32_32x32x16_bf16 {vr(A_O[1],16)}, {vr(Vp+4,4)}, {vr(Pp+4,4)}, {vr(A_O[1],16)}")
    a(f"v_smfmac_f32_16x16x64_bf16 {vr(A_L[1],4)}, {vr(A_SEL,4)}, {vr(Pp,8)}, v{A_IDX}")
    stamp(a, 3)
    a.nop(16)
    a(f"v_lshlrev_b32 v{A_T+2}, 4, v{V_LANE}")
    for r in range(2):
        a(f"v_add_f32 v{A_T}, v{A_L[r]}, v{A_L[r]+1}")
        a(f"v_rcp_f32 v{A_T+1}, v{A_T}")
        a("s_nop 0")
        for i in range(16):
            a(f"v_mul_f32 v{A_O[r]+i}, v{A_T+1}, v{A_O[r]+i}")
        for d in range(8):
            a(f"v_cvt_pk_bf16_f32 v{A_S[r]+d}, v{A_O[r]+2*d}, v{A_O[r]+2*d+1}")
        a(f"buffer_store_dwordx4 {vr(A_S[r],4)}, v{A_T+2}, s[{S_WSSRD}:{S_WSSRD+3}], s61 offen offset:{2048*r}")
        a(f"buffer_store_dwordx4 {vr(A_S[r]+4,4)}, v{A_T+2}, s[{S_WSSRD}:{S_WSSRD+3}], s61 offen offset:{2048*r+1024}")
    a("s_waitcnt vmcnt(0)")
    stamp(a, 4); stamp(a, 11, True)
    stamp_flush(a, 1, 8, S_W, V_LANE)
    a.label("L_main_end")
    a("s_endpgm")
    return name, NVGPR, LDS_MAIN

def o_epilogue(a, out_srd, rowoff_sgpr):
    a.nop(12)
    t = G_TMP
    lane = V_LANE
    a(f"v_and_b32 v{t}, 31, v{lane}")
    a(f"v_lshlrev_b32 v{t}, 12, v{t}")
    a(f"v_lshrrev_b32 v{t+1}, 5, v{lane}")
    a(f"v_lshl_add_u32 v{t}, v{t+1}, 4, v{t}")
    for hd in range(2):
        for d in range(8):
            a(f"v_cvt_pk_bf16_f32 v{G_AF+8*hd+d}, v{G_ACC+16*hd+2*d}, v{G_ACC+16*hd+2*d+1}")
    a("s_nop 1")
    for hd in range(2):
        for qd in range(2):
            b = G_AF + 8*hd + 4*qd
            a(f"v_permlane32_swap_b32 v{b}, v{b+2}")
            a(f"v_permlane32_swap_b32 v{b+1}, v{b+3}")
    a("s_nop 1")
    for hd in range(2):
        for qd in range(2):
            b = G_AF + 8*hd + 4*qd
            a(f"buffer_store_dwordx4 {vr(b,4)}, v{t}, s[{out_srd}:{out_srd+3}], s{rowoff_sgpr} offen offset:{hd*64 + qd*32}")

def gen_oproj(a):
    name = "oproj_kernel"
    a(f".globl {name}\n.p2align 8\n.type {name},@function")
    a.label(name)
    a("s_cmp_ge_u32 s2, 256")
    a("s_cbranch_scc1 L_op_end")
    a("s_and_b32 s4, s2, 7")
    a("s_lshr_b32 s5, s2, 3")
    a("s_lshr_b32 s3, s4, 2")
    a("s_and_b32 s4, s4, 3")
    a("s_lshl_b32 s4, s4, 2")
    a("s_lshr_b32 s6, s5, 3")
    a("s_add_u32 s4, s4, s6")
    a("s_and_b32 s5, s5, 7")
    load_args(a, 3)
    a("v_lshrrev_b32 v1, 6, v0")
    a(f"v_and_b32 v{V_LANE}, 63, v0")
    a(f"v_readfirstlane_b32 s{S_W}, v1")
    srd(a, S_XSRD, 52, 16 << 20)
    srd(a, S_WSSRD, 52, 16 << 20)
    stamp_init(a); stamp(a, 0); stamp(a, 10, True)
    srd(a, S_WSRD, 48, 2 << 20)
    srd(a, 76, 50, 8 << 20)
    a(f"s_lshl_b32 s65, s3, 22")
    a(f"s_lshl_b32 s7, s4, 18")
    a(f"s_add_u32 s65, s65, s7")
    a(f"s_add_u32 s65, s65, {WS_O}")
    if OPT.get("pf","0") == "1":
        a(f"s_cmp_lt_u32 s{S_W}, 8")
        a(f"s_cbranch_scc1 L_op_nopf")
        a(f"s_lshl_b32 s62, s5, 8")
        a(f"s_and_b32 s63, s4, 3")
        prefetch_wave(a, S_XSRD, S_WSRD, None, 62, 63, 5, do_x=False, xo_base_sgpr=65)
        a.label("L_op_nopf")
    a(f"s_lshl_b32 s{S_T1}, s5, 8")
    gemm_setup(a, 'o')
    a(f"v_add_u32 v{G_XOFF}, s65, v{G_XOFF}")
    if OPT.get("rot","1") == "1":
        a("s_and_b32 s60, s4, 3")
        a("s_lshl_b32 s60, s60, 2")
        a("s_lshl_b32 s62, s5, 1")
        a("s_add_u32 s60, s60, s62")
        a("s_and_b32 s60, s60, 15")
    else:
        a("s_mov_b32 s60, 0")
    a(f"s_lshl_b32 s{S_WSOFF}, s60, 17")
    a(f"s_lshl_b32 s{S_XSOFF}, s60, 12")
    gemm_loop(a, 'o', "o")
    a(f"s_lshl_b32 s7, s4, 7")
    a(f"s_and_b32 s60, s{S_W}, 3")
    a(f"s_lshl_b32 s60, s60, 5")
    a(f"s_add_u32 s7, s7, s60")
    a(f"s_lshl_b32 s7, s7, 12")
    a(f"s_lshl_b32 s60, s3, 11")
    a(f"s_add_u32 s7, s7, s60")
    a(f"s_lshl_b32 s60, s5, 8")
    a(f"s_add_u32 s7, s7, s60")
    a(f"s_lshr_b32 s60, s{S_W}, 2")
    a(f"s_lshl_b32 s60, s60, 7")
    a(f"s_add_u32 s7, s7, s60")
    stamp(a, 1)
    o_epilogue(a, 76, 7)
    a("s_waitcnt vmcnt(0)")
    stamp(a, 2); stamp(a, 11, True)
    stamp_flush(a, 2, 8, S_W, V_LANE)
    a.label("L_op_end")
    a("s_endpgm")
    return name, NVGPR, 131072

def main(out_path):
    ref = open("cdna_kernels/" + NAME + ".s.ref").read().split("\n")
    header = [l for l in ref if l.startswith(";") and "@launch" not in l and "Override" not in l and "grid=ceil" not in l]
    a = Asm()
    ks = []
    ks.append(gen_kv(a) + (256, 512))
    nb = 576 if OPT.get("pf","0") == "1" else 512
    ks.append(gen_main(a) + (256, nb))
    ks.append(gen_oproj(a) + (256, nb))
    txt = "\n".join(header) + "\n"
    for (name, vg, lds, grid, block) in ks:
        txt += f"; @launch kernel={name} grid=({grid},1,1) block=({block},1,1) lds={lds}\n"
    txt += '.amdgcn_target "amdgcn-amd-amdhsa--gfx950"\n.text\n'
    txt += a.text()
    txt += '.section .rodata,"a"\n'
    for (name, vg, lds, grid, block) in ks:
        txt += ".p2align 6\n" + kernel_desc(name, vg)
    open(out_path, "w").write(txt)

if __name__ == "__main__":
    if "--prof" in sys.argv:
        PROF = True
        sys.argv.remove("--prof")
    main(sys.argv[1] if len(sys.argv) > 1 else "cdna_kernels/" + NAME + ".s")
```

```python
import sys, math, os, struct
sys.path.insert(0, __file__.rsplit("/", 1)[0])
from asmlib import *

NAME = "concat_heads__grouped_kv_mqa__grouped_kv_mqa__prompt"
KNAME = NAME + "_kernel"
WS_KV = 0
WS_O = 1 << 20
WS_FLAG = 10 << 20
WS_SIZE = 268435456
CSCALE = math.log2(math.e) / math.sqrt(32.0)
def fbits(x): return "0x%08x" % struct.unpack("<I", struct.pack("<f", x))[0]
OPT = dict(kv.split("=") for kv in os.environ.get("GENOPT", "").split(",") if "=" in kv)
def opt(k, d): return OPT.get(k, d)

WRING = 0
XRING = 65536
KVR = [131072, 65536, 98304]
PART = 131072
LDS_MAIN = 163840
NVGPR = 168

PROF = False
WS_PROF = 12 << 20
V_PROF = 167
S_WSSRD = 56
def stamp(a, idx):
    if not PROF: return
    a("s_memtime s[92:93]")
    a("s_memrealtime s[94:95]")
    a("s_waitcnt lgkmcnt(0)")
    a(f"v_writelane_b32 v{V_PROF}, s92, {idx}")
    a(f"v_writelane_b32 v{V_PROF}, s94, {idx+32}")
def stamp_init(a):
    if not PROF: return
    a(f"v_mov_b32 v{V_PROF}, 0")
def stamp_flush(a):
    if not PROF: return
    a(f"s_lshl_b32 s96, s2, 3")
    a(f"s_add_u32 s96, s96, s6")
    a(f"s_lshl_b32 s96, s96, 8")
    a(f"s_add_u32 s96, s96, {WS_PROF + (1<<20)}")
    a(f"v_lshlrev_b32 v{V_PROF-1}, 2, v{V_LANE}")
    a(f"buffer_store_dword v{V_PROF}, v{V_PROF-1}, s[{S_WSSRD}:{S_WSSRD+3}], s96 offen")
    a("s_waitcnt vmcnt(0)")

V_DBG = 0
A_KVADDR = 1
V_LANE = 2
V_KVOFF = 3
G_WOFF = 4
G_XOFF = 6
A_SEL = 8
A_IDX = 12
G_AADDR = 13
V_TMP = 15
A_Q = [16, 24]
A_O = [32, 48]
A_L = [64, 68]
A_S = [72, 88]
A_P = [104, 112]
A_K = [120, 128]
A_V = [136, 144]
A_T = 152
G_ACC = 32
G_AF = 72
G_BF = 104
G_BADDR = 120
G_TMP = 124
S_XSRD = 8
S_WSRD = 12
S_DBG = 36
S_W = 6
S_M0W = 63
S_M0X = 64
S_WSOFF = 66
S_XSOFF = 67
S_CNT = 69
S_T0 = 70
S_T1 = 71
S_KVSOFF = 73
S_OUTSRD = 84
S_KWSRD = 88
S_OOFF = 61
V_SNAP = 162
V_FADDR = 163
XFLAG = "nt" if opt("xnt", "1") == "1" else ""

def load_args(a, p_sgpr):
    a("s_load_dwordx16 s[16:31], s[0:1], 0")
    a("s_load_dwordx4 s[32:35], s[0:1], 64")
    a("s_load_dwordx2 s[50:51], s[0:1], 80")
    a(f"s_load_dwordx2 s[{S_DBG}:{S_DBG+1}], s[0:1], 88")
    a("s_load_dwordx2 s[52:53], s[0:1], 96")
    a("s_waitcnt lgkmcnt(0)")
    a(f"s_cmp_eq_u32 s{p_sgpr}, 0")
    for i in range(5):
        for h in range(2):
            a(f"s_cselect_b32 s{40+2*i+h}, s{16+2*i+h}, s{26+2*i+h}")

def gemm_setup_w(a):
    lane = V_LANE
    t0, t1, t2 = G_TMP, G_TMP+1, G_TMP+2
    a(f"v_lshrrev_b32 v{t0}, 4, v{lane}")
    a(f"v_bfe_u32 v{t1}, v{lane}, 2, 2")
    a(f"v_xor_b32 v{t1}, v{t1}, v{t0}")
    a(f"v_lshlrev_b32 v{t1}, 6, v{t1}")
    a(f"v_lshl_add_u32 v{t1}, v{t0}, 11, v{t1}")
    a(f"v_and_b32 v{t2}, 3, v{lane}")
    a(f"v_lshl_add_u32 v{t1}, v{t2}, 4, v{t1}")
    a(f"s_lshl_b32 s{S_T0}, s{S_W}, 14")
    a(f"s_lshl_b32 s{S_T1}, s5, 8")
    a(f"s_add_u32 s{S_T0}, s{S_T0}, s{S_T1}")
    a(f"v_add_u32 v{G_WOFF}, s{S_T0}, v{t1}")
    a(f"v_add_u32 v{G_WOFF+1}, {4*2048-1024}, v{G_WOFF}")
    a(f"s_lshl_b32 s{S_M0W}, s{S_W}, 11")
    if WRING: a(f"s_add_u32 s{S_M0W}, s{S_M0W}, {WRING}")
    a(f"s_lshl_b32 s{S_M0X}, s{S_W}, 11")
    a(f"s_add_u32 s{S_M0X}, s{S_M0X}, {XRING}")

def gemm_setup_mode(a, mode):
    lane = V_LANE
    t0, t1, t2, t3 = G_TMP, G_TMP+1, G_TMP+2, G_TMP+3
    a(f"v_bfe_u32 v{t0}, v{lane}, 2, 2")
    a(f"v_lshrrev_b32 v{t1}, 5, v{lane}")
    a(f"v_lshl_add_u32 v{t1}, v{t1}, {3 if mode=='q' else 2}, v{t0}")
    a(f"v_lshlrev_b32 v{t1}, 8, v{t1}")
    a(f"v_bfe_u32 v{t2}, v{lane}, 4, 1")
    a(f"v_lshl_add_u32 v{t1}, v{t2}, 5, v{t1}")
    a(f"v_and_b32 v{t2}, 3, v{lane}")
    a(f"v_lshl_add_u32 v{t1}, v{t2}, 3, v{t1}")
    a(f"s_lshr_b32 s{S_T0}, s{S_W}, 2")
    a(f"s_lshl_b32 s{S_T0}, s{S_T0}, 1")
    for hd in range(2):
        a(f"s_add_u32 s{S_CNT}, s{S_T0}, {hd}")
        a(f"v_xor_b32 v{t2}, s{S_CNT}, v{t0}")
        a(f"v_lshl_add_u32 v{G_AADDR+hd}, v{t2}, 6, v{t1}")
        if WRING: a(f"v_add_u32 v{G_AADDR+hd}, {WRING}, v{G_AADDR+hd}")
    if mode == 'q':
        a(f"s_and_b32 s{S_T0}, s{S_W}, 3")
        a(f"s_lshl_b32 s{S_T0}, s{S_T0}, 5")
        a(f"v_and_b32 v{t0}, 31, v{lane}")
        a(f"v_add_u32 v{t0}, s{S_T0}, v{t0}")
        a(f"v_bfe_u32 v{t1}, v{t0}, 1, 3")
        a(f"v_lshrrev_b32 v{t2}, 5, v{lane}")
        a(f"v_lshlrev_b32 v{t0}, 7, v{t0}")
        a(f"v_add_u32 v{t0}, {XRING}, v{t0}")
        for j in range(4):
            a(f"v_or_b32 v{t3}, {2*j}, v{t2}")
            a(f"v_xor_b32 v{t3}, v{t3}, v{t1}")
            a(f"v_lshl_add_u32 v{G_BADDR+j}, v{t3}, 4, v{t0}")
        a(f"v_lshrrev_b32 v{t0}, 3, v{lane}")
        a(f"s_lshl_b32 s{S_T0}, s{S_W}, 4")
        a(f"s_add_u32 s{S_T0}, s{S_T0}, s7")
        a(f"v_add_u32 v{t0}, s{S_T0}, v{t0}")
        a(f"v_lshlrev_b32 v{t0}, 11, v{t0}")
        a(f"v_and_b32 v{t1}, 7, v{lane}")
        a(f"v_lshrrev_b32 v{t2}, 4, v{lane}")
        a(f"v_xor_b32 v{t1}, v{t1}, v{t2}")
        a(f"v_lshl_add_u32 v{G_XOFF}, v{t1}, 4, v{t0}")
        a(f"v_xor_b32 v{t1}, 4, v{t1}")
        a(f"v_lshl_add_u32 v{G_XOFF+1}, v{t1}, 4, v{t0}")
        a(f"v_add_u32 v{G_XOFF+1}, {8*2048-1024}, v{G_XOFF+1}")
    else:
        a(f"s_and_b32 s{S_T0}, s{S_W}, 3")
        a(f"s_lshl_b32 s{S_T0}, s{S_T0}, 12")
        a(f"s_add_u32 s{S_T0}, s{S_T0}, {XRING}")
        a(f"v_lshlrev_b32 v{t0}, 4, v{lane}")
        a(f"v_add_u32 v{G_BADDR}, s{S_T0}, v{t0}")
        a(f"s_lshr_b32 s{S_T0}, s{S_W}, 1")
        a(f"s_lshl_b32 s{S_T0}, s{S_T0}, 16")
        a(f"s_and_b32 s{S_CNT}, s{S_W}, 1")
        a(f"s_lshl_b32 s{S_CNT}, s{S_CNT}, 11")
        a(f"s_add_u32 s{S_T0}, s{S_T0}, s{S_CNT}")
        a(f"s_lshl_b32 s{S_CNT}, s3, 22")
        a(f"s_add_u32 s{S_T0}, s{S_T0}, s{S_CNT}")
        a(f"s_lshl_b32 s{S_CNT}, s4, 18")
        a(f"s_add_u32 s{S_T0}, s{S_T0}, s{S_CNT}")
        a(f"s_add_u32 s{S_T0}, s{S_T0}, {WS_O}")
        a(f"v_add_u32 v{G_XOFF}, s{S_T0}, v{t0}")

def dma_w(a, slot, k):
    if k == 0:
        a(f"s_add_u32 m0, s{S_M0W}, {slot*16384}")
        a("s_nop 0")
        a(f"buffer_load_dwordx4 v{G_WOFF}, s[{S_WSRD}:{S_WSRD+3}], s{S_WSOFF} offen lds")
    else:
        a(f"buffer_load_dwordx4 v{G_WOFF+1}, s[{S_WSRD}:{S_WSRD+3}], s{S_WSOFF} offen offset:1024 lds")
        a(f"s_add_u32 s{S_WSOFF}, s{S_WSOFF}, {64*2048}")
        a(f"s_and_b32 s{S_WSOFF}, s{S_WSOFF}, 0x1fffff")
def dma_x(a, mode, slot, k):
    fl = XFLAG if mode == 'q' else "sc1"
    if k == 0:
        a(f"s_add_u32 m0, s{S_M0X}, {slot*16384}")
        a("s_nop 0")
        a(f"buffer_load_dwordx4 v{G_XOFF}, s[{S_XSRD}:{S_XSRD+3}], s{S_XSOFF} offen {fl} lds")
    else:
        x1 = G_XOFF + 1 if mode == 'q' else G_XOFF
        a(f"buffer_load_dwordx4 v{x1}, s[{S_XSRD}:{S_XSRD+3}], s{S_XSOFF} offen offset:1024 {fl} lds")
        a(f"s_add_u32 s{S_XSOFF}, s{S_XSOFF}, {128 if mode == 'q' else 4096}")
        a(f"s_and_b32 s{S_XSOFF}, s{S_XSOFF}, {2047 if mode == 'q' else 65535}")
def gemm_dma_piece(a, mode, slot, k):
    if k < 2: dma_w(a, slot, k)
    else: dma_x(a, mode, slot, k - 2)
def gemm_dma(a, mode, slot):
    for k in range(4): gemm_dma_piece(a, mode, slot, k)

def gemm_reads(a, mode, slot, j):
    af = G_AF + 8*j
    bf = G_BF + 4*j
    second = 1024 if mode == 'q' else 2048
    if mode == 'q':
        a(f"ds_read_b128 {vr(bf,4)}, v{G_BADDR+j} offset:{slot*16384}")
    else:
        a(f"ds_read_b128 {vr(bf,4)}, v{G_BADDR} offset:{slot*16384 + j*1024}")
    for hd in range(2):
        a(f"ds_read_b64_tr_b16 {vr(af+4*hd,2)}, v{G_AADDR+hd} offset:{slot*16384 + j*4096}")
        a(f"ds_read_b64_tr_b16 {vr(af+4*hd+2,2)}, v{G_AADDR+hd} offset:{slot*16384 + j*4096 + second}")

S_FLAG = 65
def gemm_chunk(a, mode, slot, dma, wait_vm, barrier, next_reads, hook=None, alt=False, prebar=None):
    if alt:
        lab = a.newlabel("altw")
        a(f"s_waitcnt vmcnt({wait_vm+1})")
        a(f"s_cmp_eq_u32 s{S_FLAG}, 0")
        a(f"s_cbranch_scc0 {lab}")
        a(f"s_waitcnt vmcnt({wait_vm})")
        a.label(lab)
    elif wait_vm is not None:
        a(f"s_waitcnt vmcnt({wait_vm})")
    if prebar: prebar()
    if barrier:
        a("s_barrier")
    if hook: hook()
    for j in range(4):
        if j < 2:
            gemm_reads(a, mode, slot, j + 2)
            a("s_waitcnt lgkmcnt(10)")
        elif next_reads:
            gemm_reads(a, mode, (slot + 1) & 3, j - 2)
            a("s_waitcnt lgkmcnt(10)")
        else:
            a(f"s_waitcnt lgkmcnt({5 if j == 2 else 0})")
        af = G_AF + 8*j; bf = G_BF + 4*j
        for hd in range(2):
            acc = G_ACC + 16*hd
            a(f"v_mfma_f32_32x32x16_bf16 {vr(acc,16)}, {vr(af+4*hd,4)}, {vr(bf,4)}, {vr(acc,16)}")
        if dma:
            gemm_dma_piece(a, mode, (slot + 3) & 3, j)

def gemm_loop(a, mode, tag, first_wait, pre_loop_wait=None, iter_hook=None, hook13=None, hook14=None, pre14=None):
    for i in range(32):
        a(f"v_mov_b32 v{G_ACC+i}, 0")
    a(f"s_waitcnt vmcnt({first_wait})")
    a("s_barrier")
    gemm_reads(a, mode, 0, 0)
    gemm_reads(a, mode, 0, 1)
    if pre_loop_wait is not None:
        a(f"s_waitcnt vmcnt({pre_loop_wait})")
    a(f"s_mov_b32 s{S_CNT}, 3")
    a(".p2align 6")
    a.label(f"L_{tag}_loop")
    for r in range(4):
        gemm_chunk(a, mode, r, True, 4, True, True, alt=(mode == 'q' and r < 2))
    if iter_hook: iter_hook()
    if PROF:
        base = 14 if mode == 'q' else 18
        a("s_memrealtime s[94:95]")
        a(f"s_sub_u32 s96, {base + 32}, s{S_CNT}")
        a("s_waitcnt lgkmcnt(0)")
        a("s_nop 4")
        a(f"v_writelane_b32 v{V_PROF}, s94, s96")
    a(f"s_sub_u32 s{S_CNT}, s{S_CNT}, 1")
    a(f"s_cmp_lg_u32 s{S_CNT}, 0")
    a(f"s_cbranch_scc1 L_{tag}_loop")
    gemm_chunk(a, mode, 0, True, 4, True, True)
    gemm_chunk(a, mode, 1, False, 4, True, True, hook=hook13)
    gemm_chunk(a, mode, 2, False, 0, True, True, hook=hook14, prebar=pre14)
    gemm_chunk(a, mode, 3, False, None, False, False)

def atomic_inc(a, off_vgpr_or_none, imm=0, off_sgpr=None):
    a("s_mov_b64 exec, 1")
    if off_sgpr is not None:
        a(f"v_mov_b32 v{A_T+12}, s{off_sgpr}")
        addr = A_T + 12
    else:
        addr = off_vgpr_or_none
    a(f"v_mov_b32 v{A_T+13}, 1")
    a(f"global_atomic_add v{addr}, v{A_T+13}, s[{S_DBG}:{S_DBG+1}] offset:{imm} {opt('atf','')}")
    a("s_mov_b64 exec, -1")

def poll_until(a, addr_vgpr, imm, target, tag, first_loaded=False):
    lo = a.newlabel(tag + "_poll"); done = a.newlabel(tag + "_ok")
    a("s_mov_b32 s62, 0x200000")
    if first_loaded:
        a(f"v_readfirstlane_b32 s60, v{V_TMP}")
        a("s_nop 3")
        a(f"s_cmp_ge_u32 s60, {target}")
        a(f"s_cbranch_scc1 {done}")
    a.label(lo)
    a(f"global_load_dword v{V_TMP}, v{addr_vgpr}, s[{S_DBG}:{S_DBG+1}] offset:{imm} sc1")
    a("s_waitcnt vmcnt(0)")
    a(f"v_readfirstlane_b32 s60, v{V_TMP}")
    a("s_nop 3")
    a(f"s_cmp_ge_u32 s60, {target}")
    a(f"s_cbranch_scc1 {done}")
    a(f"s_sleep {opt('sleep','2')}")
    a("s_sub_u32 s62, s62, 1")
    a("s_cmp_lg_u32 s62, 0")
    a(f"s_cbranch_scc1 {lo}")
    a.label(done)

def attn_step(a, t, r, read, off, do_qk=True):
    S = A_S[r]; Sn = A_S[r ^ 1]
    P = A_P[r]; Pp = A_P[r ^ 1]
    tn = t if r == 0 else t + 1
    Kn = A_K[tn & 1]; Qn = A_Q[r ^ 1]
    tp = t - 1 if r == 0 else t
    Vp = A_V[tp & 1]; Op = A_O[r ^ 1]; Lp = A_L[r ^ 1]
    E = lambda i: a(f"v_exp_f32 v{S+i}, v{S+i}")
    C = lambda i: a(f"v_cvt_pk_bf16_f32 v{P+i//2}, v{S+i}, v{S+i+1}")
    def RD(i):
        if read == 'K': a(f"ds_read_b128 {vr(A_K[(t+1)&1]+4*i,4)}, v{A_KVADDR} offset:{off+1024*i}")
        if read == 'V': a(f"ds_read_b128 {vr(A_V[(t+1)&1]+4*i,4)}, v{A_KVADDR} offset:{off+2048+1024*i}")
    if do_qk: a(f"v_mfma_f32_32x32x16_bf16 {vr(Sn,16)}, {vr(Kn,4)}, {vr(Qn,4)}, 0")
    RD(0)
    E(0); E(1); E(2); E(3)
    if do_qk: a(f"v_mfma_f32_32x32x16_bf16 {vr(Sn,16)}, {vr(Kn+4,4)}, {vr(Qn+4,4)}, {vr(Sn,16)}")
    RD(1)
    E(4); E(5); E(6); C(0); C(2)
    a(f"v_mfma_f32_32x32x16_bf16 {vr(Op,16)}, {vr(Vp,4)}, {vr(Pp,4)}, {vr(Op,16)}")
    E(7); E(8); E(9); C(4); C(6)
    a(f"v_mfma_f32_32x32x16_bf16 {vr(Op,16)}, {vr(Vp+4,4)}, {vr(Pp+4,4)}, {vr(Op,16)}")
    E(10); E(11); E(12); C(8); C(10)
    a(f"v_smfmac_f32_16x16x64_bf16 {vr(Lp,4)}, {vr(A_SEL,4)}, {vr(Pp,8)}, v{A_IDX}")
    E(13); E(14); E(15); C(12); C(14)

def kv_dma(a, m0_sgpr):
    a(f"s_mov_b32 m0, s{m0_sgpr}")
    a("s_nop 0")
    for j in range(4):
        a(f"buffer_load_dwordx4 v{V_KVOFF}, s[{S_WSSRD}:{S_WSSRD+3}], s{S_KVSOFF} offen offset:{1024*j} sc1 lds")
    a(f"s_add_u32 s{S_KVSOFF}, s{S_KVSOFF}, 32768")

def slow_path(a, r):
    Q = A_Q[r]; O = A_O[r]; L = A_L[r]
    S = A_S[0]; NM = A_S[1]; P = A_P[0]; K = A_K[0]; V = A_V[0]
    M = A_T + 4; ADDR = A_T + 5
    l1 = a.newlabel("slow1"); l2 = a.newlabel("slow2")
    a(f"v_lshlrev_b32 v{ADDR}, 4, v{V_LANE}")
    a(f"s_lshl_b32 s60, s3, 18")
    if WS_KV: a(f"s_add_u32 s60, s60, {WS_KV}")
    a(f"s_mov_b32 s62, 64")
    a(f"v_mov_b32 v{M}, 0xff800000")
    a.label(l1)
    a(f"buffer_load_dwordx4 {vr(K,4)}, v{ADDR}, s[{S_WSSRD}:{S_WSSRD+3}], s60 offen sc1")
    a(f"buffer_load_dwordx4 {vr(K+4,4)}, v{ADDR}, s[{S_WSSRD}:{S_WSSRD+3}], s60 offen offset:1024 sc1")
    a("s_waitcnt vmcnt(0)")
    a(f"v_mfma_f32_32x32x16_bf16 {vr(S,16)}, {vr(K,4)}, {vr(Q,4)}, 0")
    a(f"v_mfma_f32_32x32x16_bf16 {vr(S,16)}, {vr(K+4,4)}, {vr(Q+4,4)}, {vr(S,16)}")
    a.nop(16)
    for i in range(8):
        a(f"v_max3_f32 v{M}, v{S+2*i}, v{S+2*i+1}, v{M}")
    a("s_add_u32 s60, s60, 4096")
    a("s_sub_u32 s62, s62, 1")
    a("s_cmp_lg_u32 s62, 0")
    a(f"s_cbranch_scc1 {l1}")
    a(f"v_mov_b32 v{M+2}, v{M}")
    a("s_nop 1")
    a(f"v_permlane32_swap_b32 v{M+2}, v{M}")
    a("s_nop 1")
    a(f"v_max_f32 v{M}, v{M}, v{M+2}")
    a(f"v_sub_f32 v{M}, 0, v{M}")
    for i in range(16): a(f"v_mov_b32 v{NM+i}, v{M}")
    for i in range(16): a(f"v_mov_b32 v{O+i}, 0")
    for i in range(4): a(f"v_mov_b32 v{L+i}, 0")
    a(f"s_lshl_b32 s60, s3, 18")
    if WS_KV: a(f"s_add_u32 s60, s60, {WS_KV}")
    a(f"s_mov_b32 s62, 64")
    a.label(l2)
    a(f"buffer_load_dwordx4 {vr(K,4)}, v{ADDR}, s[{S_WSSRD}:{S_WSSRD+3}], s60 offen sc1")
    a(f"buffer_load_dwordx4 {vr(K+4,4)}, v{ADDR}, s[{S_WSSRD}:{S_WSSRD+3}], s60 offen offset:1024 sc1")
    a(f"buffer_load_dwordx4 {vr(V,4)}, v{ADDR}, s[{S_WSSRD}:{S_WSSRD+3}], s60 offen offset:2048 sc1")
    a(f"buffer_load_dwordx4 {vr(V+4,4)}, v{ADDR}, s[{S_WSSRD}:{S_WSSRD+3}], s60 offen offset:3072 sc1")
    a("s_waitcnt vmcnt(0)")
    a(f"v_mfma_f32_32x32x16_bf16 {vr(S,16)}, {vr(K,4)}, {vr(Q,4)}, {vr(NM,16)}")
    a(f"v_mfma_f32_32x32x16_bf16 {vr(S,16)}, {vr(K+4,4)}, {vr(Q+4,4)}, {vr(S,16)}")
    a.nop(16)
    for i in range(16): a(f"v_exp_f32 v{S+i}, v{S+i}")
    a("s_nop 1")
    for i in range(8): a(f"v_cvt_pk_bf16_f32 v{P+i}, v{S+2*i}, v{S+2*i+1}")
    a("s_nop 2")
    a(f"v_mfma_f32_32x32x16_bf16 {vr(O,16)}, {vr(V,4)}, {vr(P,4)}, {vr(O,16)}")
    a(f"v_mfma_f32_32x32x16_bf16 {vr(O,16)}, {vr(V+4,4)}, {vr(P+4,4)}, {vr(O,16)}")
    a(f"v_smfmac_f32_16x16x64_bf16 {vr(L,4)}, {vr(A_SEL,4)}, {vr(P,8)}, v{A_IDX}")
    a.nop(16)
    a("s_add_u32 s60, s60, 4096")
    a("s_sub_u32 s62, s62, 1")
    a("s_cmp_lg_u32 s62, 0")
    a(f"s_cbranch_scc1 {l2}")

def gen_main(a):
    name = KNAME
    a(f".globl {name}\n.p2align 8\n.type {name},@function")
    a.label(name)
    a("s_cmp_ge_u32 s2, 256")
    a("s_cbranch_scc1 L_end")
    a("s_and_b32 s4, s2, 7")
    a("s_lshr_b32 s5, s2, 3")
    a("s_lshr_b32 s3, s4, 2")
    a("s_and_b32 s4, s4, 3")
    a("s_lshl_b32 s4, s4, 2")
    a("s_lshr_b32 s6, s5, 3")
    a("s_add_u32 s4, s4, s6")
    a("s_and_b32 s5, s5, 7")
    load_args(a, 3)
    a("v_lshrrev_b32 v1, 6, v0")
    a(f"v_and_b32 v{V_LANE}, 63, v0")
    a(f"v_readfirstlane_b32 s{S_W}, v1")
    srd(a, S_WSSRD, 52, WS_SIZE)
    srd(a, S_XSRD, 40, 4 << 20)
    srd(a, S_WSRD, 42, 2 << 20)
    a("s_and_b32 s60, s5, 1")
    a("s_cmp_eq_u32 s60, 0")
    a("s_cselect_b32 s54, s44, s46")
    a("s_cselect_b32 s55, s45, s47")
    srd(a, S_KWSRD, 54, 65536)
    srd(a, S_OUTSRD, 50, 8 << 20)
    a("s_lshl_b32 s7, s4, 7")
    stamp_init(a); stamp(a, 0)
    a("s_lshl_b32 s60, s3, 4")
    a("s_add_u32 s60, s60, s4")
    a("s_lshl_b32 s60, s60, 10")
    a(f"s_add_u32 s60, s60, {WS_FLAG}")
    a(f"v_and_b32 v{V_FADDR}, 7, v{V_LANE}")
    a(f"v_lshlrev_b32 v{V_FADDR}, 7, v{V_FADDR}")
    a(f"v_add_u32 v{V_FADDR}, s60, v{V_FADDR}")
    a(f"s_cmp_eq_u32 s{S_W}, 0")
    a("s_cbranch_scc0 L_nosnap")
    a(f"buffer_load_dword v{V_SNAP}, v{V_FADDR}, s[{S_WSSRD}:{S_WSSRD+3}], 0 offen sc1")
    a.label("L_nosnap")
    KX = 32; KACC = 64; KW = 80
    a("s_lshr_b32 s60, s5, 1")
    a("s_lshl_b32 s60, s60, 5")
    a("s_add_u32 s60, s60, s7")
    a(f"v_and_b32 v20, 31, v{V_LANE}")
    a(f"v_lshrrev_b32 v21, 5, v{V_LANE}")
    a("v_add_u32 v20, s60, v20")
    a("v_lshlrev_b32 v20, 11, v20")
    a(f"s_lshl_b32 s60, s{S_W}, 8")
    a("v_lshl_add_u32 v22, v21, 4, s60")
    a("v_add_u32 v20, v20, v22")
    for s in range(8):
        a(f"buffer_load_dwordx4 {vr(KX+4*s,4)}, v20, s[{S_XSRD}:{S_XSRD+3}], 0 offen offset:{32*s} {XFLAG}")
    a(f"s_lshl_b32 s60, s{S_W}, 13")
    a(f"s_add_u32 s62, s60, 32768")
    a(f"s_add_u32 s65, s60, {98304 - 32768}")
    a(f"s_cmp_lt_u32 s{S_W}, 4")
    a("s_cselect_b32 s62, s62, s65")
    a(f"v_lshlrev_b32 v23, 4, v{V_LANE}")
    a("s_mov_b32 m0, s62")
    a("v_add_u32 v24, s60, v23")
    for j in range(4):
        a(f"buffer_load_dwordx4 v24, s[{S_KWSRD}:{S_KWSRD+3}], 0 offen offset:{1024*j} lds")
    a("s_add_u32 s65, s62, 4096")
    a("s_mov_b32 m0, s65")
    a("s_movk_i32 s68, 4096")
    for j in range(4):
        a(f"buffer_load_dwordx4 v24, s[{S_KWSRD}:{S_KWSRD+3}], s68 offen offset:{1024*j} lds")
    a(f"v_bfe_u32 v25, v{V_LANE}, 2, 2")
    a("v_lshl_add_u32 v25, v21, 3, v25")
    a("v_lshlrev_b32 v25, 6, v25")
    a(f"v_bfe_u32 v26, v{V_LANE}, 4, 1")
    a("v_lshl_add_u32 v25, v26, 5, v25")
    a(f"v_and_b32 v26, 3, v{V_LANE}")
    a("v_lshl_add_u32 v25, v26, 3, v25")
    a("v_add_u32 v25, s62, v25")
    gemm_setup_w(a)
    gemm_setup_mode(a, 'q')
    a("s_and_b32 s60, s4, 3")
    a("s_lshl_b32 s60, s60, 2")
    a("s_lshl_b32 s62, s5, 1")
    a("s_add_u32 s60, s60, s62")
    a("s_and_b32 s60, s60, 15")
    if opt("rot", "1") != "1": a("s_mov_b32 s60, 0")
    a(f"s_lshl_b32 s{S_WSOFF}, s60, 17")
    a(f"s_lshl_b32 s{S_XSOFF}, s60, 7")
    gemm_dma(a, 'q', 0)
    gemm_dma(a, 'q', 1)
    a(f"v_mov_b32 v{V_DBG}, s3")
    a(f"v_lshlrev_b32 v{V_DBG}, 7, v{V_DBG}")
    for i in range(16):
        a(f"v_mov_b32 v{KACC+i}, 0")
    a("s_waitcnt vmcnt(8)")
    for s in range(8):
        a(f"ds_read_b64_tr_b16 {vr(KW+4*s,2)}, v25 offset:{1024*s}")
        a(f"ds_read_b64_tr_b16 {vr(KW+4*s+2,2)}, v25 offset:{1024*s+256}")
    a("s_and_b32 s60, s5, 1")
    a("s_cmp_eq_u32 s60, 0")
    a("s_waitcnt lgkmcnt(0)")
    a("s_cbranch_scc0 L_kv_isv")
    for s in range(8):
        a(f"v_mfma_f32_32x32x16_bf16 {vr(KACC,16)}, {vr(KW+4*s,4)}, {vr(KX+4*s,4)}, {vr(KACC,16)}")
    a("s_branch L_kv_red")
    a.label("L_kv_isv")
    for s in range(8):
        a(f"v_mfma_f32_32x32x16_bf16 {vr(KACC,16)}, {vr(KX+4*s,4)}, {vr(KW+4*s,4)}, {vr(KACC,16)}")
    a.label("L_kv_red")
    a(f"s_lshl_b32 s60, s{S_W}, 12")
    a(f"s_add_u32 s60, s60, {PART}")
    a("v_add_u32 v26, s60, v23")
    a.nop(14)
    for q in range(4):
        a(f"ds_write_b128 v26, {vr(KACC+4*q,4)} offset:{1024*q}")
    a("s_waitcnt lgkmcnt(0)")
    a("s_barrier")
    stamp(a, 1)
    a(f"s_cmp_ge_u32 s{S_W}, 2")
    a("s_cbranch_scc1 L_kv_done")
    a(f"s_lshl_b32 s60, s{S_W}, 11")
    a(f"s_add_u32 s60, s60, {PART}")
    a("v_add_u32 v26, s60, v23")
    for w in range(8):
        a(f"ds_read_b128 {vr(32+8*w,4)}, v26 offset:{4096*w}")
        a(f"ds_read_b128 {vr(36+8*w,4)}, v26 offset:{4096*w+1024}")
    a("s_waitcnt lgkmcnt(0)")
    for w in range(1, 8):
        for r in range(8):
            a(f"v_add_f32 v{32+r}, v{32+r}, v{32+8*w+r}")
    for d in range(4):
        a(f"v_cvt_pk_bf16_f32 v{16+d}, v{32+2*d}, v{33+2*d}")
    a("s_lshr_b32 s60, s5, 1")
    a("s_lshl_b32 s62, s4, 2")
    a("s_add_u32 s60, s60, s62")
    a("s_lshl_b32 s60, s60, 12")
    a("s_and_b32 s62, s5, 1")
    a("s_lshl_b32 s62, s62, 11")
    a("s_add_u32 s60, s60, s62")
    a(f"s_lshl_b32 s62, s{S_W}, 10")
    a("s_add_u32 s60, s60, s62")
    a("s_lshl_b32 s62, s3, 18")
    a("s_add_u32 s60, s60, s62")
    if WS_KV: a(f"s_add_u32 s60, s60, {WS_KV}")
    a("s_mov_b32 s68, s60")
    a.label("L_kv_done")
    gemm_dma(a, 'q', 2)
    a(f"s_mov_b32 s{S_FLAG}, 0")
    a(f"s_cmp_ge_u32 s{S_W}, 2")
    a("s_cbranch_scc1 L_kv_nostore")
    a(f"buffer_store_dwordx4 v[16:19], v23, s[{S_WSSRD}:{S_WSSRD+3}], s68 offen sc1")
    a(f"s_mov_b32 s{S_FLAG}, 1")
    a.label("L_kv_nostore")
    a(f"v_lshlrev_b32 v{V_KVOFF}, 4, v{V_LANE}")
    a(f"s_lshl_b32 s{S_T0}, s{S_W}, 12")
    a(f"v_add_u32 v{V_KVOFF}, s{S_T0}, v{V_KVOFF}")
    a(f"s_lshl_b32 s{S_KVSOFF}, s3, 18")
    if WS_KV: a(f"s_add_u32 s{S_KVSOFF}, s{S_KVSOFF}, {WS_KV}")
    def iter_hook():
        lab = a.newlabel("sig")
        a(f"s_cmp_eq_u32 s{S_CNT}, 3")
        a(f"s_cbranch_scc0 {lab}")
        a(f"s_cmp_eq_u32 s{S_W}, 0")
        a(f"s_cbranch_scc0 {lab}")
        atomic_inc(a, V_DBG)
        a.label(lab)
        a(f"s_mov_b32 s{S_FLAG}, 0")
    def hook13():
        lab = a.newlabel("p13")
        a(f"s_cmp_eq_u32 s{S_W}, 0")
        a(f"s_cbranch_scc0 {lab}")
        a(f"global_load_dword v{V_TMP}, v{V_DBG}, s[{S_DBG}:{S_DBG+1}] sc1")
        a.label(lab)
    def pre14():
        lab = a.newlabel("p14")
        a(f"s_cmp_eq_u32 s{S_W}, 0")
        a(f"s_cbranch_scc0 {lab}")
        poll_until(a, V_DBG, 0, 128, "kv", first_loaded=True)
        a.label(lab)
    def hook14():
        a(f"s_lshl_b32 s60, s{S_W}, 12")
        a(f"s_add_u32 s60, s60, {KVR[0]}")
        kv_dma(a, 60)
    gemm_loop(a, 'q', "q", first_wait=8, iter_hook=iter_hook, hook13=hook13, hook14=hook14, pre14=pre14)
    stamp(a, 2)
    a("s_barrier")
    a(f"s_lshl_b32 s{S_T0}, s{S_W}, 12")
    a(f"s_add_u32 s60, s{S_T0}, {KVR[1]}")
    kv_dma(a, 60)
    a(f"s_add_u32 s60, s{S_T0}, {KVR[2]}")
    kv_dma(a, 60)
    srd(a, S_WSRD, 48, 2 << 20)
    srd(a, S_XSRD, 52, WS_SIZE)
    a(f"s_mov_b32 s{S_T0}, {fbits(CSCALE)}")
    for i in range(32):
        a(f"v_mul_f32 v{G_ACC+i}, s{S_T0}, v{G_ACC+i}")
    for hd in range(2):
        for d in range(8):
            a(f"v_cvt_pk_bf16_f32 v{A_Q[hd]+d}, v{G_ACC+16*hd+2*d}, v{G_ACC+16*hd+2*d+1}")
    a(f"v_and_b32 v{A_T}, 6, v{V_LANE}")
    a(f"v_mov_b32 v{A_T+1}, 0x3f803f80")
    a(f"v_cmp_eq_u32 vcc, 0, v{A_T}")
    a("s_nop 1")
    a(f"v_cndmask_b32 v{A_SEL}, 0, v{A_T+1}, vcc")
    a(f"v_cndmask_b32 v{A_SEL+1}, 0, v{A_T+1}, vcc")
    a(f"v_cmp_eq_u32 vcc, 4, v{A_T}")
    a("s_nop 1")
    a(f"v_cndmask_b32 v{A_SEL+2}, 0, v{A_T+1}, vcc")
    a(f"v_cndmask_b32 v{A_SEL+3}, 0, v{A_T+1}, vcc")
    a(f"v_and_b32 v{A_T}, 1, v{V_LANE}")
    a(f"v_mov_b32 v{A_T+1}, 0x4444")
    a(f"v_mov_b32 v{A_T+2}, 0xeeee")
    a(f"v_cmp_eq_u32 vcc, 0, v{A_T}")
    a("s_nop 1")
    a(f"v_cndmask_b32 v{A_IDX}, v{A_T+2}, v{A_T+1}, vcc")
    for r in range(2):
        for i in range(16): a(f"v_mov_b32 v{A_O[r]+i}, 0")
        for i in range(4): a(f"v_mov_b32 v{A_L[r]+i}, 0")
    for i in range(8): a(f"v_mov_b32 v{A_P[1]+i}, 0")
    for i in range(8): a(f"v_mov_b32 v{A_V[1]+i}, 0")
    a(f"s_lshl_b32 s{S_OOFF}, s3, 22")
    a(f"s_add_u32 s{S_OOFF}, s{S_OOFF}, {WS_O}")
    a("s_lshl_b32 s60, s4, 2")
    a(f"s_and_b32 s62, s{S_W}, 3")
    a("s_add_u32 s60, s60, s62")
    a("s_lshl_b32 s60, s60, 16")
    a(f"s_add_u32 s{S_OOFF}, s{S_OOFF}, s60")
    a("s_lshl_b32 s60, s5, 2")
    a(f"s_lshr_b32 s62, s{S_W}, 2")
    a("s_lshl_b32 s62, s62, 1")
    a("s_add_u32 s60, s60, s62")
    a("s_lshl_b32 s60, s60, 11")
    a(f"s_add_u32 s{S_OOFF}, s{S_OOFF}, s60")
    a("s_waitcnt vmcnt(8)")
    a("s_barrier")
    a(f"v_lshlrev_b32 v{A_KVADDR}, 4, v{V_LANE}")
    a(f"v_add_u32 v{A_KVADDR}, {KVR[0]}, v{A_KVADDR}")
    for i in range(2):
        a(f"ds_read_b128 {vr(A_K[0]+4*i,4)}, v{A_KVADDR} offset:{1024*i}")
    for i in range(2):
        a(f"ds_read_b128 {vr(A_V[0]+4*i,4)}, v{A_KVADDR} offset:{2048+1024*i}")
    a("s_waitcnt lgkmcnt(0)")
    a(f"v_mfma_f32_32x32x16_bf16 {vr(A_S[0],16)}, {vr(A_K[0],4)}, {vr(A_Q[0],4)}, 0")
    a(f"v_mfma_f32_32x32x16_bf16 {vr(A_S[0],16)}, {vr(A_K[0]+4,4)}, {vr(A_Q[0]+4,4)}, {vr(A_S[0],16)}")
    a(f"s_lshl_b32 s{S_T0}, s{S_W}, 12")
    a(f"s_mov_b32 s75, {KVR[0]}")
    a(f"s_mov_b32 s76, {KVR[1]}")
    a(f"s_mov_b32 s77, {KVR[2]}")
    a(f"s_mov_b32 s{S_CNT}, 0")
    a(f"v_lshrrev_b32 v{A_T}, 1, v{V_LANE}")
    a("s_and_b32 s60, s4, 3")
    a("s_lshl_b32 s60, s60, 8")
    a(f"s_lshl_b32 s62, s{S_W}, 5")
    a("s_add_u32 s60, s60, s62")
    a(f"v_add_u32 v{A_T}, s60, v{A_T}")
    a(f"v_lshlrev_b32 v{A_T}, 11, v{A_T}")
    a(f"v_and_b32 v{A_T+1}, 1, v{V_LANE}")
    a(f"v_lshl_add_u32 v{A_T}, v{A_T+1}, 7, v{A_T}")
    a("s_lshl_b32 s60, s5, 8")
    a(f"v_add_u32 v{A_T}, s60, v{A_T}")
    a(f"s_lshl_b32 s{S_WSOFF}, s5, 18")
    a.nop(8)
    stamp(a, 3)
    a("s_branch L_att_entry")
    a(".p2align 6")
    a.label("L_att_loop")
    a("s_waitcnt vmcnt(4) lgkmcnt(0)")
    a("s_barrier")
    a(f"s_cmp_ge_u32 s{S_CNT}, 6")
    a("s_cbranch_scc1 L_att_nodma")
    a(f"s_add_u32 s60, s75, s{S_T0}")
    kv_dma(a, 60)
    a(f"s_cmp_eq_u32 s{S_CNT}, 1")
    a("s_cbranch_scc0 L_att_dmadone")
    if opt("wopf", "1") == "1":
        a(f"buffer_load_dword v{V_TMP}, v{A_T}, s[{S_WSRD}:{S_WSRD+3}], 0 offen")
    a("s_branch L_att_dmadone")
    a.label("L_att_nodma")
    a(f"s_cmp_eq_u32 s{S_CNT}, 6")
    a("s_cbranch_scc0 L_att_dmadone")
    for c in range(3):
        dma_w(a, c, 0); dma_w(a, c, 1)
    a.label("L_att_dmadone")
    a("s_mov_b32 s60, s75")
    a("s_mov_b32 s75, s76")
    a("s_mov_b32 s76, s77")
    a("s_mov_b32 s77, s60")
    a(f"v_lshlrev_b32 v{A_KVADDR}, 4, v{V_LANE}")
    a(f"v_add_u32 v{A_KVADDR}, s75, v{A_KVADDR}")
    for i in range(8):
        t = i - 1
        if i == 1:
            a.label("L_att_entry")
        for r in range(2):
            if r == 1:
                a("s_waitcnt lgkmcnt(0)")
            attn_step(a, t & 1 if t >= 0 else 1, r, 'K' if r == 0 else 'V', i*4096)
    a(f"s_add_u32 s{S_CNT}, s{S_CNT}, 1")
    a(f"s_cmp_lt_u32 s{S_CNT}, 8")
    a("s_cbranch_scc0 L_att_tail")
    a("s_branch L_att_loop")
    a.label("L_att_tail")
    attn_step(a, 1, 0, None, 0)
    a("s_waitcnt lgkmcnt(0)")
    attn_step(a, 1, 1, None, 0, do_qk=False)
    a("s_nop 1")
    Vp = A_V[1]; Pp = A_P[1]
    a(f"v_mfma_f32_32x32x16_bf16 {vr(A_O[1],16)}, {vr(Vp,4)}, {vr(Pp,4)}, {vr(A_O[1],16)}")
    a(f"v_mfma_f32_32x32x16_bf16 {vr(A_O[1],16)}, {vr(Vp+4,4)}, {vr(Pp+4,4)}, {vr(A_O[1],16)}")
    a(f"v_smfmac_f32_16x16x64_bf16 {vr(A_L[1],4)}, {vr(A_SEL,4)}, {vr(Pp,8)}, v{A_IDX}")
    stamp(a, 4)
    a.nop(16)
    a(f"s_mov_b32 s78, {fbits(2.0**-64)}")
    a(f"s_mov_b32 s79, {fbits(2.0**64)}")
    for r in range(2):
        ok = a.newlabel("rb_ok")
        a(f"v_add_f32 v{A_T}, v{A_L[r]}, v{A_L[r]+1}")
        a(f"v_mov_b32 v{A_T+3}, 0")
        for i in range(16):
            a(f"v_fma_f32 v{A_T+3}, v{A_O[r]+i}, 0, v{A_T+3}")
        a(f"v_cmp_le_f32 vcc, s78, v{A_T}")
        a(f"v_cmp_ge_f32 s[80:81], s79, v{A_T}")
        a(f"v_cmp_o_f32 s[82:83], v{A_T+3}, v{A_T+3}")
        a("s_nop 4")
        a("s_and_b64 s[80:81], s[80:81], vcc")
        a("s_and_b64 s[80:81], s[80:81], s[82:83]")
        a("s_cmp_eq_u64 s[80:81], -1")
        if opt("forceslow", "0") == "1": a("s_cmp_eq_u32 s3, 77")
        a(f"s_cbranch_scc1 {ok}")
        slow_path(a, r)
        a(f"v_add_f32 v{A_T}, v{A_L[r]}, v{A_L[r]+1}")
        a.label(ok)
        a(f"v_rcp_f32 v{A_T+1}, v{A_T}")
        a("s_nop 0")
        for i in range(16):
            a(f"v_mul_f32 v{A_O[r]+i}, v{A_T+1}, v{A_O[r]+i}")
    a(f"v_lshlrev_b32 v{A_T+2}, 4, v{V_LANE}")
    for r in range(2):
        for d in range(8):
            a(f"v_cvt_pk_bf16_f32 v{A_S[r]+d}, v{A_O[r]+2*d}, v{A_O[r]+2*d+1}")
        a(f"buffer_store_dwordx4 {vr(A_S[r],4)}, v{A_T+2}, s[{S_WSSRD}:{S_WSSRD+3}], s{S_OOFF} offen offset:{2048*r} {opt('ostf','sc1').replace('+',' ')}")
        a(f"buffer_store_dwordx4 {vr(A_S[r]+4,4)}, v{A_T+2}, s[{S_WSSRD}:{S_WSSRD+3}], s{S_OOFF} offen offset:{2048*r+1024} {opt('ostf','sc1').replace('+',' ')}")
    gemm_setup_mode(a, 'o')
    a(f"s_lshl_b32 s{S_XSOFF}, s5, 13")
    stamp(a, 9)
    a("s_waitcnt vmcnt(0)")
    stamp(a, 10)
    a("s_barrier")
    stamp(a, 5)
    a(f"s_cmp_eq_u32 s{S_W}, 0")
    a("s_cbranch_scc0 L_o_wait")
    a(f"v_add_u32 v{V_SNAP}, 1, v{V_SNAP}")
    a(f"v_cmp_eq_u32 vcc, s5, v{V_LANE}")
    a("s_nop 4")
    a("s_mov_b64 exec, vcc")
    a(f"buffer_store_dword v{V_SNAP}, v{V_FADDR}, s[{S_WSSRD}:{S_WSSRD+3}], 0 offen sc1")
    a("s_mov_b64 exec, -1")
    a("s_mov_b32 s62, 0x200000")
    a.label("L_o_poll")
    a(f"buffer_load_dword v{V_TMP}, v{V_FADDR}, s[{S_WSSRD}:{S_WSSRD+3}], 0 offen sc1")
    a("s_waitcnt vmcnt(0)")
    a(f"v_cmp_eq_u32 vcc, v{V_TMP}, v{V_SNAP}")
    a("s_nop 4")
    a("s_cmp_eq_u64 vcc, -1")
    a("s_cbranch_scc1 L_o_wait")
    a(f"s_sleep {opt('sleep','4')}")
    a("s_sub_u32 s62, s62, 1")
    a("s_cmp_lg_u32 s62, 0")
    a("s_cbranch_scc1 L_o_poll")
    a.label("L_o_wait")
    a("s_barrier")
    stamp(a, 6)
    for c in range(3):
        dma_x(a, 'o', c, 0); dma_x(a, 'o', c, 1)
    gemm_loop(a, 'o', "o", first_wait=4, pre_loop_wait=2)
    stamp(a, 7)
    a(f"s_lshl_b32 s7, s4, 7")
    a(f"s_and_b32 s60, s{S_W}, 3")
    a(f"s_lshl_b32 s60, s60, 5")
    a(f"s_add_u32 s7, s7, s60")
    a(f"s_lshl_b32 s7, s7, 12")
    a(f"s_lshl_b32 s60, s3, 11")
    a(f"s_add_u32 s7, s7, s60")
    a(f"s_lshl_b32 s60, s5, 8")
    a(f"s_add_u32 s7, s7, s60")
    a(f"s_lshr_b32 s60, s{S_W}, 2")
    a(f"s_lshl_b32 s60, s60, 7")
    a(f"s_add_u32 s7, s7, s60")
    t = G_TMP
    a(f"v_and_b32 v{t}, 31, v{V_LANE}")
    a(f"v_lshlrev_b32 v{t}, 12, v{t}")
    a(f"v_lshrrev_b32 v{t+1}, 5, v{V_LANE}")
    a(f"v_lshl_add_u32 v{t}, v{t+1}, 4, v{t}")
    a.nop(8)
    for hd in range(2):
        for d in range(8):
            a(f"v_cvt_pk_bf16_f32 v{G_AF+8*hd+d}, v{G_ACC+16*hd+2*d}, v{G_ACC+16*hd+2*d+1}")
    a("s_nop 1")
    for hd in range(2):
        for qd in range(2):
            b = G_AF + 8*hd + 4*qd
            a(f"v_permlane32_swap_b32 v{b}, v{b+2}")
            a(f"v_permlane32_swap_b32 v{b+1}, v{b+3}")
    a("s_nop 1")
    for hd in range(2):
        for qd in range(2):
            b = G_AF + 8*hd + 4*qd
            a(f"buffer_store_dwordx4 {vr(b,4)}, v{t}, s[{S_OUTSRD}:{S_OUTSRD+3}], s7 offen offset:{hd*64 + qd*32}")
    if PROF:
        a("s_waitcnt vmcnt(0)")
        stamp(a, 8)
        stamp_flush(a)
    a.label("L_end")
    a("s_endpgm")
    return name, NVGPR, LDS_MAIN

def main(out_path):
    ref = open("cdna_kernels/" + NAME + ".s.ref").read().split("\n")
    header = [l for l in ref if l.startswith(";") and "@launch" not in l and "Override" not in l and "grid=ceil" not in l]
    a = Asm()
    name, vg, lds = gen_main(a)
    txt = "\n".join(header) + "\n"
    txt += f"; @launch grid=(256,1,1) block=(512,1,1) lds={lds}\n"
    txt += '.amdgcn_target "amdgcn-amd-amdhsa--gfx950"\n.text\n'
    txt += a.text()
    txt += '.section .rodata,"a"\n'
    txt += ".p2align 6\n" + kernel_desc(name, vg)
    open(out_path, "w").write(txt)

if __name__ == "__main__":
    if "--prof" in sys.argv:
        PROF = True
        sys.argv.remove("--prof")
    main(sys.argv[1] if len(sys.argv) > 1 else "cdna_kernels/" + NAME + ".s")
```

```python
import sys, math, os, struct
sys.path.insert(0, __file__.rsplit("/", 1)[0])
from asmlib import *

NAME = "concat_heads__grouped_kv_mqa__grouped_kv_mqa__prompt"
KNAME = NAME + "_kernel"
WS_KV = 0
WS_O = 1 << 20
WS_FLAG = 10 << 20
WS_SIZE = 268435456
CSCALE = math.log2(math.e) / math.sqrt(32.0)
def fbits(x): return "0x%08x" % struct.unpack("<I", struct.pack("<f", x))[0]
OPT = dict(kv.split("=") for kv in os.environ.get("GENOPT", "").split(",") if "=" in kv)
def opt(k, d): return OPT.get(k, d)

SLOT = 32768
NSLOT = 5
XPART = 16384
KVR = [32768, 65536, 98304]
PART = 131072
XSTG = 32768
WSTG0 = 98304
LDS_MAIN = 163840
NVGPR = 168

PROF = False
WS_PROF = 12 << 20
V_PROF = 167
S_WSSRD = 56
V_LANE = 2
def stamp(a, idx):
    if not PROF: return
    a("s_memtime s[92:93]")
    a("s_memrealtime s[94:95]")
    a("s_waitcnt lgkmcnt(0)")
    a(f"v_writelane_b32 v{V_PROF}, s92, {idx}")
    a(f"v_writelane_b32 v{V_PROF}, s94, {idx+32}")
def stamp_init(a):
    if not PROF: return
    a(f"v_mov_b32 v{V_PROF}, 0")
def stamp_flush(a):
    if not PROF: return
    a(f"s_mul_i32 s96, s2, 12")
    a(f"s_add_u32 s96, s96, s6")
    a(f"s_lshl_b32 s96, s96, 8")
    a(f"s_add_u32 s96, s96, {WS_PROF + (1<<20)}")
    a(f"v_lshlrev_b32 v{V_PROF-1}, 2, v{V_LANE}")
    a(f"buffer_store_dword v{V_PROF}, v{V_PROF-1}, s[{S_WSSRD}:{S_WSSRD+3}], s96 offen")
    a("s_waitcnt vmcnt(0)")

A_KVADDR = 1
A_SEL = 8
A_IDX = 12
A_Q = [16, 24]
A_O = [32, 48]
A_L = [64, 68]
A_S = [72, 88]
A_P = [104, 112]
A_K = [120, 128]
A_V = [136, 144]
A_T = 152
G_ACC = 32
G_AF = 72
G_BF = 104
G_TMP = 124
L_WOFF = 8
L_XOFF = 12
L_KVOFF = 16
L_DBG = 17
L_TMP = 18
L_SNAP = 19
L_FADDR = 20
L_T = 24
S_XSRD = 8
S_WSRD = 12
S_DBG = 36
S_W = 6
S_LW = 62
S_M0W = 63
S_M0X = 64
S_WSOFF = 66
S_XSOFF = 67
S_CNT = 69
S_T0 = 70
S_T1 = 71
S_KVSOFF = 73
S_OUTSRD = 84
S_KWSRD = 88
S_OOFF = 61
XFLAG = "nt" if opt("xnt", "1") == "1" else ""

def load_args(a, p_sgpr):
    a("s_load_dwordx16 s[16:31], s[0:1], 0")
    a("s_load_dwordx4 s[32:35], s[0:1], 64")
    a("s_load_dwordx2 s[50:51], s[0:1], 80")
    a(f"s_load_dwordx2 s[{S_DBG}:{S_DBG+1}], s[0:1], 88")
    a("s_load_dwordx2 s[52:53], s[0:1], 96")
    a("s_waitcnt lgkmcnt(0)")
    a(f"s_cmp_eq_u32 s{p_sgpr}, 0")
    for i in range(5):
        for h in range(2):
            a(f"s_cselect_b32 s{40+2*i+h}, s{16+2*i+h}, s{26+2*i+h}")

G_AB = 128
G_BB = 130
G_AC = 134
G_AN = 136
G_BD = 138
S_CUR = 75
S_NXT = 76
PD = int(opt("pd", "3"))
GPRIO = opt("gprio", "1") == "1"
def gemm_addr(a, mode):
    lane = V_LANE
    t0, t1, t2, t3 = G_TMP, G_TMP+1, G_TMP+2, G_TMP+3
    a(f"v_bfe_u32 v{t0}, v{lane}, 2, 2")
    a(f"v_lshrrev_b32 v{t1}, 5, v{lane}")
    a(f"v_lshl_add_u32 v{t1}, v{t1}, {3 if mode=='q' else 2}, v{t0}")
    a(f"v_lshlrev_b32 v{t1}, 8, v{t1}")
    a(f"v_bfe_u32 v{t2}, v{lane}, 4, 1")
    a(f"v_lshl_add_u32 v{t1}, v{t2}, 5, v{t1}")
    a(f"v_and_b32 v{t2}, 3, v{lane}")
    a(f"v_lshl_add_u32 v{t1}, v{t2}, 3, v{t1}")
    a(f"s_lshr_b32 s{S_T0}, s{S_W}, 2")
    a(f"s_lshl_b32 s{S_T0}, s{S_T0}, 1")
    for hd in range(2):
        a(f"s_add_u32 s{S_CNT}, s{S_T0}, {hd}")
        a(f"v_xor_b32 v{t2}, s{S_CNT}, v{t0}")
        a(f"v_lshl_add_u32 v{G_AB+hd}, v{t2}, 6, v{t1}")
    if mode == 'q':
        a(f"s_and_b32 s{S_T0}, s{S_W}, 3")
        a(f"s_lshl_b32 s{S_T0}, s{S_T0}, 5")
        a(f"v_and_b32 v{t0}, 31, v{lane}")
        a(f"v_add_u32 v{t0}, s{S_T0}, v{t0}")
        a(f"v_bfe_u32 v{t1}, v{t0}, 1, 3")
        a(f"v_lshrrev_b32 v{t2}, 5, v{lane}")
        a(f"v_lshlrev_b32 v{t0}, 7, v{t0}")
        a(f"v_add_u32 v{t0}, {XPART}, v{t0}")
        for j in range(4):
            a(f"v_or_b32 v{t3}, {2*j}, v{t2}")
            a(f"v_xor_b32 v{t3}, v{t3}, v{t1}")
            a(f"v_lshl_add_u32 v{G_BB+j}, v{t3}, 4, v{t0}")
    else:
        a(f"s_and_b32 s{S_T0}, s{S_W}, 3")
        a(f"s_lshl_b32 s{S_T0}, s{S_T0}, 12")
        a(f"s_add_u32 s{S_T0}, s{S_T0}, {XPART}")
        a(f"v_lshlrev_b32 v{t0}, 4, v{lane}")
        a(f"v_add_u32 v{t0}, s{S_T0}, v{t0}")
        for j in range(4):
            a(f"v_add_u32 v{G_BB+j}, {j*1024}, v{t0}")

def gemm_reads(a, mode, j, nxt):
    if mode == 'o' and opt("noreads", "0") == "1": return
    af = G_AF + 8*j
    bf = G_BF + 4*j
    second = 1024 if mode == 'q' else 2048
    A = G_AN if nxt else G_AC
    a(f"ds_read_b128 {vr(bf,4)}, v{G_BD+j}")
    for hd in range(2):
        a(f"ds_read_b64_tr_b16 {vr(af+4*hd,2)}, v{A+hd} offset:{j*4096}")
        a(f"ds_read_b64_tr_b16 {vr(af+4*hd+2,2)}, v{A+hd} offset:{j*4096 + second}")

def set_slots(a):
    for hd in range(2): a(f"v_add_u32 v{G_AC+hd}, s{S_CUR}, v{G_AB+hd}")
    for hd in range(2): a(f"v_add_u32 v{G_AN+hd}, s{S_NXT}, v{G_AB+hd}")
    for j in range(4):
        a(f"v_add_u32 v{G_BD+j}, s{S_CUR if j >= PD else S_NXT}, v{G_BB+j}")
def adv_slots(a):
    a(f"s_mov_b32 s{S_CUR}, s{S_NXT}")
    a(f"s_add_u32 s{S_NXT}, s{S_NXT}, {SLOT}")
    a(f"s_cmp_eq_u32 s{S_NXT}, {SLOT*NSLOT}")
    a(f"s_cselect_b32 s{S_NXT}, 0, s{S_NXT}")

def c_gemm_chunk(a, mode, barrier, next_reads):
    if barrier:
        if PROF and opt("chunkprof", "") == mode:
            a("s_memtime s[92:93]")
        a("s_barrier")
        if PROF and opt("chunkprof", "") == mode:
            a("s_memtime s[94:95]")
            a(f"s_sub_u32 m0, 26, s{S_CNT}")
            a("s_waitcnt lgkmcnt(0)")
            a(f"v_writelane_b32 v{V_PROF}, s92, m0")
            a(f"s_add_u32 m0, m0, 16")
            a("s_nop 3")
            a(f"v_writelane_b32 v{V_PROF}, s94, m0")
    for j in range(4):
        if GPRIO: a(f"s_setprio {3 - j}")
        ahead = PD - 1 if next_reads else min(PD - 1, 3 - j)
        a(f"s_waitcnt lgkmcnt({5*ahead})")
        af = G_AF + 8*j; bf = G_BF + 4*j
        jn = j + PD
        R = Asm()
        if jn < 4:
            gemm_reads(R, mode, jn, False)
        elif next_reads:
            gemm_reads(R, mode, jn - 4, True)
        rl = R.lines
        for hd in range(2):
            acc = G_ACC + 16*hd
            a(f"v_mfma_f32_32x32x16_bf16 {vr(acc,16)}, {vr(af+4*hd,4)}, {vr(bf,4)}, {vr(acc,16)}")
            if hd == 0: a.lines.extend(rl[:2])
        a.lines.extend(rl[2:])
        if j == 3 and next_reads:
            adv_slots(a)
            set_slots(a)

def c_gemm(a, mode, tag, first_slot):
    for i in range(32):
        a(f"v_mov_b32 v{G_ACC+i}, 0")
    a(f"s_mov_b32 s{S_NXT}, {first_slot*SLOT}")
    a(f"s_mov_b32 s{S_CUR}, 0")
    set_slots(a)
    a("s_barrier")
    for j in range(PD):
        gemm_reads(a, mode, j, True)
    adv_slots(a)
    set_slots(a)
    a(f"s_mov_b32 s{S_CNT}, 15")
    a(".p2align 6")
    a.label(f"L_{tag}_loop")
    c_gemm_chunk(a, mode, True, True)
    a(f"s_sub_u32 s{S_CNT}, s{S_CNT}, 1")
    a(f"s_cmp_lg_u32 s{S_CNT}, 0")
    a(f"s_cbranch_scc1 L_{tag}_loop")
    c_gemm_chunk(a, mode, False, False)
    if GPRIO: a("s_setprio 0")

def attn_step(a, t, r, read, off, do_qk=True):
    S = A_S[r]; Sn = A_S[r ^ 1]
    P = A_P[r]; Pp = A_P[r ^ 1]
    tn = t if r == 0 else t + 1
    Kn = A_K[tn & 1]; Qn = A_Q[r ^ 1]
    tp = t - 1 if r == 0 else t
    Vp = A_V[tp & 1]; Op = A_O[r ^ 1]; Lp = A_L[r ^ 1]
    E = lambda i: a(f"v_exp_f32 v{S+i}, v{S+i}")
    C = lambda i: a(f"v_cvt_pk_bf16_f32 v{P+i//2}, v{S+i}, v{S+i+1}")
    def RD(i):
        if read == 'K': a(f"ds_read_b128 {vr(A_K[(t+1)&1]+4*i,4)}, v{A_KVADDR} offset:{off+1024*i}")
        if read == 'V': a(f"ds_read_b128 {vr(A_V[(t+1)&1]+4*i,4)}, v{A_KVADDR} offset:{off+2048+1024*i}")
    if do_qk: a(f"v_mfma_f32_32x32x16_bf16 {vr(Sn,16)}, {vr(Kn,4)}, {vr(Qn,4)}, 0")
    RD(0)
    E(0); E(1); E(2); E(3)
    if do_qk: a(f"v_mfma_f32_32x32x16_bf16 {vr(Sn,16)}, {vr(Kn+4,4)}, {vr(Qn+4,4)}, {vr(Sn,16)}")
    RD(1)
    E(4); E(5); E(6); C(0); C(2)
    a(f"v_mfma_f32_32x32x16_bf16 {vr(Op,16)}, {vr(Vp,4)}, {vr(Pp,4)}, {vr(Op,16)}")
    E(7); E(8); E(9); C(4); C(6)
    a(f"v_mfma_f32_32x32x16_bf16 {vr(Op,16)}, {vr(Vp+4,4)}, {vr(Pp+4,4)}, {vr(Op,16)}")
    E(10); E(11); E(12); C(8); C(10)
    a(f"v_smfmac_f32_16x16x64_bf16 {vr(Lp,4)}, {vr(A_SEL,4)}, {vr(Pp,8)}, v{A_IDX}")
    E(13); E(14); E(15); C(12); C(14)

def slow_path(a, r):
    Q = A_Q[r]; O = A_O[r]; L = A_L[r]
    S = A_S[0]; NM = A_S[1]; P = A_P[0]; K = A_K[0]; V = A_V[0]
    M = A_T + 4; ADDR = A_T + 5
    l1 = a.newlabel("slow1"); l2 = a.newlabel("slow2")
    a(f"v_lshlrev_b32 v{ADDR}, 4, v{V_LANE}")
    a(f"s_lshl_b32 s60, s3, 18")
    if WS_KV: a(f"s_add_u32 s60, s60, {WS_KV}")
    a(f"s_mov_b32 s62, 64")
    a(f"v_mov_b32 v{M}, 0xff800000")
    a.label(l1)
    a(f"buffer_load_dwordx4 {vr(K,4)}, v{ADDR}, s[{S_WSSRD}:{S_WSSRD+3}], s60 offen sc1")
    a(f"buffer_load_dwordx4 {vr(K+4,4)}, v{ADDR}, s[{S_WSSRD}:{S_WSSRD+3}], s60 offen offset:1024 sc1")
    a("s_waitcnt vmcnt(0)")
    a(f"v_mfma_f32_32x32x16_bf16 {vr(S,16)}, {vr(K,4)}, {vr(Q,4)}, 0")
    a(f"v_mfma_f32_32x32x16_bf16 {vr(S,16)}, {vr(K+4,4)}, {vr(Q+4,4)}, {vr(S,16)}")
    a.nop(16)
    for i in range(8):
        a(f"v_max3_f32 v{M}, v{S+2*i}, v{S+2*i+1}, v{M}")
    a("s_add_u32 s60, s60, 4096")
    a("s_sub_u32 s62, s62, 1")
    a("s_cmp_lg_u32 s62, 0")
    a(f"s_cbranch_scc1 {l1}")
    a(f"v_mov_b32 v{M+2}, v{M}")
    a("s_nop 1")
    a(f"v_permlane32_swap_b32 v{M+2}, v{M}")
    a("s_nop 1")
    a(f"v_max_f32 v{M}, v{M}, v{M+2}")
    a(f"v_sub_f32 v{M}, 0, v{M}")
    for i in range(16): a(f"v_mov_b32 v{NM+i}, v{M}")
    for i in range(16): a(f"v_mov_b32 v{O+i}, 0")
    for i in range(4): a(f"v_mov_b32 v{L+i}, 0")
    a(f"s_lshl_b32 s60, s3, 18")
    if WS_KV: a(f"s_add_u32 s60, s60, {WS_KV}")
    a(f"s_mov_b32 s62, 64")
    a.label(l2)
    a(f"buffer_load_dwordx4 {vr(K,4)}, v{ADDR}, s[{S_WSSRD}:{S_WSSRD+3}], s60 offen sc1")
    a(f"buffer_load_dwordx4 {vr(K+4,4)}, v{ADDR}, s[{S_WSSRD}:{S_WSSRD+3}], s60 offen offset:1024 sc1")
    a(f"buffer_load_dwordx4 {vr(V,4)}, v{ADDR}, s[{S_WSSRD}:{S_WSSRD+3}], s60 offen offset:2048 sc1")
    a(f"buffer_load_dwordx4 {vr(V+4,4)}, v{ADDR}, s[{S_WSSRD}:{S_WSSRD+3}], s60 offen offset:3072 sc1")
    a("s_waitcnt vmcnt(0)")
    a(f"v_mfma_f32_32x32x16_bf16 {vr(S,16)}, {vr(K,4)}, {vr(Q,4)}, {vr(NM,16)}")
    a(f"v_mfma_f32_32x32x16_bf16 {vr(S,16)}, {vr(K+4,4)}, {vr(Q+4,4)}, {vr(S,16)}")
    a.nop(16)
    for i in range(16): a(f"v_exp_f32 v{S+i}, v{S+i}")
    a("s_nop 1")
    for i in range(8): a(f"v_cvt_pk_bf16_f32 v{P+i}, v{S+2*i}, v{S+2*i+1}")
    a("s_nop 2")
    a(f"v_mfma_f32_32x32x16_bf16 {vr(O,16)}, {vr(V,4)}, {vr(P,4)}, {vr(O,16)}")
    a(f"v_mfma_f32_32x32x16_bf16 {vr(O,16)}, {vr(V+4,4)}, {vr(P+4,4)}, {vr(O,16)}")
    a(f"v_smfmac_f32_16x16x64_bf16 {vr(L,4)}, {vr(A_SEL,4)}, {vr(P,8)}, v{A_IDX}")
    a.nop(16)
    a("s_add_u32 s60, s60, 4096")
    a("s_sub_u32 s62, s62, 1")
    a("s_cmp_lg_u32 s62, 0")
    a(f"s_cbranch_scc1 {l2}")

def gen_compute(a):
    KX = 32; KACC = 64; KW = 80
    a(f"v_and_b32 v20, 31, v{V_LANE}")
    a(f"v_lshrrev_b32 v21, 5, v{V_LANE}")
    a(f"v_and_b32 v22, 15, v{V_LANE}")
    a(f"s_lshl_b32 s60, s{S_W}, 13")
    a(f"s_add_u32 s60, s60, {XSTG}")
    a("v_lshlrev_b32 v20, 8, v20")
    a("v_add_u32 v20, s60, v20")
    for s in range(8):
        a(f"v_or_b32 v23, {2*s}, v21")
        a("v_xor_b32 v23, v23, v22")
        a(f"v_lshl_add_u32 v{24+s}, v23, 4, v20")
    a(f"s_lshl_b32 s60, s{S_W}, 13")
    a(f"s_add_u32 s62, s60, {WSTG0}")
    a(f"v_bfe_u32 v16, v{V_LANE}, 2, 2")
    a("v_lshl_add_u32 v16, v21, 3, v16")
    a("v_lshlrev_b32 v16, 6, v16")
    a(f"v_bfe_u32 v17, v{V_LANE}, 4, 1")
    a("v_lshl_add_u32 v16, v17, 5, v16")
    a(f"v_and_b32 v17, 3, v{V_LANE}")
    a("v_lshl_add_u32 v16, v17, 3, v16")
    a("v_add_u32 v16, s62, v16")
    for i in range(16):
        a(f"v_mov_b32 v{KACC+i}, 0")
    gemm_addr(a, 'q')
    a(f"v_lshlrev_b32 v18, 4, v{V_LANE}")
    a(f"s_lshl_b32 s60, s{S_W}, 12")
    a(f"s_add_u32 s60, s60, {PART}")
    a("v_add_u32 v19, s60, v18")
    stamp(a, 9)
    a("s_barrier")
    stamp(a, 10)
    for s in range(8):
        a(f"ds_read_b128 {vr(KX+4*s,4)}, v{24+s}")
        a(f"ds_read_b64_tr_b16 {vr(KW+4*s,2)}, v16 offset:{1024*s}")
        a(f"ds_read_b64_tr_b16 {vr(KW+4*s+2,2)}, v16 offset:{1024*s+256}")
        if s in (1, 3, 5): a("s_waitcnt lgkmcnt(6)")
    a("s_and_b32 s60, s5, 1")
    a("s_cmp_eq_u32 s60, 0")
    a("s_waitcnt lgkmcnt(0)")
    a("s_barrier")
    if PROF:
        a("s_cselect_b32 s97, 1, 0")
        stamp(a, 11)
        a("s_cmp_eq_u32 s97, 1")
    a("s_cbranch_scc0 L_kv_isv")
    for s in range(8):
        a(f"v_mfma_f32_32x32x16_bf16 {vr(KACC,16)}, {vr(KW+4*s,4)}, {vr(KX+4*s,4)}, {vr(KACC,16)}")
    a("s_branch L_kv_red")
    a.label("L_kv_isv")
    for s in range(8):
        a(f"v_mfma_f32_32x32x16_bf16 {vr(KACC,16)}, {vr(KX+4*s,4)}, {vr(KW+4*s,4)}, {vr(KACC,16)}")
    a.label("L_kv_red")
    a.nop(16)
    for q in range(4):
        a(f"ds_write_b128 v19, {vr(KACC+4*q,4)} offset:{1024*q}")
    a("s_waitcnt lgkmcnt(0)")
    a("s_barrier")
    stamp(a, 1)
    c_gemm(a, 'q', "q", 0)
    stamp(a, 2)
    a(f"s_mov_b32 s{S_T0}, {fbits(CSCALE)}")
    a(f"v_and_b32 v{A_T}, 6, v{V_LANE}")
    a(f"v_mov_b32 v{A_T+1}, 0x3f803f80")
    a(f"v_cmp_eq_u32 vcc, 0, v{A_T}")
    a("s_nop 1")
    a(f"v_cndmask_b32 v{A_SEL}, 0, v{A_T+1}, vcc")
    a(f"v_cndmask_b32 v{A_SEL+1}, 0, v{A_T+1}, vcc")
    a(f"v_cmp_eq_u32 vcc, 4, v{A_T}")
    a("s_nop 1")
    a(f"v_cndmask_b32 v{A_SEL+2}, 0, v{A_T+1}, vcc")
    a(f"v_cndmask_b32 v{A_SEL+3}, 0, v{A_T+1}, vcc")
    a(f"v_and_b32 v{A_T}, 1, v{V_LANE}")
    a(f"v_mov_b32 v{A_T+1}, 0x4444")
    a(f"v_mov_b32 v{A_T+2}, 0xeeee")
    a(f"v_cmp_eq_u32 vcc, 0, v{A_T}")
    a("s_nop 1")
    a(f"v_cndmask_b32 v{A_IDX}, v{A_T+2}, v{A_T+1}, vcc")
    for i in range(32):
        a(f"v_mul_f32 v{G_ACC+i}, s{S_T0}, v{G_ACC+i}")
    for hd in range(2):
        for d in range(8):
            a(f"v_cvt_pk_bf16_f32 v{A_Q[hd]+d}, v{G_ACC+16*hd+2*d}, v{G_ACC+16*hd+2*d+1}")
    a("s_barrier")
    a(f"v_lshlrev_b32 v{A_KVADDR}, 4, v{V_LANE}")
    a(f"v_add_u32 v{A_KVADDR}, {KVR[0]}, v{A_KVADDR}")
    for i in range(2):
        a(f"ds_read_b128 {vr(A_K[0]+4*i,4)}, v{A_KVADDR} offset:{1024*i}")
    for i in range(2):
        a(f"ds_read_b128 {vr(A_V[0]+4*i,4)}, v{A_KVADDR} offset:{2048+1024*i}")
    for r in range(2):
        for i in range(16): a(f"v_mov_b32 v{A_O[r]+i}, 0")
        for i in range(4): a(f"v_mov_b32 v{A_L[r]+i}, 0")
    for i in range(8): a(f"v_mov_b32 v{A_P[1]+i}, 0")
    for i in range(8): a(f"v_mov_b32 v{A_V[1]+i}, 0")
    a("s_waitcnt lgkmcnt(0)")
    a(f"v_mfma_f32_32x32x16_bf16 {vr(A_S[0],16)}, {vr(A_K[0],4)}, {vr(A_Q[0],4)}, 0")
    a(f"v_mfma_f32_32x32x16_bf16 {vr(A_S[0],16)}, {vr(A_K[0]+4,4)}, {vr(A_Q[0]+4,4)}, {vr(A_S[0],16)}")
    a(f"s_lshl_b32 s{S_OOFF}, s3, 22")
    a(f"s_add_u32 s{S_OOFF}, s{S_OOFF}, {WS_O}")
    a("s_lshl_b32 s60, s4, 2")
    a(f"s_and_b32 s62, s{S_W}, 3")
    a("s_add_u32 s60, s60, s62")
    a("s_lshl_b32 s60, s60, 16")
    a(f"s_add_u32 s{S_OOFF}, s{S_OOFF}, s60")
    a("s_lshl_b32 s60, s5, 2")
    a(f"s_lshr_b32 s62, s{S_W}, 2")
    a("s_lshl_b32 s62, s62, 1")
    a("s_add_u32 s60, s60, s62")
    a("s_lshl_b32 s60, s60, 11")
    a(f"s_add_u32 s{S_OOFF}, s{S_OOFF}, s60")
    a(f"s_mov_b32 s75, {KVR[0]}")
    a(f"s_mov_b32 s76, {KVR[1]}")
    a(f"s_mov_b32 s77, {KVR[2]}")
    a(f"s_mov_b32 s{S_CNT}, 0")
    a.nop(4)
    stamp(a, 3)
    a("s_branch L_att_entry")
    a(".p2align 6")
    a.label("L_att_loop")
    a("s_waitcnt lgkmcnt(0)")
    a("s_barrier")
    a("s_mov_b32 s60, s75")
    a("s_mov_b32 s75, s76")
    a("s_mov_b32 s76, s77")
    a("s_mov_b32 s77, s60")
    a(f"v_lshlrev_b32 v{A_KVADDR}, 4, v{V_LANE}")
    a(f"v_add_u32 v{A_KVADDR}, s75, v{A_KVADDR}")
    for i in range(8):
        t = i - 1
        if i == 1:
            a.label("L_att_entry")
        for r in range(2):
            if r == 1:
                a("s_waitcnt lgkmcnt(0)")
            ap = opt("aprio", "0")
            if ap == "1" and r == 0 and i % 2 == 0: a(f"s_setprio {3 - i//2}")
            if ap == "2" and r == 0 and i % 4 == 0: a(f"s_setprio {1 - i//4}")
            if ap == "3" and r == 0: a(f"s_setprio {3 - (i % 4)}")
            attn_step(a, t & 1 if t >= 0 else 1, r, 'K' if r == 0 else 'V', i*4096)
    a(f"s_add_u32 s{S_CNT}, s{S_CNT}, 1")
    a(f"s_cmp_lt_u32 s{S_CNT}, 8")
    a("s_cbranch_scc1 L_att_loop")
    attn_step(a, 1, 0, None, 0)
    a("s_waitcnt lgkmcnt(0)")
    attn_step(a, 1, 1, None, 0, do_qk=False)
    a("s_nop 1")
    Vp = A_V[1]; Pp = A_P[1]
    a(f"v_mfma_f32_32x32x16_bf16 {vr(A_O[1],16)}, {vr(Vp,4)}, {vr(Pp,4)}, {vr(A_O[1],16)}")
    a(f"v_mfma_f32_32x32x16_bf16 {vr(A_O[1],16)}, {vr(Vp+4,4)}, {vr(Pp+4,4)}, {vr(A_O[1],16)}")
    a(f"v_smfmac_f32_16x16x64_bf16 {vr(A_L[1],4)}, {vr(A_SEL,4)}, {vr(Pp,8)}, v{A_IDX}")
    stamp(a, 4)
    a.nop(16)
    a(f"s_mov_b32 s78, {fbits(2.0**-64)}")
    a(f"s_mov_b32 s79, {fbits(2.0**64)}")
    for r in range(2):
        ok = a.newlabel("rb_ok")
        a(f"v_add_f32 v{A_T}, v{A_L[r]}, v{A_L[r]+1}")
        a(f"v_mov_b32 v{A_T+3}, 0")
        for i in range(16):
            a(f"v_fma_f32 v{A_T+3}, v{A_O[r]+i}, 0, v{A_T+3}")
        a(f"v_cmp_le_f32 vcc, s78, v{A_T}")
        a(f"v_cmp_ge_f32 s[80:81], s79, v{A_T}")
        a(f"v_cmp_o_f32 s[82:83], v{A_T+3}, v{A_T+3}")
        a("s_nop 4")
        a("s_and_b64 s[80:81], s[80:81], vcc")
        a("s_and_b64 s[80:81], s[80:81], s[82:83]")
        a("s_cmp_eq_u64 s[80:81], -1")
        if opt("forceslow", "0") == "1": a("s_cmp_eq_u32 s3, 77")
        a(f"s_cbranch_scc1 {ok}")
        slow_path(a, r)
        a(f"v_add_f32 v{A_T}, v{A_L[r]}, v{A_L[r]+1}")
        a.label(ok)
        a(f"v_rcp_f32 v{A_T+1}, v{A_T}")
        a("s_nop 0")
        for i in range(16):
            a(f"v_mul_f32 v{A_O[r]+i}, v{A_T+1}, v{A_O[r]+i}")
    a(f"v_lshlrev_b32 v{A_T+2}, 4, v{V_LANE}")
    for r in range(2):
        for d in range(8):
            a(f"v_cvt_pk_bf16_f32 v{A_S[r]+d}, v{A_O[r]+2*d}, v{A_O[r]+2*d+1}")
        a(f"buffer_store_dwordx4 {vr(A_S[r],4)}, v{A_T+2}, s[{S_WSSRD}:{S_WSSRD+3}], s{S_OOFF} offen offset:{2048*r} sc1")
        a(f"buffer_store_dwordx4 {vr(A_S[r]+4,4)}, v{A_T+2}, s[{S_WSSRD}:{S_WSSRD+3}], s{S_OOFF} offen offset:{2048*r+1024} sc1")
    a(f"s_lshr_b32 s60, s{S_W}, 2")
    a("s_cmp_eq_u32 s60, 0")
    a(f"s_cselect_b32 s60, {4*SLOT}, 0")
    a(f"s_add_u32 s60, s60, {XPART}")
    a(f"s_and_b32 s62, s{S_W}, 3")
    a("s_lshl_b32 s62, s62, 12")
    a("s_add_u32 s60, s60, s62")
    a(f"v_add_u32 v{A_T+3}, s60, v{A_T+2}")
    for r in range(2):
        for i in range(2):
            a(f"ds_write_b128 v{A_T+3}, {vr(A_S[r]+4*i,4)} offset:{r*2048 + i*1024}")
    gemm_addr(a, 'o')
    for i in range(32):
        a(f"v_mov_b32 v{G_ACC+i}, 0")
    a(f"s_mov_b32 s{S_NXT}, {4*SLOT}")
    a(f"s_mov_b32 s{S_CUR}, 0")
    set_slots(a)
    a("s_waitcnt vmcnt(0) lgkmcnt(0)")
    a("s_barrier")
    stamp(a, 5)
    for j in range(PD):
        gemm_reads(a, 'o', j, True)
    adv_slots(a); set_slots(a)
    c_gemm_chunk(a, 'o', False, True)
    c_gemm_chunk(a, 'o', False, False)
    a(f"s_mov_b32 s{S_NXT}, {1*SLOT}")
    set_slots(a)
    a("s_barrier")
    stamp(a, 6)
    for j in range(PD):
        gemm_reads(a, 'o', j, True)
    adv_slots(a); set_slots(a)
    c_gemm_chunk(a, 'o', False, True)
    a(f"s_mov_b32 s{S_CNT}, 12")
    a(".p2align 6")
    a.label("L_o_loop")
    c_gemm_chunk(a, 'o', True, True)
    a(f"s_sub_u32 s{S_CNT}, s{S_CNT}, 1")
    a(f"s_cmp_lg_u32 s{S_CNT}, 0")
    a("s_cbranch_scc1 L_o_loop")
    c_gemm_chunk(a, 'o', False, False)
    if GPRIO: a("s_setprio 0")
    stamp(a, 7)
    a(f"s_lshl_b32 s7, s4, 7")
    a(f"s_and_b32 s60, s{S_W}, 3")
    a(f"s_lshl_b32 s60, s60, 5")
    a(f"s_add_u32 s7, s7, s60")
    a(f"s_lshl_b32 s7, s7, 12")
    a(f"s_lshl_b32 s60, s3, 11")
    a(f"s_add_u32 s7, s7, s60")
    a(f"s_lshl_b32 s60, s5, 8")
    a(f"s_add_u32 s7, s7, s60")
    a(f"s_lshr_b32 s60, s{S_W}, 2")
    a(f"s_lshl_b32 s60, s60, 7")
    a(f"s_add_u32 s7, s7, s60")
    t = G_TMP
    a(f"v_and_b32 v{t}, 31, v{V_LANE}")
    a(f"v_lshlrev_b32 v{t}, 12, v{t}")
    a(f"v_lshrrev_b32 v{t+1}, 5, v{V_LANE}")
    a(f"v_lshl_add_u32 v{t}, v{t+1}, 4, v{t}")
    a.nop(8)
    for hd in range(2):
        for d in range(8):
            a(f"v_cvt_pk_bf16_f32 v{G_AF+8*hd+d}, v{G_ACC+16*hd+2*d}, v{G_ACC+16*hd+2*d+1}")
    a("s_nop 1")
    for hd in range(2):
        for qd in range(2):
            b = G_AF + 8*hd + 4*qd
            a(f"v_permlane32_swap_b32 v{b}, v{b+2}")
            a(f"v_permlane32_swap_b32 v{b+1}, v{b+3}")
    a("s_nop 1")
    for hd in range(2):
        for qd in range(2):
            b = G_AF + 8*hd + 4*qd
            a(f"buffer_store_dwordx4 {vr(b,4)}, v{t}, s[{S_OUTSRD}:{S_OUTSRD+3}], s7 offen offset:{hd*64 + qd*32}")
    if PROF:
        a("s_waitcnt vmcnt(0)")
        stamp(a, 8)
        stamp_flush(a)
    a("s_endpgm")

def l_dma_w(a, slot):
    a(f"s_add_u32 m0, s{S_M0W}, {slot*SLOT}")
    a("s_nop 0")
    for j in range(4):
        a(f"buffer_load_dwordx4 v{L_WOFF+j}, s[{S_WSRD}:{S_WSRD+3}], s{S_WSOFF} offen offset:{1024*j} lds")
    a(f"s_add_u32 s{S_WSOFF}, s{S_WSOFF}, {64*2048}")
    a(f"s_and_b32 s{S_WSOFF}, s{S_WSOFF}, 0x1fffff")
def l_dma_x(a, mode, slot):
    a(f"s_add_u32 m0, s{S_M0X}, {slot*SLOT}")
    a("s_nop 0")
    for j in range(4):
        if mode == 'q':
            a(f"buffer_load_dwordx4 v{L_XOFF+j}, s[{S_XSRD}:{S_XSRD+3}], s{S_XSOFF} offen offset:{1024*j} {XFLAG} lds")
        else:
            a(f"buffer_load_dwordx4 v{L_XOFF}, s[{S_XSRD}:{S_XSRD+3}], s{S_XSOFF} offen offset:{1024*j} sc1 lds")
    a(f"s_add_u32 s{S_XSOFF}, s{S_XSOFF}, {128 if mode == 'q' else 4096}")
    a(f"s_and_b32 s{S_XSOFF}, s{S_XSOFF}, {2047 if mode == 'q' else 65535}")
def l_dma_chunk(a, mode, slot):
    if mode == 'o' and opt("nodma", "0") == "1": return
    l_dma_w(a, slot); l_dma_x(a, mode, slot)
def l_kv_dma(a, base_imm=None, base_sgpr=None):
    if base_imm is not None:
        a(f"s_add_u32 m0, s{S_T1}, {base_imm}")
    else:
        a(f"s_add_u32 m0, s{S_T1}, s{base_sgpr}")
    a("s_nop 0")
    for j in range(4):
        a(f"buffer_load_dwordx4 v{L_KVOFF}, s[{S_WSSRD}:{S_WSSRD+3}], s{S_KVSOFF} offen offset:{1024*j} sc1 lds")
    a("s_add_u32 m0, m0, 4096")
    a(f"s_add_u32 s60, s{S_KVSOFF}, 4096")
    for j in range(4):
        a(f"buffer_load_dwordx4 v{L_KVOFF}, s[{S_WSSRD}:{S_WSSRD+3}], s60 offen offset:{1024*j} sc1 lds")
    a(f"s_add_u32 s{S_KVSOFF}, s{S_KVSOFF}, 32768")

def gen_loader(a):
    L = V_LANE
    t0, t1, t2, t3 = L_T, L_T+1, L_T+2, L_T+3
    a(f"s_sub_u32 s{S_LW}, s{S_W}, 8")
    a("s_lshl_b32 s60, s3, 4")
    a("s_add_u32 s60, s60, s4")
    a("s_lshl_b32 s60, s60, 10")
    a(f"s_add_u32 s60, s60, {WS_FLAG}")
    a(f"v_and_b32 v{L_FADDR}, 7, v{L}")
    a(f"v_lshlrev_b32 v{L_FADDR}, 7, v{L_FADDR}")
    a(f"v_add_u32 v{L_FADDR}, s60, v{L_FADDR}")
    a("s_lshr_b32 s60, s5, 1")
    a("s_lshl_b32 s60, s60, 5")
    a("s_add_u32 s60, s60, s7")
    a(f"s_lshl_b32 s65, s{S_LW}, 3")
    a("s_add_u32 s60, s60, s65")
    a("s_lshl_b32 s72, s60, 11")
    a(f"v_lshrrev_b32 v{t0}, 4, v{L}")
    a(f"v_and_b32 v{t1}, 15, v{L}")
    a(f"s_and_b32 s65, s65, 15")
    for e in range(2):
        a(f"v_add_u32 v{t2}, {4*e}, v{t0}")
        a(f"v_add_u32 v{t3}, s65, v{t2}")
        a(f"v_xor_b32 v{t3}, v{t3}, v{t1}")
        a(f"v_lshlrev_b32 v{t3}, 4, v{t3}")
        a(f"v_lshl_add_u32 v{32+e}, v{t2}, 11, v{t3}")
        if e: a(f"v_subrev_u32 v{32+e}, {1024*e}, v{32+e}")
    a(f"v_lshlrev_b32 v34, 4, v{L}")
    a(f"s_lshl_b32 s74, s{S_LW}, 11")
    a("s_and_b32 s77, s5, 1")
    a("s_lshl_b32 s77, s77, 2")
    a("s_lshr_b32 s78, s2, 3")
    if opt("stgrot", "1") != "1":
        a("s_mov_b32 s77, 0"); a("s_mov_b32 s78, 0")
    if opt("stgrot", "1") != "1":
        a("s_mov_b32 s77, 0"); a("s_mov_b32 s78, 0")
    def x_round():
        a("s_and_b32 s77, s77, 7")
        a("s_lshl_b32 s60, s77, 13")
        a("s_add_u32 s60, s60, s74")
        a(f"s_add_u32 m0, s60, {XSTG}")
        a("s_lshl_b32 s65, s77, 8")
        a("s_add_u32 s65, s65, s72")
        for e in range(2):
            a(f"buffer_load_dwordx4 v{32+e}, s[{S_XSRD}:{S_XSRD+3}], s65 offen offset:{1024*e} {XFLAG} lds")
        a("s_add_u32 s77, s77, 1")
    def w_round():
        a("s_and_b32 s78, s78, 7")
        a("s_lshl_b32 s60, s78, 13")
        a("s_add_u32 s60, s60, s74")
        a(f"s_add_u32 m0, s60, {WSTG0}")
        a("s_add_u32 s78, s78, 1")
        for e in range(2):
            a(f"buffer_load_dwordx4 v34, s[{S_KWSRD}:{S_KWSRD+3}], s60 offen offset:{1024*e} lds")
    WLATE = opt("wlate", "0") == "1"
    if WLATE:
        a("s_lshr_b32 s60, s2, 4")
        a("s_and_b32 s60, s60, 15")
        a("s_lshl_b32 s60, s60, 2")
        a(f"s_add_u32 s60, s60, s{S_LW}")
        a("s_lshl_b32 s60, s60, 10")
        a(f"v_and_b32 v{t0}, 7, v{L}")
        a(f"v_lshlrev_b32 v{t0}, 7, v{t0}")
        a(f"buffer_load_dword v37, v{t0}, s[{S_KWSRD}:{S_KWSRD+3}], s60 offen")
        for r in range(8): x_round()
    else:
        for r in range(8):
            x_round(); w_round()
    stamp(a, 9)
    a(f"v_lshrrev_b32 v{t0}, 4, v{L}")
    a(f"v_bfe_u32 v{t1}, v{L}, 2, 2")
    a(f"v_xor_b32 v{t1}, v{t1}, v{t0}")
    a(f"v_lshlrev_b32 v{t1}, 6, v{t1}")
    a(f"v_lshl_add_u32 v{t1}, v{t0}, 11, v{t1}")
    a(f"v_and_b32 v{t2}, 3, v{L}")
    a(f"v_lshl_add_u32 v{t1}, v{t2}, 4, v{t1}")
    a(f"s_lshl_b32 s60, s{S_LW}, 15")
    a(f"s_lshl_b32 s65, s5, 8")
    a(f"s_add_u32 s60, s60, s65")
    a(f"v_add_u32 v{L_WOFF}, s60, v{t1}")
    for j in range(1, 4):
        a(f"v_add_u32 v{L_WOFF+j}, {j*(8192-1024)}, v{L_WOFF}")
    a(f"v_lshrrev_b32 v{t0}, 3, v{L}")
    a(f"s_lshl_b32 s60, s{S_LW}, 5")
    a(f"s_add_u32 s60, s60, s7")
    a(f"v_add_u32 v{t0}, s60, v{t0}")
    a(f"v_lshlrev_b32 v{t0}, 11, v{t0}")
    a(f"v_and_b32 v{t1}, 7, v{L}")
    a(f"v_lshrrev_b32 v{t2}, 4, v{L}")
    a(f"v_xor_b32 v{t1}, v{t1}, v{t2}")
    for e in range(4):
        if e & 1:
            a(f"v_xor_b32 v{t3}, 4, v{t1}")
            a(f"v_lshl_add_u32 v{L_XOFF+e}, v{t3}, 4, v{t0}")
        else:
            a(f"v_lshl_add_u32 v{L_XOFF+e}, v{t1}, 4, v{t0}")
        if e: a(f"v_add_u32 v{L_XOFF+e}, {e*(8*2048-1024)}, v{L_XOFF+e}")
    a(f"s_lshl_b32 s{S_M0W}, s{S_LW}, 12")
    a(f"s_lshl_b32 s{S_M0X}, s{S_LW}, 12")
    a(f"s_add_u32 s{S_M0X}, s{S_M0X}, {XPART}")
    a("s_and_b32 s60, s4, 3")
    a("s_lshl_b32 s60, s60, 2")
    a("s_lshl_b32 s65, s5, 1")
    a("s_add_u32 s60, s60, s65")
    a("s_and_b32 s60, s60, 15")
    if opt("rot", "1") != "1": a("s_mov_b32 s60, 0")
    a(f"s_lshl_b32 s{S_WSOFF}, s60, 17")
    a(f"s_lshl_b32 s{S_XSOFF}, s60, 7")
    if WLATE:
        if opt("c0first", "1") == "1":
            l_dma_chunk(a, 'q', 0)
            for r in range(8): w_round()
        else:
            for r in range(8): w_round()
            l_dma_chunk(a, 'q', 0)
    else:
        l_dma_chunk(a, 'q', 0)
    a(f"buffer_load_dword v{L_SNAP}, v{L_FADDR}, s[{S_WSSRD}:{S_WSSRD+3}], 0 offen sc1")
    NT = 0
    if opt("wqpf", "0") == "1":
        NT = 2
        a(f"v_lshrrev_b32 v{t0}, 1, v{L}")
        a(f"v_lshlrev_b32 v{t0}, 11, v{t0}")
        a(f"v_and_b32 v{t1}, 1, v{L}")
        a(f"v_lshl_add_u32 v{t0}, v{t1}, 7, v{t0}")
        a("s_lshl_b32 s60, s5, 8")
        a(f"v_add_u32 v{t0}, s60, v{t0}")
        a(f"s_lshl_b32 s60, s{S_LW}, 17")
        a(f"s_add_u32 s60, s60, s{S_WSOFF}")
        a("s_and_b32 s60, s60, 0x1fffff")
        a(f"buffer_load_dword v35, v{t0}, s[{S_WSRD}:{S_WSRD+3}], s60 offen")
        a("s_add_u32 s60, s60, 0x10000")
        a(f"buffer_load_dword v36, v{t0}, s[{S_WSRD}:{S_WSRD+3}], s60 offen")
    a(f"v_mov_b32 v{L_DBG}, s3")
    a(f"v_lshlrev_b32 v{L_DBG}, 7, v{L_DBG}")
    a(f"v_lshlrev_b32 v{L_KVOFF}, 4, v{L}")
    a(f"s_lshl_b32 s{S_T1}, s{S_LW}, 13")
    a(f"v_add_u32 v{L_KVOFF}, s{S_T1}, v{L_KVOFF}")
    a(f"s_lshl_b32 s{S_KVSOFF}, s3, 18")
    if WS_KV: a(f"s_add_u32 s{S_KVSOFF}, s{S_KVSOFF}, {WS_KV}")
    stamp(a, 10)
    a(f"s_waitcnt vmcnt({(1 if (WLATE and opt('c0first','1') == '1') else 9) + NT})")
    stamp(a, 11)
    a("s_barrier")
    a("s_barrier")
    if opt("k1early", "1") == "1":
        l_dma_chunk(a, 'q', 1)
        a("s_barrier")
        l_dma_chunk(a, 'q', 2)
        l_dma_chunk(a, 'q', 3)
    else:
        for c in (1, 2, 3): l_dma_chunk(a, 'q', c)
        a("s_barrier")
    a("s_waitcnt vmcnt(24)")
    a("s_barrier")
    a("s_waitcnt vmcnt(16)")
    a("s_barrier")
    a(f"s_cmp_ge_u32 s{S_LW}, 2")
    a("s_cbranch_scc1 L_l_dummy")
    a(f"s_lshl_b32 s60, s{S_LW}, 11")
    a(f"s_add_u32 s60, s60, {PART}")
    a(f"v_lshlrev_b32 v{t0}, 4, v{L}")
    a(f"v_add_u32 v{t1}, s60, v{t0}")
    for w in range(8):
        a(f"ds_read_b128 {vr(40+8*w,4)}, v{t1} offset:{4096*w}")
        a(f"ds_read_b128 {vr(44+8*w,4)}, v{t1} offset:{4096*w+1024}")
        if w == 3: a("s_waitcnt lgkmcnt(4)")
    a("s_waitcnt lgkmcnt(0)")
    for w in range(1, 8):
        for r in range(8):
            a(f"v_add_f32 v{40+r}, v{40+r}, v{40+8*w+r}")
    for d in range(4):
        a(f"v_cvt_pk_bf16_f32 v{36+d}, v{40+2*d}, v{41+2*d}")
    a("s_lshr_b32 s60, s5, 1")
    a("s_lshl_b32 s65, s4, 2")
    a("s_add_u32 s60, s60, s65")
    a("s_lshl_b32 s60, s60, 12")
    a("s_and_b32 s65, s5, 1")
    a("s_lshl_b32 s65, s65, 11")
    a("s_add_u32 s60, s60, s65")
    a(f"s_lshl_b32 s65, s{S_LW}, 10")
    a("s_add_u32 s60, s60, s65")
    a("s_lshl_b32 s65, s3, 18")
    a("s_add_u32 s60, s60, s65")
    if WS_KV: a(f"s_add_u32 s60, s60, {WS_KV}")
    a(f"buffer_store_dwordx4 v[36:39], v{t0}, s[{S_WSSRD}:{S_WSSRD+3}], s60 offen sc1")
    a("s_branch L_l_red_done")
    a.label("L_l_dummy")
    a(f"buffer_load_dword v36, v{L_FADDR}, s[{S_WSSRD}:{S_WSSRD+3}], 0 offen sc1")
    a.label("L_l_red_done")
    a("s_waitcnt vmcnt(9)")
    a("s_barrier")
    l_dma_chunk(a, 'q', 4)
    l_dma_chunk(a, 'q', 0)
    a("s_waitcnt vmcnt(17)")
    a("s_barrier")
    l_dma_chunk(a, 'q', 6 % NSLOT)
    a("s_waitcnt vmcnt(16)")
    a("s_barrier")
    l_dma_chunk(a, 'q', 7 % NSLOT)
    a(f"s_cmp_eq_u32 s{S_LW}, 0")
    a("s_cbranch_scc0 L_l_nosig")
    a("s_mov_b64 exec, 1")
    a(f"v_mov_b32 v{t0}, 1")
    a(f"global_atomic_add v{L_DBG}, v{t0}, s[{S_DBG}:{S_DBG+1}]")
    a("s_mov_b64 exec, -1")
    a.label("L_l_nosig")
    for c in range(4, 10):
        a("s_waitcnt vmcnt(16)")
        a("s_barrier")
        l_dma_chunk(a, 'q', (c + 4) % NSLOT)
    a(f"global_load_dword v{L_TMP}, v{L_DBG}, s[{S_DBG}:{S_DBG+1}] sc1")
    for c in (10, 11):
        a("s_waitcnt vmcnt(17)")
        a("s_barrier")
        l_dma_chunk(a, 'q', (c + 4) % NSLOT)
    a("s_waitcnt vmcnt(16)")
    a("s_barrier")
    a(f"v_readfirstlane_b32 s60, v{L_TMP}")
    a("s_mov_b32 s65, 0x200000")
    a("s_nop 2")
    a("s_cmp_ge_u32 s60, 128")
    a("s_cbranch_scc1 L_l_kvok")
    a.label("L_l_kvpoll")
    a(f"global_load_dword v{L_TMP}, v{L_DBG}, s[{S_DBG}:{S_DBG+1}] sc1")
    a("s_waitcnt vmcnt(0)")
    a(f"v_readfirstlane_b32 s60, v{L_TMP}")
    a("s_nop 3")
    a("s_cmp_ge_u32 s60, 128")
    a("s_cbranch_scc1 L_l_kvok")
    a("s_sleep 8")
    a("s_sub_u32 s65, s65, 1")
    a("s_cmp_lg_u32 s65, 0")
    a("s_cbranch_scc1 L_l_kvpoll")
    a.label("L_l_kvok")
    l_kv_dma(a, base_imm=KVR[0])
    a("s_waitcnt vmcnt(16)")
    a("s_barrier")
    l_kv_dma(a, base_imm=KVR[1])
    a("s_waitcnt vmcnt(16)")
    a("s_barrier")
    l_kv_dma(a, base_imm=KVR[2])
    srd(a, S_WSRD, 48, 2 << 20)
    srd(a, S_XSRD, 52, WS_SIZE)
    a(f"s_lshl_b32 s60, s{S_LW}, 16")
    a(f"s_lshl_b32 s65, s3, 22")
    a(f"s_add_u32 s60, s60, s65")
    a(f"s_lshl_b32 s65, s4, 18")
    a(f"s_add_u32 s60, s60, s65")
    a(f"s_add_u32 s60, s60, {WS_O}")
    a(f"v_lshlrev_b32 v{t0}, 4, v{L}")
    a(f"v_add_u32 v{L_XOFF}, s60, v{t0}")
    a(f"s_lshl_b32 s{S_WSOFF}, s5, 18")
    a(f"s_lshl_b32 s{S_XSOFF}, s5, 13")
    a(f"s_add_u32 s{S_XSOFF}, s{S_XSOFF}, 8192")
    a(f"s_and_b32 s{S_XSOFF}, s{S_XSOFF}, 65535")
    a(f"v_lshrrev_b32 v{t1}, 1, v{L}")
    a("s_and_b32 s60, s4, 3")
    a("s_lshl_b32 s60, s60, 8")
    a(f"s_lshl_b32 s65, s{S_LW}, 6")
    a("s_add_u32 s60, s60, s65")
    a(f"v_add_u32 v{t1}, s60, v{t1}")
    a(f"v_lshlrev_b32 v{t1}, 11, v{t1}")
    a(f"v_and_b32 v{t2}, 1, v{L}")
    a(f"v_lshl_add_u32 v{t1}, v{t2}, 7, v{t1}")
    a("s_lshl_b32 s60, s5, 8")
    a(f"v_add_u32 v{t1}, s60, v{t1}")
    a("s_waitcnt vmcnt(16)")
    a("s_barrier")
    for j in range(1, 8):
        a("s_waitcnt vmcnt(8)")
        a("s_barrier")
        if j <= 5:
            l_kv_dma(a, base_imm=KVR[(j - 1) % 3])
        if j == 1 and opt("wopf", "1") == "1":
            a(f"buffer_load_dword v{L_TMP}, v{t1}, s[{S_WSRD}:{S_WSRD+3}], 0 offen")
            a(f"s_mov_b32 s60, {32*2048}")
            a(f"buffer_load_dword v{L_TMP}, v{t1}, s[{S_WSRD}:{S_WSRD+3}], s60 offen")
        if j == 6:
            l_dma_w(a, 4); l_dma_w(a, 0)
        if j == 7:
            l_dma_w(a, 1)
    a("s_waitcnt vmcnt(0)")
    a("s_barrier")
    l_dma_w(a, 2)
    a(f"v_add_u32 v{L_SNAP}, 1, v{L_SNAP}")
    a(f"s_cmp_eq_u32 s{S_LW}, 0")
    a("s_cbranch_scc0 L_l_noflag")
    a(f"v_cmp_eq_u32 vcc, s5, v{L}")
    a("s_nop 4")
    a("s_mov_b64 exec, vcc")
    a(f"buffer_store_dword v{L_SNAP}, v{L_FADDR}, s[{S_WSSRD}:{S_WSSRD+3}], 0 offen sc1")
    a("s_mov_b64 exec, -1")
    a.label("L_l_noflag")
    a("s_mov_b32 s65, 0x200000")
    a.label("L_l_opoll")
    a(f"buffer_load_dword v{L_TMP}, v{L_FADDR}, s[{S_WSSRD}:{S_WSSRD+3}], 0 offen sc1")
    a("s_waitcnt vmcnt(0)")
    a(f"v_cmp_eq_u32 vcc, v{L_TMP}, v{L_SNAP}")
    a("s_nop 4")
    a("s_cmp_eq_u64 vcc, -1")
    a("s_cbranch_scc1 L_l_owait")
    a(f"s_sleep {opt('sleep','4')}")
    a("s_sub_u32 s65, s65, 1")
    a("s_cmp_lg_u32 s65, 0")
    a("s_cbranch_scc1 L_l_opoll")
    a.label("L_l_owait")
    for c in (2, 3, 4):
        l_dma_x(a, 'o', (4 + c) % NSLOT)
    l_dma_w(a, (4 + 4) % NSLOT)
    a("s_waitcnt vmcnt(8)")
    a("s_barrier")
    l_dma_chunk(a, 'o', (4 + 5) % NSLOT)
    l_dma_chunk(a, 'o', (4 + 6) % NSLOT)
    for c in range(3, 12):
        a("s_waitcnt vmcnt(16)")
        a("s_barrier")
        l_dma_chunk(a, 'o', (4 + c + 4) % NSLOT)
    a("s_waitcnt vmcnt(16)")
    a("s_barrier")
    a("s_waitcnt vmcnt(8)")
    a("s_barrier")
    a("s_waitcnt vmcnt(0)")
    a("s_barrier")
    if PROF:
        stamp(a, 8)
        stamp_flush(a)
    a("s_endpgm")

def gen_main(a):
    name = KNAME
    a(f".globl {name}\n.p2align 8\n.type {name},@function")
    a.label(name)
    a("s_cmp_ge_u32 s2, 256")
    a("s_cbranch_scc1 L_end")
    a("s_and_b32 s4, s2, 7")
    a("s_lshr_b32 s5, s2, 3")
    a("s_lshr_b32 s3, s4, 2")
    a("s_and_b32 s4, s4, 3")
    a("s_lshl_b32 s4, s4, 2")
    a("s_lshr_b32 s6, s5, 3")
    a("s_add_u32 s4, s4, s6")
    a("s_and_b32 s5, s5, 7")
    load_args(a, 3)
    a("v_lshrrev_b32 v1, 6, v0")
    a(f"v_and_b32 v{V_LANE}, 63, v0")
    a(f"v_readfirstlane_b32 s{S_W}, v1")
    srd(a, S_WSSRD, 52, WS_SIZE)
    srd(a, S_XSRD, 40, 4 << 20)
    srd(a, S_WSRD, 42, 2 << 20)
    a("s_and_b32 s60, s5, 1")
    a("s_cmp_eq_u32 s60, 0")
    a("s_cselect_b32 s54, s44, s46")
    a("s_cselect_b32 s55, s45, s47")
    srd(a, S_KWSRD, 54, 65536)
    srd(a, S_OUTSRD, 50, 8 << 20)
    a("s_lshl_b32 s7, s4, 7")
    stamp_init(a); stamp(a, 0)
    a(f"s_cmp_ge_u32 s{S_W}, 8")
    a("s_cbranch_scc1 L_loader")
    gen_compute(a)
    a.label("L_loader")
    gen_loader(a)
    a.label("L_end")
    a("s_endpgm")
    return name, NVGPR, LDS_MAIN

def main(out_path):
    ref = open("cdna_kernels/" + NAME + ".s.ref").read().split("\n")
    header = [l for l in ref if l.startswith(";") and "@launch" not in l and "Override" not in l and "grid=ceil" not in l]
    a = Asm()
    name, vg, lds = gen_main(a)
    txt = "\n".join(header) + "\n"
    txt += f"; @launch grid=(256,1,1) block=(768,1,1) lds={lds}\n"
    txt += '.amdgcn_target "amdgcn-amd-amdhsa--gfx950"\n.text\n'
    txt += a.text()
    txt += '.section .rodata,"a"\n'
    txt += ".p2align 6\n" + kernel_desc(name, vg)
    open(out_path, "w").write(txt)
    nb = sum(1 for l in a.lines if l.strip() == "s_barrier")
    print("static barriers:", nb)

if __name__ == "__main__":
    if "--prof" in sys.argv:
        PROF = True
        sys.argv.remove("--prof")
    main(sys.argv[1] if len(sys.argv) > 1 else "cdna_kernels/" + NAME + ".s")
```

```python
import sys, math, os, struct
sys.path.insert(0, __file__.rsplit("/", 1)[0])
from asmlib import *

NAME = "concat_heads__grouped_kv_mqa__grouped_kv_mqa__prompt"
KNAME = NAME + "_kernel"
WS_KV = 0
WS_O = 1 << 20
WS_FLAG = 10 << 20
WS_SIZE = 268435456
CSCALE = math.log2(math.e) / math.sqrt(32.0)
def fbits(x): return "0x%08x" % struct.unpack("<I", struct.pack("<f", x))[0]
OPT = dict(kv.split("=") for kv in os.environ.get("GENOPT", "").split(",") if "=" in kv)
def opt(k, d): return OPT.get(k, d)

SLOT = 32768
NSLOT = 5
XPART = 16384
KVR = [32768, 65536, 98304]
PART = 131072
XSTG = 32768
WSTG0 = 98304
LDS_MAIN = 163840
NVGPR = 168

PROF = False
WS_PROF = 12 << 20
V_PROF = 167
S_WSSRD = 56
V_LANE = 2
def stamp(a, idx):
    if not PROF: return
    a("s_memtime s[92:93]")
    a("s_memrealtime s[94:95]")
    a("s_waitcnt lgkmcnt(0)")
    a(f"v_writelane_b32 v{V_PROF}, s92, {idx}")
    a(f"v_writelane_b32 v{V_PROF}, s94, {idx+32}")
def stamp_init(a):
    if not PROF: return
    a(f"v_mov_b32 v{V_PROF}, 0")
def stamp_flush(a):
    if not PROF: return
    a(f"s_mul_i32 s96, s2, 12")
    a(f"s_add_u32 s96, s96, s6")
    a(f"s_lshl_b32 s96, s96, 8")
    a(f"s_add_u32 s96, s96, {WS_PROF + (1<<20)}")
    a(f"v_lshlrev_b32 v{V_PROF-1}, 2, v{V_LANE}")
    a(f"buffer_store_dword v{V_PROF}, v{V_PROF-1}, s[{S_WSSRD}:{S_WSSRD+3}], s96 offen")
    a("s_waitcnt vmcnt(0)")

A_KVADDR = 1
A_SEL = 8
A_IDX = 12
A_Q = [16, 24]
A_O = [32, 48]
A_L = [64, 68]
A_S = [72, 88]
A_P = [104, 112]
A_K = [120, 128]
A_V = [136, 144]
A_T = 152
G_ACC = 32
G_AF = 72
G_BF = 104
G_TMP = 124
L_WOFF = 8
L_XOFF = 12
L_KVOFF = 16
L_DBG = 17
L_TMP = 18
L_SNAP = 19
L_FADDR = 20
L_T = 24
S_XSRD = 8
S_WSRD = 12
S_DBG = 36
S_W = 6
S_LW = 62
S_M0W = 63
S_M0X = 64
S_WSOFF = 66
S_XSOFF = 67
S_CNT = 69
S_T0 = 70
S_T1 = 71
S_KVSOFF = 73
S_OUTSRD = 84
S_KWSRD = 88
S_OOFF = 61
XFLAG = "nt" if opt("xnt", "1") == "1" else ""

def load_args(a, p_sgpr):
    a("s_load_dwordx16 s[16:31], s[0:1], 0")
    a("s_load_dwordx4 s[32:35], s[0:1], 64")
    a("s_load_dwordx2 s[50:51], s[0:1], 80")
    a(f"s_load_dwordx2 s[{S_DBG}:{S_DBG+1}], s[0:1], 88")
    a("s_load_dwordx2 s[52:53], s[0:1], 96")
    a("s_waitcnt lgkmcnt(0)")
    a(f"s_cmp_eq_u32 s{p_sgpr}, 0")
    for i in range(5):
        for h in range(2):
            a(f"s_cselect_b32 s{40+2*i+h}, s{16+2*i+h}, s{26+2*i+h}")

G_AB = 128
G_BB = 130
G_AC = 134
G_AN = 136
G_BD = 138
S_CUR = 75
S_NXT = 76
PD = int(opt("pd", "3"))
GPRIO = opt("gprio", "1") == "1"
def gemm_addr(a, mode):
    lane = V_LANE
    t0, t1, t2, t3 = G_TMP, G_TMP+1, G_TMP+2, G_TMP+3
    a(f"v_bfe_u32 v{t0}, v{lane}, 2, 2")
    a(f"v_lshrrev_b32 v{t1}, 5, v{lane}")
    a(f"v_lshl_add_u32 v{t1}, v{t1}, {3 if mode=='q' else 2}, v{t0}")
    a(f"v_lshlrev_b32 v{t1}, 8, v{t1}")
    a(f"v_bfe_u32 v{t2}, v{lane}, 4, 1")
    a(f"v_lshl_add_u32 v{t1}, v{t2}, 5, v{t1}")
    a(f"v_and_b32 v{t2}, 3, v{lane}")
    a(f"v_lshl_add_u32 v{t1}, v{t2}, 3, v{t1}")
    a(f"s_lshr_b32 s{S_T0}, s{S_W}, 2")
    a(f"s_lshl_b32 s{S_T0}, s{S_T0}, 1")
    for hd in range(2):
        a(f"s_add_u32 s{S_CNT}, s{S_T0}, {hd}")
        a(f"v_xor_b32 v{t2}, s{S_CNT}, v{t0}")
        a(f"v_lshl_add_u32 v{G_AB+hd}, v{t2}, 6, v{t1}")
    if mode == 'q':
        a(f"s_and_b32 s{S_T0}, s{S_W}, 3")
        a(f"s_lshl_b32 s{S_T0}, s{S_T0}, 5")
        a(f"v_and_b32 v{t0}, 31, v{lane}")
        a(f"v_add_u32 v{t0}, s{S_T0}, v{t0}")
        a(f"v_bfe_u32 v{t1}, v{t0}, 1, 3")
        a(f"v_lshrrev_b32 v{t2}, 5, v{lane}")
        a(f"v_lshlrev_b32 v{t0}, 7, v{t0}")
        a(f"v_add_u32 v{t0}, {XPART}, v{t0}")
        for j in range(4):
            a(f"v_or_b32 v{t3}, {2*j}, v{t2}")
            a(f"v_xor_b32 v{t3}, v{t3}, v{t1}")
            a(f"v_lshl_add_u32 v{G_BB+j}, v{t3}, 4, v{t0}")
    else:
        a(f"s_and_b32 s{S_T0}, s{S_W}, 3")
        a(f"s_lshl_b32 s{S_T0}, s{S_T0}, 12")
        a(f"s_add_u32 s{S_T0}, s{S_T0}, {XPART}")
        a(f"v_lshlrev_b32 v{t0}, 4, v{lane}")
        a(f"v_add_u32 v{t0}, s{S_T0}, v{t0}")
        for j in range(4):
            a(f"v_add_u32 v{G_BB+j}, {j*1024}, v{t0}")

def gemm_reads(a, mode, j, nxt):
    if mode == 'o' and opt("noreads", "0") == "1": return
    af = G_AF + 8*j
    bf = G_BF + 4*j
    second = 1024 if mode == 'q' else 2048
    A = G_AN if nxt else G_AC
    a(f"ds_read_b128 {vr(bf,4)}, v{G_BD+j}")
    for hd in range(2):
        a(f"ds_read_b64_tr_b16 {vr(af+4*hd,2)}, v{A+hd} offset:{j*4096}")
        a(f"ds_read_b64_tr_b16 {vr(af+4*hd+2,2)}, v{A+hd} offset:{j*4096 + second}")

def set_slots(a):
    for hd in range(2): a(f"v_add_u32 v{G_AC+hd}, s{S_CUR}, v{G_AB+hd}")
    for hd in range(2): a(f"v_add_u32 v{G_AN+hd}, s{S_NXT}, v{G_AB+hd}")
    for j in range(4):
        a(f"v_add_u32 v{G_BD+j}, s{S_CUR if j >= PD else S_NXT}, v{G_BB+j}")
def adv_slots(a):
    a(f"s_mov_b32 s{S_CUR}, s{S_NXT}")
    a(f"s_add_u32 s{S_NXT}, s{S_NXT}, {SLOT}")
    a(f"s_cmp_eq_u32 s{S_NXT}, {SLOT*NSLOT}")
    a(f"s_cselect_b32 s{S_NXT}, 0, s{S_NXT}")

def c_gemm_chunk(a, mode, barrier, next_reads):
    if barrier:
        if PROF and opt("chunkprof", "") == mode:
            a("s_memtime s[92:93]")
        a("s_barrier")
        if PROF and opt("chunkprof", "") == mode:
            a("s_memtime s[94:95]")
            a(f"s_sub_u32 m0, 26, s{S_CNT}")
            a("s_waitcnt lgkmcnt(0)")
            a(f"v_writelane_b32 v{V_PROF}, s92, m0")
            a(f"s_add_u32 m0, m0, 16")
            a("s_nop 3")
            a(f"v_writelane_b32 v{V_PROF}, s94, m0")
    for j in range(4):
        if GPRIO: a(f"s_setprio {3 - j}")
        ahead = PD - 1 if next_reads else min(PD - 1, 3 - j)
        a(f"s_waitcnt lgkmcnt({5*ahead})")
        af = G_AF + 8*j; bf = G_BF + 4*j
        jn = j + PD
        R = Asm()
        if jn < 4:
            gemm_reads(R, mode, jn, False)
        elif next_reads:
            gemm_reads(R, mode, jn - 4, True)
        rl = R.lines
        for hd in range(2):
            acc = G_ACC + 16*hd
            a(f"v_mfma_f32_32x32x16_bf16 {vr(acc,16)}, {vr(af+4*hd,4)}, {vr(bf,4)}, {vr(acc,16)}")
            if hd == 0: a.lines.extend(rl[:2])
        a.lines.extend(rl[2:])
        if j == 3 and next_reads:
            adv_slots(a)
            set_slots(a)

def c_gemm(a, mode, tag, first_slot):
    for i in range(32):
        a(f"v_mov_b32 v{G_ACC+i}, 0")
    a(f"s_mov_b32 s{S_NXT}, {first_slot*SLOT}")
    a(f"s_mov_b32 s{S_CUR}, 0")
    set_slots(a)
    a("s_barrier")
    for j in range(PD):
        gemm_reads(a, mode, j, True)
    adv_slots(a)
    set_slots(a)
    a(f"s_mov_b32 s{S_CNT}, 15")
    a(".p2align 6")
    a.label(f"L_{tag}_loop")
    c_gemm_chunk(a, mode, True, True)
    a(f"s_sub_u32 s{S_CNT}, s{S_CNT}, 1")
    a(f"s_cmp_lg_u32 s{S_CNT}, 0")
    a(f"s_cbranch_scc1 L_{tag}_loop")
    c_gemm_chunk(a, mode, False, False)
    if GPRIO: a("s_setprio 0")

def attn_step(a, t, r, read, off, do_qk=True):
    S = A_S[r]; Sn = A_S[r ^ 1]
    P = A_P[r]; Pp = A_P[r ^ 1]
    tn = t if r == 0 else t + 1
    Kn = A_K[tn & 1]; Qn = A_Q[r ^ 1]
    tp = t - 1 if r == 0 else t
    Vp = A_V[tp & 1]; Op = A_O[r ^ 1]; Lp = A_L[r ^ 1]
    E = lambda i: a(f"v_exp_f32 v{S+i}, v{S+i}")
    C = lambda i: a(f"v_cvt_pk_bf16_f32 v{P+i//2}, v{S+i}, v{S+i+1}")
    def RD(i):
        if read == 'K': a(f"ds_read_b128 {vr(A_K[(t+1)&1]+4*i,4)}, v{A_KVADDR} offset:{off+1024*i}")
        if read == 'V': a(f"ds_read_b128 {vr(A_V[(t+1)&1]+4*i,4)}, v{A_KVADDR} offset:{off+2048+1024*i}")
    if do_qk: a(f"v_mfma_f32_32x32x16_bf16 {vr(Sn,16)}, {vr(Kn,4)}, {vr(Qn,4)}, 0")
    RD(0)
    E(0); E(1); E(2); E(3)
    if do_qk: a(f"v_mfma_f32_32x32x16_bf16 {vr(Sn,16)}, {vr(Kn+4,4)}, {vr(Qn+4,4)}, {vr(Sn,16)}")
    RD(1)
    E(4); E(5); E(6); C(0); C(2)
    a(f"v_mfma_f32_32x32x16_bf16 {vr(Op,16)}, {vr(Vp,4)}, {vr(Pp,4)}, {vr(Op,16)}")
    E(7); E(8); E(9); C(4); C(6)
    a(f"v_mfma_f32_32x32x16_bf16 {vr(Op,16)}, {vr(Vp+4,4)}, {vr(Pp+4,4)}, {vr(Op,16)}")
    E(10); E(11); E(12); C(8); C(10)
    a(f"v_smfmac_f32_16x16x64_bf16 {vr(Lp,4)}, {vr(A_SEL,4)}, {vr(Pp,8)}, v{A_IDX}")
    E(13); E(14); E(15); C(12); C(14)

def slow_path(a, r):
    Q = A_Q[r]; O = A_O[r]; L = A_L[r]
    S = A_S[0]; NM = A_S[1]; P = A_P[0]; K = A_K[0]; V = A_V[0]
    M = A_T + 4; ADDR = A_T + 5
    l1 = a.newlabel("slow1"); l2 = a.newlabel("slow2")
    a(f"v_lshlrev_b32 v{ADDR}, 4, v{V_LANE}")
    a(f"s_lshl_b32 s60, s3, 18")
    if WS_KV: a(f"s_add_u32 s60, s60, {WS_KV}")
    a(f"s_mov_b32 s62, 64")
    a(f"v_mov_b32 v{M}, 0xff800000")
    a.label(l1)
    a(f"buffer_load_dwordx4 {vr(K,4)}, v{ADDR}, s[{S_WSSRD}:{S_WSSRD+3}], s60 offen sc1")
    a(f"buffer_load_dwordx4 {vr(K+4,4)}, v{ADDR}, s[{S_WSSRD}:{S_WSSRD+3}], s60 offen offset:1024 sc1")
    a("s_waitcnt vmcnt(0)")
    a(f"v_mfma_f32_32x32x16_bf16 {vr(S,16)}, {vr(K,4)}, {vr(Q,4)}, 0")
    a(f"v_mfma_f32_32x32x16_bf16 {vr(S,16)}, {vr(K+4,4)}, {vr(Q+4,4)}, {vr(S,16)}")
    a.nop(16)
    for i in range(8):
        a(f"v_max3_f32 v{M}, v{S+2*i}, v{S+2*i+1}, v{M}")
    a("s_add_u32 s60, s60, 4096")
    a("s_sub_u32 s62, s62, 1")
    a("s_cmp_lg_u32 s62, 0")
    a(f"s_cbranch_scc1 {l1}")
    a(f"v_mov_b32 v{M+2}, v{M}")
    a("s_nop 1")
    a(f"v_permlane32_swap_b32 v{M+2}, v{M}")
    a("s_nop 1")
    a(f"v_max_f32 v{M}, v{M}, v{M+2}")
    a(f"v_sub_f32 v{M}, 0, v{M}")
    for i in range(16): a(f"v_mov_b32 v{NM+i}, v{M}")
    for i in range(16): a(f"v_mov_b32 v{O+i}, 0")
    for i in range(4): a(f"v_mov_b32 v{L+i}, 0")
    a(f"s_lshl_b32 s60, s3, 18")
    if WS_KV: a(f"s_add_u32 s60, s60, {WS_KV}")
    a(f"s_mov_b32 s62, 64")
    a.label(l2)
    a(f"buffer_load_dwordx4 {vr(K,4)}, v{ADDR}, s[{S_WSSRD}:{S_WSSRD+3}], s60 offen sc1")
    a(f"buffer_load_dwordx4 {vr(K+4,4)}, v{ADDR}, s[{S_WSSRD}:{S_WSSRD+3}], s60 offen offset:1024 sc1")
    a(f"buffer_load_dwordx4 {vr(V,4)}, v{ADDR}, s[{S_WSSRD}:{S_WSSRD+3}], s60 offen offset:2048 sc1")
    a(f"buffer_load_dwordx4 {vr(V+4,4)}, v{ADDR}, s[{S_WSSRD}:{S_WSSRD+3}], s60 offen offset:3072 sc1")
    a("s_waitcnt vmcnt(0)")
    a(f"v_mfma_f32_32x32x16_bf16 {vr(S,16)}, {vr(K,4)}, {vr(Q,4)}, {vr(NM,16)}")
    a(f"v_mfma_f32_32x32x16_bf16 {vr(S,16)}, {vr(K+4,4)}, {vr(Q+4,4)}, {vr(S,16)}")
    a.nop(16)
    for i in range(16): a(f"v_exp_f32 v{S+i}, v{S+i}")
    a("s_nop 1")
    for i in range(8): a(f"v_cvt_pk_bf16_f32 v{P+i}, v{S+2*i}, v{S+2*i+1}")
    a("s_nop 2")
    a(f"v_mfma_f32_32x32x16_bf16 {vr(O,16)}, {vr(V,4)}, {vr(P,4)}, {vr(O,16)}")
    a(f"v_mfma_f32_32x32x16_bf16 {vr(O,16)}, {vr(V+4,4)}, {vr(P+4,4)}, {vr(O,16)}")
    a(f"v_smfmac_f32_16x16x64_bf16 {vr(L,4)}, {vr(A_SEL,4)}, {vr(P,8)}, v{A_IDX}")
    a.nop(16)
    a("s_add_u32 s60, s60, 4096")
    a("s_sub_u32 s62, s62, 1")
    a("s_cmp_lg_u32 s62, 0")
    a(f"s_cbranch_scc1 {l2}")

def gen_compute(a):
    KX = 32; KACC = 64; KW = 80
    a(f"v_and_b32 v20, 31, v{V_LANE}")
    a(f"v_lshrrev_b32 v21, 5, v{V_LANE}")
    a(f"v_and_b32 v22, 15, v{V_LANE}")
    a(f"s_lshl_b32 s60, s{S_W}, 13")
    a(f"s_add_u32 s60, s60, {XSTG}")
    a("v_lshlrev_b32 v20, 8, v20")
    a("v_add_u32 v20, s60, v20")
    for s in range(8):
        a(f"v_or_b32 v23, {2*s}, v21")
        a("v_xor_b32 v23, v23, v22")
        a(f"v_lshl_add_u32 v{24+s}, v23, 4, v20")
    a(f"s_lshl_b32 s60, s{S_W}, 13")
    a(f"s_add_u32 s62, s60, {WSTG0}")
    a(f"v_bfe_u32 v16, v{V_LANE}, 2, 2")
    a("v_lshl_add_u32 v16, v21, 3, v16")
    a("v_lshlrev_b32 v16, 6, v16")
    a(f"v_bfe_u32 v17, v{V_LANE}, 4, 1")
    a("v_lshl_add_u32 v16, v17, 5, v16")
    a(f"v_and_b32 v17, 3, v{V_LANE}")
    a("v_lshl_add_u32 v16, v17, 3, v16")
    a("v_add_u32 v16, s62, v16")
    for i in range(16):
        a(f"v_mov_b32 v{KACC+i}, 0")
    gemm_addr(a, 'q')
    a(f"v_lshlrev_b32 v18, 4, v{V_LANE}")
    a(f"s_lshl_b32 s60, s{S_W}, 12")
    a(f"s_add_u32 s60, s60, {PART}")
    a("v_add_u32 v19, s60, v18")
    stamp(a, 9)
    a("s_barrier")
    stamp(a, 10)
    for s in range(8):
        a(f"ds_read_b128 {vr(KX+4*s,4)}, v{24+s}")
        a(f"ds_read_b64_tr_b16 {vr(KW+4*s,2)}, v16 offset:{1024*s}")
        a(f"ds_read_b64_tr_b16 {vr(KW+4*s+2,2)}, v16 offset:{1024*s+256}")
        if s in (1, 3, 5): a("s_waitcnt lgkmcnt(6)")
    a("s_and_b32 s60, s5, 1")
    a("s_cmp_eq_u32 s60, 0")
    a("s_waitcnt lgkmcnt(0)")
    a("s_barrier")
    if PROF:
        a("s_cselect_b32 s97, 1, 0")
        stamp(a, 11)
        a("s_cmp_eq_u32 s97, 1")
    a("s_cbranch_scc0 L_kv_isv")
    for s in range(8):
        a(f"v_mfma_f32_32x32x16_bf16 {vr(KACC,16)}, {vr(KW+4*s,4)}, {vr(KX+4*s,4)}, {vr(KACC,16)}")
    a("s_branch L_kv_red")
    a.label("L_kv_isv")
    for s in range(8):
        a(f"v_mfma_f32_32x32x16_bf16 {vr(KACC,16)}, {vr(KX+4*s,4)}, {vr(KW+4*s,4)}, {vr(KACC,16)}")
    a.label("L_kv_red")
    a.nop(16)
    for q in range(4):
        a(f"ds_write_b128 v19, {vr(KACC+4*q,4)} offset:{1024*q}")
    a("s_waitcnt lgkmcnt(0)")
    a("s_barrier")
    stamp(a, 1)
    c_gemm(a, 'q', "q", 0)
    stamp(a, 2)
    a(f"s_mov_b32 s{S_T0}, {fbits(CSCALE)}")
    a(f"v_and_b32 v{A_T}, 6, v{V_LANE}")
    a(f"v_mov_b32 v{A_T+1}, 0x3f803f80")
    a(f"v_cmp_eq_u32 vcc, 0, v{A_T}")
    a("s_nop 1")
    a(f"v_cndmask_b32 v{A_SEL}, 0, v{A_T+1}, vcc")
    a(f"v_cndmask_b32 v{A_SEL+1}, 0, v{A_T+1}, vcc")
    a(f"v_cmp_eq_u32 vcc, 4, v{A_T}")
    a("s_nop 1")
    a(f"v_cndmask_b32 v{A_SEL+2}, 0, v{A_T+1}, vcc")
    a(f"v_cndmask_b32 v{A_SEL+3}, 0, v{A_T+1}, vcc")
    a(f"v_and_b32 v{A_T}, 1, v{V_LANE}")
    a(f"v_mov_b32 v{A_T+1}, 0x4444")
    a(f"v_mov_b32 v{A_T+2}, 0xeeee")
    a(f"v_cmp_eq_u32 vcc, 0, v{A_T}")
    a("s_nop 1")
    a(f"v_cndmask_b32 v{A_IDX}, v{A_T+2}, v{A_T+1}, vcc")
    for i in range(32):
        a(f"v_mul_f32 v{G_ACC+i}, s{S_T0}, v{G_ACC+i}")
    for hd in range(2):
        for d in range(8):
            a(f"v_cvt_pk_bf16_f32 v{A_Q[hd]+d}, v{G_ACC+16*hd+2*d}, v{G_ACC+16*hd+2*d+1}")
    a("s_barrier")
    a(f"v_lshlrev_b32 v{A_KVADDR}, 4, v{V_LANE}")
    a(f"v_add_u32 v{A_KVADDR}, {KVR[0]}, v{A_KVADDR}")
    for i in range(2):
        a(f"ds_read_b128 {vr(A_K[0]+4*i,4)}, v{A_KVADDR} offset:{1024*i}")
    for i in range(2):
        a(f"ds_read_b128 {vr(A_V[0]+4*i,4)}, v{A_KVADDR} offset:{2048+1024*i}")
    for r in range(2):
        for i in range(16): a(f"v_mov_b32 v{A_O[r]+i}, 0")
        for i in range(4): a(f"v_mov_b32 v{A_L[r]+i}, 0")
    for i in range(8): a(f"v_mov_b32 v{A_P[1]+i}, 0")
    for i in range(8): a(f"v_mov_b32 v{A_V[1]+i}, 0")
    a("s_waitcnt lgkmcnt(0)")
    a(f"v_mfma_f32_32x32x16_bf16 {vr(A_S[0],16)}, {vr(A_K[0],4)}, {vr(A_Q[0],4)}, 0")
    a(f"v_mfma_f32_32x32x16_bf16 {vr(A_S[0],16)}, {vr(A_K[0]+4,4)}, {vr(A_Q[0]+4,4)}, {vr(A_S[0],16)}")
    a(f"s_lshl_b32 s{S_OOFF}, s3, 22")
    a(f"s_add_u32 s{S_OOFF}, s{S_OOFF}, {WS_O}")
    a("s_lshl_b32 s60, s4, 2")
    a(f"s_and_b32 s62, s{S_W}, 3")
    a("s_add_u32 s60, s60, s62")
    a("s_lshl_b32 s60, s60, 16")
    a(f"s_add_u32 s{S_OOFF}, s{S_OOFF}, s60")
    a("s_lshl_b32 s60, s5, 2")
    a(f"s_lshr_b32 s62, s{S_W}, 2")
    a("s_lshl_b32 s62, s62, 1")
    a("s_add_u32 s60, s60, s62")
    a("s_lshl_b32 s60, s60, 11")
    a(f"s_add_u32 s{S_OOFF}, s{S_OOFF}, s60")
    a(f"s_mov_b32 s75, {KVR[0]}")
    a(f"s_mov_b32 s76, {KVR[1]}")
    a(f"s_mov_b32 s77, {KVR[2]}")
    a(f"s_mov_b32 s{S_CNT}, 0")
    a.nop(4)
    stamp(a, 3)
    a("s_branch L_att_entry")
    a(".p2align 6")
    a.label("L_att_loop")
    a("s_waitcnt lgkmcnt(0)")
    a("s_barrier")
    a("s_mov_b32 s60, s75")
    a("s_mov_b32 s75, s76")
    a("s_mov_b32 s76, s77")
    a("s_mov_b32 s77, s60")
    a(f"v_lshlrev_b32 v{A_KVADDR}, 4, v{V_LANE}")
    a(f"v_add_u32 v{A_KVADDR}, s75, v{A_KVADDR}")
    for i in range(8):
        t = i - 1
        if i == 1:
            a.label("L_att_entry")
        for r in range(2):
            if r == 1:
                a("s_waitcnt lgkmcnt(0)")
            ap = opt("aprio", "1")
            if ap == "1" and r == 0 and i % 2 == 0: a(f"s_setprio {3 - i//2}")
            if ap == "2" and r == 0 and i % 4 == 0: a(f"s_setprio {1 - i//4}")
            if ap == "3" and r == 0: a(f"s_setprio {3 - (i % 4)}")
            attn_step(a, t & 1 if t >= 0 else 1, r, 'K' if r == 0 else 'V', i*4096)
    a(f"s_add_u32 s{S_CNT}, s{S_CNT}, 1")
    a(f"s_cmp_lt_u32 s{S_CNT}, 8")
    a("s_cbranch_scc1 L_att_loop")
    attn_step(a, 1, 0, None, 0)
    a("s_waitcnt lgkmcnt(0)")
    attn_step(a, 1, 1, None, 0, do_qk=False)
    a("s_nop 1")
    Vp = A_V[1]; Pp = A_P[1]
    a(f"v_mfma_f32_32x32x16_bf16 {vr(A_O[1],16)}, {vr(Vp,4)}, {vr(Pp,4)}, {vr(A_O[1],16)}")
    a(f"v_mfma_f32_32x32x16_bf16 {vr(A_O[1],16)}, {vr(Vp+4,4)}, {vr(Pp+4,4)}, {vr(A_O[1],16)}")
    a(f"v_smfmac_f32_16x16x64_bf16 {vr(A_L[1],4)}, {vr(A_SEL,4)}, {vr(Pp,8)}, v{A_IDX}")
    stamp(a, 4)
    a.nop(16)
    a(f"s_mov_b32 s78, {fbits(2.0**-64)}")
    a(f"s_mov_b32 s79, {fbits(2.0**64)}")
    for r in range(2):
        ok = a.newlabel("rb_ok")
        a(f"v_add_f32 v{A_T}, v{A_L[r]}, v{A_L[r]+1}")
        a(f"v_mov_b32 v{A_T+3}, 0")
        for i in range(16):
            a(f"v_fma_f32 v{A_T+3}, v{A_O[r]+i}, 0, v{A_T+3}")
        a(f"v_cmp_le_f32 vcc, s78, v{A_T}")
        a(f"v_cmp_ge_f32 s[80:81], s79, v{A_T}")
        a(f"v_cmp_o_f32 s[82:83], v{A_T+3}, v{A_T+3}")
        a("s_nop 4")
        a("s_and_b64 s[80:81], s[80:81], vcc")
        a("s_and_b64 s[80:81], s[80:81], s[82:83]")
        a("s_cmp_eq_u64 s[80:81], -1")
        if opt("forceslow", "0") == "1": a("s_cmp_eq_u32 s3, 77")
        a(f"s_cbranch_scc1 {ok}")
        slow_path(a, r)
        a(f"v_add_f32 v{A_T}, v{A_L[r]}, v{A_L[r]+1}")
        a.label(ok)
        a(f"v_rcp_f32 v{A_T+1}, v{A_T}")
        a("s_nop 0")
        for i in range(16):
            a(f"v_mul_f32 v{A_O[r]+i}, v{A_T+1}, v{A_O[r]+i}")
    a(f"v_lshlrev_b32 v{A_T+2}, 4, v{V_LANE}")
    for r in range(2):
        for d in range(8):
            a(f"v_cvt_pk_bf16_f32 v{A_S[r]+d}, v{A_O[r]+2*d}, v{A_O[r]+2*d+1}")
        a(f"buffer_store_dwordx4 {vr(A_S[r],4)}, v{A_T+2}, s[{S_WSSRD}:{S_WSSRD+3}], s{S_OOFF} offen offset:{2048*r} sc1")
        a(f"buffer_store_dwordx4 {vr(A_S[r]+4,4)}, v{A_T+2}, s[{S_WSSRD}:{S_WSSRD+3}], s{S_OOFF} offen offset:{2048*r+1024} sc1")
    a(f"s_lshr_b32 s60, s{S_W}, 2")
    a("s_cmp_eq_u32 s60, 0")
    a(f"s_cselect_b32 s60, {4*SLOT}, 0")
    a(f"s_add_u32 s60, s60, {XPART}")
    a(f"s_and_b32 s62, s{S_W}, 3")
    a("s_lshl_b32 s62, s62, 12")
    a("s_add_u32 s60, s60, s62")
    a(f"v_add_u32 v{A_T+3}, s60, v{A_T+2}")
    for r in range(2):
        for i in range(2):
            a(f"ds_write_b128 v{A_T+3}, {vr(A_S[r]+4*i,4)} offset:{r*2048 + i*1024}")
    gemm_addr(a, 'o')
    for i in range(32):
        a(f"v_mov_b32 v{G_ACC+i}, 0")
    a(f"s_mov_b32 s{S_NXT}, {4*SLOT}")
    a(f"s_mov_b32 s{S_CUR}, 0")
    set_slots(a)
    a("s_waitcnt vmcnt(0) lgkmcnt(0)")
    a("s_barrier")
    stamp(a, 5)
    for j in range(PD):
        gemm_reads(a, 'o', j, True)
    adv_slots(a); set_slots(a)
    c_gemm_chunk(a, 'o', False, True)
    c_gemm_chunk(a, 'o', False, False)
    a(f"s_mov_b32 s{S_NXT}, {1*SLOT}")
    set_slots(a)
    a("s_barrier")
    stamp(a, 6)
    for j in range(PD):
        gemm_reads(a, 'o', j, True)
    adv_slots(a); set_slots(a)
    c_gemm_chunk(a, 'o', False, True)
    a(f"s_mov_b32 s{S_CNT}, 12")
    a(".p2align 6")
    a.label("L_o_loop")
    c_gemm_chunk(a, 'o', True, True)
    a(f"s_sub_u32 s{S_CNT}, s{S_CNT}, 1")
    a(f"s_cmp_lg_u32 s{S_CNT}, 0")
    a("s_cbranch_scc1 L_o_loop")
    c_gemm_chunk(a, 'o', False, False)
    if GPRIO: a("s_setprio 0")
    stamp(a, 7)
    a(f"s_lshl_b32 s7, s4, 7")
    a(f"s_and_b32 s60, s{S_W}, 3")
    a(f"s_lshl_b32 s60, s60, 5")
    a(f"s_add_u32 s7, s7, s60")
    a(f"s_lshl_b32 s7, s7, 12")
    a(f"s_lshl_b32 s60, s3, 11")
    a(f"s_add_u32 s7, s7, s60")
    a(f"s_lshl_b32 s60, s5, 8")
    a(f"s_add_u32 s7, s7, s60")
    a(f"s_lshr_b32 s60, s{S_W}, 2")
    a(f"s_lshl_b32 s60, s60, 7")
    a(f"s_add_u32 s7, s7, s60")
    t = G_TMP
    if opt("cst", "1") == "1":
        OST = 32768; RS = 144
        a(f"s_mul_i32 s60, s{S_W}, {32*RS}")
        a(f"s_add_u32 s60, s60, {OST}")
        a(f"v_and_b32 v{t}, 31, v{V_LANE}")
        a(f"v_mul_u32_u24 v{t}, {RS}, v{t}")
        a(f"v_lshrrev_b32 v{t+1}, 5, v{V_LANE}")
        a(f"v_lshl_add_u32 v{t}, v{t+1}, 4, v{t}")
        a(f"v_add_u32 v{t}, s60, v{t}")
        a(f"v_lshrrev_b32 v{t+1}, 3, v{V_LANE}")
        a(f"v_mul_u32_u24 v{t+2}, {RS}, v{t+1}")
        a(f"v_and_b32 v{t+3}, 7, v{V_LANE}")
        a(f"v_lshl_add_u32 v{t+2}, v{t+3}, 4, v{t+2}")
        a(f"v_add_u32 v{t+2}, s60, v{t+2}")
        a(f"v_lshlrev_b32 v{t+1}, 12, v{t+1}")
        a(f"v_lshl_add_u32 v{t+1}, v{t+3}, 4, v{t+1}")
        for hd in range(2):
            for d in range(8):
                a(f"v_cvt_pk_bf16_f32 v{G_AF+8*hd+d}, v{G_ACC+16*hd+2*d}, v{G_ACC+16*hd+2*d+1}")
        a("s_nop 1")
        for hd in range(2):
            for qd in range(2):
                b = G_AF + 8*hd + 4*qd
                a(f"v_permlane32_swap_b32 v{b}, v{b+2}")
                a(f"v_permlane32_swap_b32 v{b+1}, v{b+3}")
        a("s_nop 1")
        for hd in range(2):
            for qd in range(2):
                b = G_AF + 8*hd + 4*qd
                a(f"ds_write_b128 v{t}, {vr(b,4)} offset:{hd*64 + qd*32}")
        a("s_waitcnt lgkmcnt(0)")
        for i in range(4):
            a(f"ds_read_b128 {vr(G_BF+4*i,4)}, v{t+2} offset:{8*i*RS}")
        for i in range(4):
            a(f"s_waitcnt lgkmcnt({3-i})")
            a(f"buffer_store_dwordx4 {vr(G_BF+4*i,4)}, v{t+1}, s[{S_OUTSRD}:{S_OUTSRD+3}], s7 offen {opt('outf','nt')}")
            if i < 3: a(f"s_add_u32 s7, s7, {8*4096}")
    else:
        a(f"v_and_b32 v{t}, 31, v{V_LANE}")
        a(f"v_lshlrev_b32 v{t}, 12, v{t}")
        a(f"v_lshrrev_b32 v{t+1}, 5, v{V_LANE}")
        a(f"v_lshl_add_u32 v{t}, v{t+1}, 4, v{t}")
        a.nop(8)
        for hd in range(2):
            for d in range(8):
                a(f"v_cvt_pk_bf16_f32 v{G_AF+8*hd+d}, v{G_ACC+16*hd+2*d}, v{G_ACC+16*hd+2*d+1}")
        a("s_nop 1")
        for hd in range(2):
            for qd in range(2):
                b = G_AF + 8*hd + 4*qd
                a(f"v_permlane32_swap_b32 v{b}, v{b+2}")
                a(f"v_permlane32_swap_b32 v{b+1}, v{b+3}")
        a("s_nop 1")
        for hd in range(2):
            for qd in range(2):
                b = G_AF + 8*hd + 4*qd
                a(f"buffer_store_dwordx4 {vr(b,4)}, v{t}, s[{S_OUTSRD}:{S_OUTSRD+3}], s7 offen offset:{hd*64 + qd*32}")
    if PROF:
        a("s_waitcnt vmcnt(0)")
        stamp(a, 8)
        stamp_flush(a)
    a("s_endpgm")

def l_dma_w(a, slot):
    a(f"s_add_u32 m0, s{S_M0W}, {slot*SLOT}")
    a("s_nop 0")
    for j in range(4):
        a(f"buffer_load_dwordx4 v{L_WOFF+j}, s[{S_WSRD}:{S_WSRD+3}], s{S_WSOFF} offen offset:{1024*j} {opt('wf','')} lds")
    a(f"s_add_u32 s{S_WSOFF}, s{S_WSOFF}, {64*2048}")
    a(f"s_and_b32 s{S_WSOFF}, s{S_WSOFF}, 0x1fffff")
def l_dma_x(a, mode, slot):
    a(f"s_add_u32 m0, s{S_M0X}, {slot*SLOT}")
    a("s_nop 0")
    for j in range(4):
        if mode == 'q':
            a(f"buffer_load_dwordx4 v{L_XOFF+j}, s[{S_XSRD}:{S_XSRD+3}], s{S_XSOFF} offen offset:{1024*j} {XFLAG} lds")
        else:
            a(f"buffer_load_dwordx4 v{L_XOFF}, s[{S_XSRD}:{S_XSRD+3}], s{S_XSOFF} offen offset:{1024*j} sc1 lds")
    a(f"s_add_u32 s{S_XSOFF}, s{S_XSOFF}, {128 if mode == 'q' else 4096}")
    a(f"s_and_b32 s{S_XSOFF}, s{S_XSOFF}, {2047 if mode == 'q' else 65535}")
def l_dma_chunk(a, mode, slot):
    if mode == 'o' and opt("nodma", "0") == "1": return
    l_dma_w(a, slot); l_dma_x(a, mode, slot)
def l_kv_dma(a, base_imm=None, base_sgpr=None):
    if base_imm is not None:
        a(f"s_add_u32 m0, s{S_T1}, {base_imm}")
    else:
        a(f"s_add_u32 m0, s{S_T1}, s{base_sgpr}")
    a("s_nop 0")
    for j in range(4):
        a(f"buffer_load_dwordx4 v{L_KVOFF}, s[{S_WSSRD}:{S_WSSRD+3}], s{S_KVSOFF} offen offset:{1024*j} sc1 lds")
    a("s_add_u32 m0, m0, 4096")
    a(f"s_add_u32 s60, s{S_KVSOFF}, 4096")
    for j in range(4):
        a(f"buffer_load_dwordx4 v{L_KVOFF}, s[{S_WSSRD}:{S_WSSRD+3}], s60 offen offset:{1024*j} sc1 lds")
    a(f"s_add_u32 s{S_KVSOFF}, s{S_KVSOFF}, 32768")

def gen_loader(a):
    L = V_LANE
    t0, t1, t2, t3 = L_T, L_T+1, L_T+2, L_T+3
    a(f"s_sub_u32 s{S_LW}, s{S_W}, 8")
    a("s_lshl_b32 s60, s3, 4")
    a("s_add_u32 s60, s60, s4")
    a("s_lshl_b32 s60, s60, 10")
    a(f"s_add_u32 s60, s60, {WS_FLAG}")
    a(f"v_and_b32 v{L_FADDR}, 7, v{L}")
    a(f"v_lshlrev_b32 v{L_FADDR}, 7, v{L_FADDR}")
    a(f"v_add_u32 v{L_FADDR}, s60, v{L_FADDR}")
    a("s_lshr_b32 s60, s5, 1")
    a("s_lshl_b32 s60, s60, 5")
    a("s_add_u32 s60, s60, s7")
    a(f"s_lshl_b32 s65, s{S_LW}, 3")
    a("s_add_u32 s60, s60, s65")
    a("s_lshl_b32 s72, s60, 11")
    a(f"v_lshrrev_b32 v{t0}, 4, v{L}")
    a(f"v_and_b32 v{t1}, 15, v{L}")
    a(f"s_and_b32 s65, s65, 15")
    for e in range(2):
        a(f"v_add_u32 v{t2}, {4*e}, v{t0}")
        a(f"v_add_u32 v{t3}, s65, v{t2}")
        a(f"v_xor_b32 v{t3}, v{t3}, v{t1}")
        a(f"v_lshlrev_b32 v{t3}, 4, v{t3}")
        a(f"v_lshl_add_u32 v{32+e}, v{t2}, 11, v{t3}")
        if e: a(f"v_subrev_u32 v{32+e}, {1024*e}, v{32+e}")
    a(f"v_lshlrev_b32 v34, 4, v{L}")
    a(f"s_lshl_b32 s74, s{S_LW}, 11")
    a("s_and_b32 s77, s5, 1")
    a("s_lshl_b32 s77, s77, 2")
    a("s_lshr_b32 s78, s2, 3")
    if opt("stgrot", "1") != "1":
        a("s_mov_b32 s77, 0"); a("s_mov_b32 s78, 0")
    if opt("stgrot", "1") != "1":
        a("s_mov_b32 s77, 0"); a("s_mov_b32 s78, 0")
    def x_round():
        a("s_and_b32 s77, s77, 7")
        a("s_lshl_b32 s60, s77, 13")
        a("s_add_u32 s60, s60, s74")
        a(f"s_add_u32 m0, s60, {XSTG}")
        a("s_lshl_b32 s65, s77, 8")
        a("s_add_u32 s65, s65, s72")
        for e in range(2):
            a(f"buffer_load_dwordx4 v{32+e}, s[{S_XSRD}:{S_XSRD+3}], s65 offen offset:{1024*e} {XFLAG} lds")
        a("s_add_u32 s77, s77, 1")
    def w_round():
        a("s_and_b32 s78, s78, 7")
        a("s_lshl_b32 s60, s78, 13")
        a("s_add_u32 s60, s60, s74")
        a(f"s_add_u32 m0, s60, {WSTG0}")
        a("s_add_u32 s78, s78, 1")
        for e in range(2):
            a(f"buffer_load_dwordx4 v34, s[{S_KWSRD}:{S_KWSRD+3}], s60 offen offset:{1024*e} {opt('kwf','')} lds")
    WLATE = opt("wlate", "0") == "1"
    if WLATE:
        a("s_lshr_b32 s60, s2, 4")
        a("s_and_b32 s60, s60, 15")
        a("s_lshl_b32 s60, s60, 2")
        a(f"s_add_u32 s60, s60, s{S_LW}")
        a("s_lshl_b32 s60, s60, 10")
        a(f"v_and_b32 v{t0}, 7, v{L}")
        a(f"v_lshlrev_b32 v{t0}, 7, v{t0}")
        a(f"buffer_load_dword v37, v{t0}, s[{S_KWSRD}:{S_KWSRD+3}], s60 offen")
        for r in range(8): x_round()
    else:
        for r in range(8):
            x_round(); w_round()
    stamp(a, 9)
    a(f"v_lshrrev_b32 v{t0}, 4, v{L}")
    a(f"v_bfe_u32 v{t1}, v{L}, 2, 2")
    a(f"v_xor_b32 v{t1}, v{t1}, v{t0}")
    a(f"v_lshlrev_b32 v{t1}, 6, v{t1}")
    a(f"v_lshl_add_u32 v{t1}, v{t0}, 11, v{t1}")
    a(f"v_and_b32 v{t2}, 3, v{L}")
    a(f"v_lshl_add_u32 v{t1}, v{t2}, 4, v{t1}")
    a(f"s_lshl_b32 s60, s{S_LW}, 15")
    a(f"s_lshl_b32 s65, s5, 8")
    a(f"s_add_u32 s60, s60, s65")
    a(f"v_add_u32 v{L_WOFF}, s60, v{t1}")
    for j in range(1, 4):
        a(f"v_add_u32 v{L_WOFF+j}, {j*(8192-1024)}, v{L_WOFF}")
    a(f"v_lshrrev_b32 v{t0}, 3, v{L}")
    a(f"s_lshl_b32 s60, s{S_LW}, 5")
    a(f"s_add_u32 s60, s60, s7")
    a(f"v_add_u32 v{t0}, s60, v{t0}")
    a(f"v_lshlrev_b32 v{t0}, 11, v{t0}")
    a(f"v_and_b32 v{t1}, 7, v{L}")
    a(f"v_lshrrev_b32 v{t2}, 4, v{L}")
    a(f"v_xor_b32 v{t1}, v{t1}, v{t2}")
    for e in range(4):
        if e & 1:
            a(f"v_xor_b32 v{t3}, 4, v{t1}")
            a(f"v_lshl_add_u32 v{L_XOFF+e}, v{t3}, 4, v{t0}")
        else:
            a(f"v_lshl_add_u32 v{L_XOFF+e}, v{t1}, 4, v{t0}")
        if e: a(f"v_add_u32 v{L_XOFF+e}, {e*(8*2048-1024)}, v{L_XOFF+e}")
    a(f"s_lshl_b32 s{S_M0W}, s{S_LW}, 12")
    a(f"s_lshl_b32 s{S_M0X}, s{S_LW}, 12")
    a(f"s_add_u32 s{S_M0X}, s{S_M0X}, {XPART}")
    a("s_and_b32 s60, s4, 3")
    a("s_lshl_b32 s60, s60, 2")
    a("s_lshl_b32 s65, s5, 1")
    a("s_add_u32 s60, s60, s65")
    a("s_and_b32 s60, s60, 15")
    if opt("rot", "1") != "1": a("s_mov_b32 s60, 0")
    a(f"s_lshl_b32 s{S_WSOFF}, s60, 17")
    a(f"s_lshl_b32 s{S_XSOFF}, s60, 7")
    if WLATE:
        if opt("c0first", "1") == "1":
            l_dma_chunk(a, 'q', 0)
            for r in range(8): w_round()
        else:
            for r in range(8): w_round()
            l_dma_chunk(a, 'q', 0)
    else:
        l_dma_chunk(a, 'q', 0)
    a(f"buffer_load_dword v{L_SNAP}, v{L_FADDR}, s[{S_WSSRD}:{S_WSSRD+3}], 0 offen sc1")
    NT = 0
    if opt("wqpf", "0") == "1":
        NT = 2
        a(f"v_lshrrev_b32 v{t0}, 1, v{L}")
        a(f"v_lshlrev_b32 v{t0}, 11, v{t0}")
        a(f"v_and_b32 v{t1}, 1, v{L}")
        a(f"v_lshl_add_u32 v{t0}, v{t1}, 7, v{t0}")
        a("s_lshl_b32 s60, s5, 8")
        a(f"v_add_u32 v{t0}, s60, v{t0}")
        a(f"s_lshl_b32 s60, s{S_LW}, 17")
        a(f"s_add_u32 s60, s60, s{S_WSOFF}")
        a("s_and_b32 s60, s60, 0x1fffff")
        a(f"buffer_load_dword v35, v{t0}, s[{S_WSRD}:{S_WSRD+3}], s60 offen")
        a("s_add_u32 s60, s60, 0x10000")
        a(f"buffer_load_dword v36, v{t0}, s[{S_WSRD}:{S_WSRD+3}], s60 offen")
    a(f"v_mov_b32 v{L_DBG}, s3")
    a(f"v_lshlrev_b32 v{L_DBG}, 7, v{L_DBG}")
    a(f"v_lshlrev_b32 v{L_KVOFF}, 4, v{L}")
    a(f"s_lshl_b32 s{S_T1}, s{S_LW}, 13")
    a(f"v_add_u32 v{L_KVOFF}, s{S_T1}, v{L_KVOFF}")
    a(f"s_lshl_b32 s{S_KVSOFF}, s3, 18")
    if WS_KV: a(f"s_add_u32 s{S_KVSOFF}, s{S_KVSOFF}, {WS_KV}")
    stamp(a, 10)
    a(f"s_waitcnt vmcnt({(1 if (WLATE and opt('c0first','1') == '1') else 9) + NT})")
    stamp(a, 11)
    a("s_barrier")
    a("s_barrier")
    if opt("k1early", "1") == "1":
        l_dma_chunk(a, 'q', 1)
        a("s_barrier")
        l_dma_chunk(a, 'q', 2)
        l_dma_chunk(a, 'q', 3)
    else:
        for c in (1, 2, 3): l_dma_chunk(a, 'q', c)
        a("s_barrier")
    a("s_waitcnt vmcnt(24)")
    a("s_barrier")
    a("s_waitcnt vmcnt(16)")
    a("s_barrier")
    a(f"s_cmp_ge_u32 s{S_LW}, 2")
    a("s_cbranch_scc1 L_l_dummy")
    a(f"s_lshl_b32 s60, s{S_LW}, 11")
    a(f"s_add_u32 s60, s60, {PART}")
    a(f"v_lshlrev_b32 v{t0}, 4, v{L}")
    a(f"v_add_u32 v{t1}, s60, v{t0}")
    for w in range(8):
        a(f"ds_read_b128 {vr(40+8*w,4)}, v{t1} offset:{4096*w}")
        a(f"ds_read_b128 {vr(44+8*w,4)}, v{t1} offset:{4096*w+1024}")
        if w == 3: a("s_waitcnt lgkmcnt(4)")
    a("s_waitcnt lgkmcnt(0)")
    for w in range(1, 8):
        for r in range(8):
            a(f"v_add_f32 v{40+r}, v{40+r}, v{40+8*w+r}")
    for d in range(4):
        a(f"v_cvt_pk_bf16_f32 v{36+d}, v{40+2*d}, v{41+2*d}")
    a("s_lshr_b32 s60, s5, 1")
    a("s_lshl_b32 s65, s4, 2")
    a("s_add_u32 s60, s60, s65")
    a("s_lshl_b32 s60, s60, 12")
    a("s_and_b32 s65, s5, 1")
    a("s_lshl_b32 s65, s65, 11")
    a("s_add_u32 s60, s60, s65")
    a(f"s_lshl_b32 s65, s{S_LW}, 10")
    a("s_add_u32 s60, s60, s65")
    a("s_lshl_b32 s65, s3, 18")
    a("s_add_u32 s60, s60, s65")
    if WS_KV: a(f"s_add_u32 s60, s60, {WS_KV}")
    a(f"buffer_store_dwordx4 v[36:39], v{t0}, s[{S_WSSRD}:{S_WSSRD+3}], s60 offen sc1")
    a("s_branch L_l_red_done")
    a.label("L_l_dummy")
    a(f"buffer_load_dword v36, v{L_FADDR}, s[{S_WSSRD}:{S_WSSRD+3}], 0 offen sc1")
    a.label("L_l_red_done")
    a("s_waitcnt vmcnt(9)")
    a("s_barrier")
    l_dma_chunk(a, 'q', 4)
    l_dma_chunk(a, 'q', 0)
    a("s_waitcnt vmcnt(17)")
    a("s_barrier")
    l_dma_chunk(a, 'q', 6 % NSLOT)
    a("s_waitcnt vmcnt(16)")
    a("s_barrier")
    l_dma_chunk(a, 'q', 7 % NSLOT)
    a(f"s_cmp_eq_u32 s{S_LW}, 0")
    a("s_cbranch_scc0 L_l_nosig")
    a("s_mov_b64 exec, 1")
    a(f"v_mov_b32 v{t0}, 1")
    a(f"global_atomic_add v{L_DBG}, v{t0}, s[{S_DBG}:{S_DBG+1}]")
    a("s_mov_b64 exec, -1")
    a.label("L_l_nosig")
    for c in range(4, 10):
        a("s_waitcnt vmcnt(16)")
        a("s_barrier")
        l_dma_chunk(a, 'q', (c + 4) % NSLOT)
    a(f"global_load_dword v{L_TMP}, v{L_DBG}, s[{S_DBG}:{S_DBG+1}] sc1")
    for c in (10, 11):
        a("s_waitcnt vmcnt(17)")
        a("s_barrier")
        l_dma_chunk(a, 'q', (c + 4) % NSLOT)
    a("s_waitcnt vmcnt(16)")
    a("s_barrier")
    a(f"v_readfirstlane_b32 s60, v{L_TMP}")
    a("s_mov_b32 s65, 0x200000")
    a("s_nop 2")
    a("s_cmp_ge_u32 s60, 128")
    a("s_cbranch_scc1 L_l_kvok")
    a.label("L_l_kvpoll")
    a(f"global_load_dword v{L_TMP}, v{L_DBG}, s[{S_DBG}:{S_DBG+1}] sc1")
    a("s_waitcnt vmcnt(0)")
    a(f"v_readfirstlane_b32 s60, v{L_TMP}")
    a("s_nop 3")
    a("s_cmp_ge_u32 s60, 128")
    a("s_cbranch_scc1 L_l_kvok")
    a("s_sleep 8")
    a("s_sub_u32 s65, s65, 1")
    a("s_cmp_lg_u32 s65, 0")
    a("s_cbranch_scc1 L_l_kvpoll")
    a.label("L_l_kvok")
    l_kv_dma(a, base_imm=KVR[0])
    a("s_waitcnt vmcnt(16)")
    a("s_barrier")
    l_kv_dma(a, base_imm=KVR[1])
    a("s_waitcnt vmcnt(16)")
    a("s_barrier")
    l_kv_dma(a, base_imm=KVR[2])
    srd(a, S_WSRD, 48, 2 << 20)
    srd(a, S_XSRD, 52, WS_SIZE)
    a(f"s_lshl_b32 s60, s{S_LW}, 16")
    a(f"s_lshl_b32 s65, s3, 22")
    a(f"s_add_u32 s60, s60, s65")
    a(f"s_lshl_b32 s65, s4, 18")
    a(f"s_add_u32 s60, s60, s65")
    a(f"s_add_u32 s60, s60, {WS_O}")
    a(f"v_lshlrev_b32 v{t0}, 4, v{L}")
    a(f"v_add_u32 v{L_XOFF}, s60, v{t0}")
    a(f"s_lshl_b32 s{S_WSOFF}, s5, 18")
    a(f"s_lshl_b32 s{S_XSOFF}, s5, 13")
    a(f"s_add_u32 s{S_XSOFF}, s{S_XSOFF}, 8192")
    a(f"s_and_b32 s{S_XSOFF}, s{S_XSOFF}, 65535")
    a(f"v_lshrrev_b32 v{t1}, 1, v{L}")
    a("s_and_b32 s60, s4, 3")
    a("s_lshl_b32 s60, s60, 8")
    a(f"s_lshl_b32 s65, s{S_LW}, 6")
    a("s_add_u32 s60, s60, s65")
    a(f"v_add_u32 v{t1}, s60, v{t1}")
    a(f"v_lshlrev_b32 v{t1}, 11, v{t1}")
    a(f"v_and_b32 v{t2}, 1, v{L}")
    a(f"v_lshl_add_u32 v{t1}, v{t2}, 7, v{t1}")
    a("s_lshl_b32 s60, s5, 8")
    a(f"v_add_u32 v{t1}, s60, v{t1}")
    a("s_waitcnt vmcnt(16)")
    a("s_barrier")
    for j in range(1, 8):
        a("s_waitcnt vmcnt(8)")
        a("s_barrier")
        if j <= 5:
            l_kv_dma(a, base_imm=KVR[(j - 1) % 3])
        if j == 1 and opt("wopf", "1") == "1":
            a(f"buffer_load_dword v{L_TMP}, v{t1}, s[{S_WSRD}:{S_WSRD+3}], 0 offen")
            a(f"s_mov_b32 s60, {32*2048}")
            a(f"buffer_load_dword v{L_TMP}, v{t1}, s[{S_WSRD}:{S_WSRD+3}], s60 offen")
        if j == 6:
            l_dma_w(a, 4); l_dma_w(a, 0)
        if j == 7:
            l_dma_w(a, 1)
    a("s_waitcnt vmcnt(0)")
    a("s_barrier")
    l_dma_w(a, 2)
    a(f"v_add_u32 v{L_SNAP}, 1, v{L_SNAP}")
    a(f"s_cmp_eq_u32 s{S_LW}, 0")
    a("s_cbranch_scc0 L_l_noflag")
    a(f"v_cmp_eq_u32 vcc, s5, v{L}")
    a("s_nop 4")
    a("s_mov_b64 exec, vcc")
    a(f"buffer_store_dword v{L_SNAP}, v{L_FADDR}, s[{S_WSSRD}:{S_WSSRD+3}], 0 offen sc1")
    a("s_mov_b64 exec, -1")
    a.label("L_l_noflag")
    a("s_mov_b32 s65, 0x200000")
    a.label("L_l_opoll")
    a(f"buffer_load_dword v{L_TMP}, v{L_FADDR}, s[{S_WSSRD}:{S_WSSRD+3}], 0 offen sc1")
    a("s_waitcnt vmcnt(0)")
    a(f"v_cmp_eq_u32 vcc, v{L_TMP}, v{L_SNAP}")
    a("s_nop 4")
    a("s_cmp_eq_u64 vcc, -1")
    a("s_cbranch_scc1 L_l_owait")
    a(f"s_sleep {opt('sleep','4')}")
    a("s_sub_u32 s65, s65, 1")
    a("s_cmp_lg_u32 s65, 0")
    a("s_cbranch_scc1 L_l_opoll")
    a.label("L_l_owait")
    for c in (2, 3, 4):
        l_dma_x(a, 'o', (4 + c) % NSLOT)
    l_dma_w(a, (4 + 4) % NSLOT)
    a("s_waitcnt vmcnt(8)")
    a("s_barrier")
    l_dma_chunk(a, 'o', (4 + 5) % NSLOT)
    l_dma_chunk(a, 'o', (4 + 6) % NSLOT)
    for c in range(3, 12):
        a("s_waitcnt vmcnt(16)")
        a("s_barrier")
        l_dma_chunk(a, 'o', (4 + c + 4) % NSLOT)
    a("s_waitcnt vmcnt(16)")
    a("s_barrier")
    a("s_waitcnt vmcnt(8)")
    a("s_barrier")
    a("s_waitcnt vmcnt(0)")
    a("s_barrier")
    if PROF:
        stamp(a, 8)
        stamp_flush(a)
    a("s_endpgm")

def gen_main(a):
    name = KNAME
    a(f".globl {name}\n.p2align 8\n.type {name},@function")
    a.label(name)
    a("s_cmp_ge_u32 s2, 256")
    a("s_cbranch_scc1 L_end")
    a("s_and_b32 s4, s2, 7")
    a("s_lshr_b32 s5, s2, 3")
    a("s_lshr_b32 s3, s4, 2")
    a("s_and_b32 s4, s4, 3")
    a("s_lshl_b32 s4, s4, 2")
    a("s_lshr_b32 s6, s5, 3")
    a("s_add_u32 s4, s4, s6")
    a("s_and_b32 s5, s5, 7")
    load_args(a, 3)
    a("v_lshrrev_b32 v1, 6, v0")
    a(f"v_and_b32 v{V_LANE}, 63, v0")
    a(f"v_readfirstlane_b32 s{S_W}, v1")
    srd(a, S_WSSRD, 52, WS_SIZE)
    srd(a, S_XSRD, 40, 4 << 20)
    srd(a, S_WSRD, 42, 2 << 20)
    a("s_and_b32 s60, s5, 1")
    a("s_cmp_eq_u32 s60, 0")
    a("s_cselect_b32 s54, s44, s46")
    a("s_cselect_b32 s55, s45, s47")
    srd(a, S_KWSRD, 54, 65536)
    srd(a, S_OUTSRD, 50, 8 << 20)
    a("s_lshl_b32 s7, s4, 7")
    stamp_init(a); stamp(a, 0)
    a(f"s_cmp_ge_u32 s{S_W}, 8")
    a("s_cbranch_scc1 L_loader")
    gen_compute(a)
    a.label("L_loader")
    gen_loader(a)
    a.label("L_end")
    a("s_endpgm")
    return name, NVGPR, LDS_MAIN

def main(out_path):
    ref = open("cdna_kernels/" + NAME + ".s.ref").read().split("\n")
    header = [l for l in ref if l.startswith(";") and "@launch" not in l and "Override" not in l and "grid=ceil" not in l]
    a = Asm()
    name, vg, lds = gen_main(a)
    txt = "\n".join(header) + "\n"
    txt += f"; @launch grid=(256,1,1) block=(768,1,1) lds={lds}\n"
    txt += '.amdgcn_target "amdgcn-amd-amdhsa--gfx950"\n.text\n'
    txt += a.text()
    txt += '.section .rodata,"a"\n'
    txt += ".p2align 6\n" + kernel_desc(name, vg)
    open(out_path, "w").write(txt)
    nb = sum(1 for l in a.lines if l.strip() == "s_barrier")
    print("static barriers:", nb)

if __name__ == "__main__":
    if "--prof" in sys.argv:
        PROF = True
        sys.argv.remove("--prof")
    main(sys.argv[1] if len(sys.argv) > 1 else "cdna_kernels/" + NAME + ".s")
```

```python
import sys, math, os, struct
sys.path.insert(0, __file__.rsplit("/", 1)[0])
from asmlib import *

NAME = "concat_heads__grouped_kv_mqa__grouped_kv_mqa__prompt"
KNAME = NAME + "_kernel"
import os as _os
_O = dict(kv.split("=") for kv in _os.environ.get("GENOPT", "").split(",") if "=" in kv)
WS_BASE = int(_O.get("wsbase", "0")) << 20
WS_KV = WS_BASE
WS_O = WS_BASE + (1 << 20)
WS_FLAG = WS_BASE + (10 << 20)
WS_SIZE = 268435456
CSCALE = math.log2(math.e) / math.sqrt(32.0)
def fbits(x): return "0x%08x" % struct.unpack("<I", struct.pack("<f", x))[0]
OPT = dict(kv.split("=") for kv in os.environ.get("GENOPT", "").split(",") if "=" in kv)
def opt(k, d): return OPT.get(k, d)

SLOT = 32768
NSLOT = 5
XPART = 16384
KVR = [32768, 65536, 98304]
PART = 131072
XSTG = 32768
WSTG0 = 98304
LDS_MAIN = 163840
NVGPR = 168

PROF = False
WS_PROF = 12 << 20
V_PROF = 167
S_WSSRD = 56
V_LANE = 2
def stamp(a, idx):
    if not PROF: return
    a("s_memtime s[92:93]")
    a("s_memrealtime s[94:95]")
    a("s_waitcnt lgkmcnt(0)")
    a(f"v_writelane_b32 v{V_PROF}, s92, {idx}")
    a(f"v_writelane_b32 v{V_PROF}, s94, {idx+32}")
def stamp_init(a):
    if not PROF: return
    a(f"v_mov_b32 v{V_PROF}, 0")
def stamp_flush(a):
    if not PROF: return
    a(f"s_mul_i32 s96, s2, 12")
    a(f"s_add_u32 s96, s96, s6")
    a(f"s_lshl_b32 s96, s96, 8")
    a(f"s_add_u32 s96, s96, {WS_PROF + (1<<20)}")
    a(f"v_lshlrev_b32 v{V_PROF-1}, 2, v{V_LANE}")
    a(f"buffer_store_dword v{V_PROF}, v{V_PROF-1}, s[{S_WSSRD}:{S_WSSRD+3}], s96 offen")
    a("s_waitcnt vmcnt(0)")

A_KVADDR = 1
A_SEL = 8
A_IDX = 12
A_Q = [16, 24]
A_O = [32, 48]
A_L = [64, 68]
A_S = [72, 88]
A_P = [104, 112]
A_K = [120, 128]
A_V = [136, 144]
A_T = 152
G_ACC = 32
G_AF = 72
G_BF = 104
G_TMP = 124
L_WOFF = 8
L_XOFF = 12
L_KVOFF = 16
L_DBG = 17
L_TMP = 18
L_SNAP = 19
L_FADDR = 20
L_T = 24
S_XSRD = 8
S_WSRD = 12
S_DBG = 36
S_W = 6
S_LW = 62
S_M0W = 63
S_M0X = 64
S_WSOFF = 66
S_XSOFF = 67
S_CNT = 69
S_T0 = 70
S_T1 = 71
S_KVSOFF = 73
S_OUTSRD = 84
S_KWSRD = 88
S_OOFF = 61
XFLAG = "nt" if opt("xnt", "0") == "1" else ""

def load_args(a, p_sgpr):
    a("s_load_dwordx16 s[16:31], s[0:1], 0")
    a("s_load_dwordx4 s[32:35], s[0:1], 64")
    a("s_load_dwordx2 s[50:51], s[0:1], 80")
    a(f"s_load_dwordx2 s[{S_DBG}:{S_DBG+1}], s[0:1], 88")
    a("s_load_dwordx2 s[52:53], s[0:1], 96")
    a("s_waitcnt lgkmcnt(0)")
    a(f"s_cmp_eq_u32 s{p_sgpr}, 0")
    for i in range(5):
        for h in range(2):
            a(f"s_cselect_b32 s{40+2*i+h}, s{16+2*i+h}, s{26+2*i+h}")

G_AB = 128
G_BB = 130
G_AC = 134
G_AN = 136
G_BD = 138
S_CUR = 75
S_NXT = 76
PD = int(opt("pd", "3"))
GPRIO = opt("gprio", "1") == "1"
def gemm_addr(a, mode):
    lane = V_LANE
    t0, t1, t2, t3 = G_TMP, G_TMP+1, G_TMP+2, G_TMP+3
    a(f"v_bfe_u32 v{t0}, v{lane}, 2, 2")
    a(f"v_lshrrev_b32 v{t1}, 5, v{lane}")
    a(f"v_lshl_add_u32 v{t1}, v{t1}, {3 if mode=='q' else 2}, v{t0}")
    a(f"v_lshlrev_b32 v{t1}, 8, v{t1}")
    a(f"v_bfe_u32 v{t2}, v{lane}, 4, 1")
    a(f"v_lshl_add_u32 v{t1}, v{t2}, 5, v{t1}")
    a(f"v_and_b32 v{t2}, 3, v{lane}")
    a(f"v_lshl_add_u32 v{t1}, v{t2}, 3, v{t1}")
    a(f"s_lshr_b32 s{S_T0}, s{S_W}, 2")
    a(f"s_lshl_b32 s{S_T0}, s{S_T0}, 1")
    for hd in range(2):
        a(f"s_add_u32 s{S_CNT}, s{S_T0}, {hd}")
        a(f"v_xor_b32 v{t2}, s{S_CNT}, v{t0}")
        a(f"v_lshl_add_u32 v{G_AB+hd}, v{t2}, 6, v{t1}")
    if mode == 'q':
        a(f"s_and_b32 s{S_T0}, s{S_W}, 3")
        a(f"s_lshl_b32 s{S_T0}, s{S_T0}, 5")
        a(f"v_and_b32 v{t0}, 31, v{lane}")
        a(f"v_add_u32 v{t0}, s{S_T0}, v{t0}")
        a(f"v_bfe_u32 v{t1}, v{t0}, 1, 3")
        a(f"v_lshrrev_b32 v{t2}, 5, v{lane}")
        a(f"v_lshlrev_b32 v{t0}, 7, v{t0}")
        a(f"v_add_u32 v{t0}, {XPART}, v{t0}")
        for j in range(4):
            a(f"v_or_b32 v{t3}, {2*j}, v{t2}")
            a(f"v_xor_b32 v{t3}, v{t3}, v{t1}")
            a(f"v_lshl_add_u32 v{G_BB+j}, v{t3}, 4, v{t0}")
    else:
        a(f"s_and_b32 s{S_T0}, s{S_W}, 3")
        a(f"s_lshl_b32 s{S_T0}, s{S_T0}, 12")
        a(f"s_add_u32 s{S_T0}, s{S_T0}, {XPART}")
        a(f"v_lshlrev_b32 v{t0}, 4, v{lane}")
        a(f"v_add_u32 v{t0}, s{S_T0}, v{t0}")
        for j in range(4):
            a(f"v_add_u32 v{G_BB+j}, {j*1024}, v{t0}")

def gemm_reads(a, mode, j, nxt):
    if mode == 'o' and opt("noreads", "0") == "1": return
    af = G_AF + 8*j
    bf = G_BF + 4*j
    second = 1024 if mode == 'q' else 2048
    A = G_AN if nxt else G_AC
    a(f"ds_read_b128 {vr(bf,4)}, v{G_BD+j}")
    for hd in range(2):
        a(f"ds_read_b64_tr_b16 {vr(af+4*hd,2)}, v{A+hd} offset:{j*4096}")
        a(f"ds_read_b64_tr_b16 {vr(af+4*hd+2,2)}, v{A+hd} offset:{j*4096 + second}")

def set_slots(a):
    for hd in range(2): a(f"v_add_u32 v{G_AC+hd}, s{S_CUR}, v{G_AB+hd}")
    for hd in range(2): a(f"v_add_u32 v{G_AN+hd}, s{S_NXT}, v{G_AB+hd}")
    for j in range(4):
        a(f"v_add_u32 v{G_BD+j}, s{S_CUR if j >= PD else S_NXT}, v{G_BB+j}")
def adv_slots(a):
    a(f"s_mov_b32 s{S_CUR}, s{S_NXT}")
    a(f"s_add_u32 s{S_NXT}, s{S_NXT}, {SLOT}")
    a(f"s_cmp_eq_u32 s{S_NXT}, {SLOT*NSLOT}")
    a(f"s_cselect_b32 s{S_NXT}, 0, s{S_NXT}")

def c_gemm_chunk(a, mode, barrier, next_reads):
    if barrier:
        if PROF and opt("chunkprof", "") == mode:
            a("s_memtime s[92:93]")
        a("s_barrier")
        if PROF and opt("chunkprof", "") == mode:
            a("s_memtime s[94:95]")
            a(f"s_sub_u32 m0, 26, s{S_CNT}")
            a("s_waitcnt lgkmcnt(0)")
            a(f"v_writelane_b32 v{V_PROF}, s92, m0")
            a(f"s_add_u32 m0, m0, 16")
            a("s_nop 3")
            a(f"v_writelane_b32 v{V_PROF}, s94, m0")
    for j in range(4):
        if GPRIO: a(f"s_setprio {3 - j}")
        ahead = PD - 1 if next_reads else min(PD - 1, 3 - j)
        a(f"s_waitcnt lgkmcnt({5*ahead})")
        af = G_AF + 8*j; bf = G_BF + 4*j
        jn = j + PD
        R = Asm()
        if jn < 4:
            gemm_reads(R, mode, jn, False)
        elif next_reads:
            gemm_reads(R, mode, jn - 4, True)
        rl = R.lines
        for hd in range(2):
            acc = G_ACC + 16*hd
            a(f"v_mfma_f32_32x32x16_bf16 {vr(acc,16)}, {vr(af+4*hd,4)}, {vr(bf,4)}, {vr(acc,16)}")
            if hd == 0: a.lines.extend(rl[:2])
        a.lines.extend(rl[2:])
        if j == 3 and next_reads:
            adv_slots(a)
            set_slots(a)

def c_gemm(a, mode, tag, first_slot):
    for i in range(32):
        a(f"v_mov_b32 v{G_ACC+i}, 0")
    a(f"s_mov_b32 s{S_NXT}, {first_slot*SLOT}")
    a(f"s_mov_b32 s{S_CUR}, 0")
    set_slots(a)
    a("s_barrier")
    for j in range(PD):
        gemm_reads(a, mode, j, True)
    adv_slots(a)
    set_slots(a)
    a(f"s_mov_b32 s{S_CNT}, 15")
    a(".p2align 6")
    a.label(f"L_{tag}_loop")
    c_gemm_chunk(a, mode, True, True)
    a(f"s_sub_u32 s{S_CNT}, s{S_CNT}, 1")
    a(f"s_cmp_lg_u32 s{S_CNT}, 0")
    a(f"s_cbranch_scc1 L_{tag}_loop")
    c_gemm_chunk(a, mode, False, False)
    if GPRIO: a("s_setprio 0")

def attn_step(a, t, r, read, off, do_qk=True):
    S = A_S[r]; Sn = A_S[r ^ 1]
    P = A_P[r]; Pp = A_P[r ^ 1]
    tn = t if r == 0 else t + 1
    Kn = A_K[tn & 1]; Qn = A_Q[r ^ 1]
    tp = t - 1 if r == 0 else t
    Vp = A_V[tp & 1]; Op = A_O[r ^ 1]; Lp = A_L[r ^ 1]
    E = lambda i: a(f"v_exp_f32 v{S+i}, v{S+i}")
    C = lambda i: a(f"v_cvt_pk_bf16_f32 v{P+i//2}, v{S+i}, v{S+i+1}")
    def RD(i):
        if read == 'K': a(f"ds_read_b128 {vr(A_K[(t+1)&1]+4*i,4)}, v{A_KVADDR} offset:{off+1024*i}")
        if read == 'V': a(f"ds_read_b128 {vr(A_V[(t+1)&1]+4*i,4)}, v{A_KVADDR} offset:{off+2048+1024*i}")
    if do_qk: a(f"v_mfma_f32_32x32x16_bf16 {vr(Sn,16)}, {vr(Kn,4)}, {vr(Qn,4)}, 0")
    RD(0)
    E(0); E(1); E(2); E(3)
    if do_qk: a(f"v_mfma_f32_32x32x16_bf16 {vr(Sn,16)}, {vr(Kn+4,4)}, {vr(Qn+4,4)}, {vr(Sn,16)}")
    RD(1)
    E(4); E(5); E(6); C(0); C(2)
    a(f"v_mfma_f32_32x32x16_bf16 {vr(Op,16)}, {vr(Vp,4)}, {vr(Pp,4)}, {vr(Op,16)}")
    E(7); E(8); E(9); C(4); C(6)
    a(f"v_mfma_f32_32x32x16_bf16 {vr(Op,16)}, {vr(Vp+4,4)}, {vr(Pp+4,4)}, {vr(Op,16)}")
    E(10); E(11); E(12); C(8); C(10)
    a(f"v_smfmac_f32_16x16x64_bf16 {vr(Lp,4)}, {vr(A_SEL,4)}, {vr(Pp,8)}, v{A_IDX}")
    E(13); E(14); E(15); C(12); C(14)

def slow_path(a, r):
    Q = A_Q[r]; O = A_O[r]; L = A_L[r]
    S = A_S[0]; NM = A_S[1]; P = A_P[0]; K = A_K[0]; V = A_V[0]
    M = A_T + 4; ADDR = A_T + 5
    l1 = a.newlabel("slow1"); l2 = a.newlabel("slow2")
    a(f"v_lshlrev_b32 v{ADDR}, 4, v{V_LANE}")
    a(f"s_lshl_b32 s60, s3, 18")
    if WS_KV: a(f"s_add_u32 s60, s60, {WS_KV}")
    a(f"s_mov_b32 s62, 64")
    a(f"v_mov_b32 v{M}, 0xff800000")
    a.label(l1)
    a(f"buffer_load_dwordx4 {vr(K,4)}, v{ADDR}, s[{S_WSSRD}:{S_WSSRD+3}], s60 offen sc1")
    a(f"buffer_load_dwordx4 {vr(K+4,4)}, v{ADDR}, s[{S_WSSRD}:{S_WSSRD+3}], s60 offen offset:1024 sc1")
    a("s_waitcnt vmcnt(0)")
    a(f"v_mfma_f32_32x32x16_bf16 {vr(S,16)}, {vr(K,4)}, {vr(Q,4)}, 0")
    a(f"v_mfma_f32_32x32x16_bf16 {vr(S,16)}, {vr(K+4,4)}, {vr(Q+4,4)}, {vr(S,16)}")
    a.nop(16)
    for i in range(8):
        a(f"v_max3_f32 v{M}, v{S+2*i}, v{S+2*i+1}, v{M}")
    a("s_add_u32 s60, s60, 4096")
    a("s_sub_u32 s62, s62, 1")
    a("s_cmp_lg_u32 s62, 0")
    a(f"s_cbranch_scc1 {l1}")
    a(f"v_mov_b32 v{M+2}, v{M}")
    a("s_nop 1")
    a(f"v_permlane32_swap_b32 v{M+2}, v{M}")
    a("s_nop 1")
    a(f"v_max_f32 v{M}, v{M}, v{M+2}")
    a(f"v_sub_f32 v{M}, 0, v{M}")
    for i in range(16): a(f"v_mov_b32 v{NM+i}, v{M}")
    for i in range(16): a(f"v_mov_b32 v{O+i}, 0")
    for i in range(4): a(f"v_mov_b32 v{L+i}, 0")
    a(f"s_lshl_b32 s60, s3, 18")
    if WS_KV: a(f"s_add_u32 s60, s60, {WS_KV}")
    a(f"s_mov_b32 s62, 64")
    a.label(l2)
    a(f"buffer_load_dwordx4 {vr(K,4)}, v{ADDR}, s[{S_WSSRD}:{S_WSSRD+3}], s60 offen sc1")
    a(f"buffer_load_dwordx4 {vr(K+4,4)}, v{ADDR}, s[{S_WSSRD}:{S_WSSRD+3}], s60 offen offset:1024 sc1")
    a(f"buffer_load_dwordx4 {vr(V,4)}, v{ADDR}, s[{S_WSSRD}:{S_WSSRD+3}], s60 offen offset:2048 sc1")
    a(f"buffer_load_dwordx4 {vr(V+4,4)}, v{ADDR}, s[{S_WSSRD}:{S_WSSRD+3}], s60 offen offset:3072 sc1")
    a("s_waitcnt vmcnt(0)")
    a(f"v_mfma_f32_32x32x16_bf16 {vr(S,16)}, {vr(K,4)}, {vr(Q,4)}, {vr(NM,16)}")
    a(f"v_mfma_f32_32x32x16_bf16 {vr(S,16)}, {vr(K+4,4)}, {vr(Q+4,4)}, {vr(S,16)}")
    a.nop(16)
    for i in range(16): a(f"v_exp_f32 v{S+i}, v{S+i}")
    a("s_nop 1")
    for i in range(8): a(f"v_cvt_pk_bf16_f32 v{P+i}, v{S+2*i}, v{S+2*i+1}")
    a("s_nop 2")
    a(f"v_mfma_f32_32x32x16_bf16 {vr(O,16)}, {vr(V,4)}, {vr(P,4)}, {vr(O,16)}")
    a(f"v_mfma_f32_32x32x16_bf16 {vr(O,16)}, {vr(V+4,4)}, {vr(P+4,4)}, {vr(O,16)}")
    a(f"v_smfmac_f32_16x16x64_bf16 {vr(L,4)}, {vr(A_SEL,4)}, {vr(P,8)}, v{A_IDX}")
    a.nop(16)
    a("s_add_u32 s60, s60, 4096")
    a("s_sub_u32 s62, s62, 1")
    a("s_cmp_lg_u32 s62, 0")
    a(f"s_cbranch_scc1 {l2}")

def gen_compute(a):
    KX = 32; KACC = 64; KW = 80
    a(f"v_and_b32 v20, 31, v{V_LANE}")
    a(f"v_lshrrev_b32 v21, 5, v{V_LANE}")
    a(f"v_and_b32 v22, 15, v{V_LANE}")
    a(f"s_lshl_b32 s60, s{S_W}, 13")
    a(f"s_add_u32 s60, s60, {XSTG}")
    a("v_lshlrev_b32 v20, 8, v20")
    a("v_add_u32 v20, s60, v20")
    for s in range(8):
        a(f"v_or_b32 v23, {2*s}, v21")
        a("v_xor_b32 v23, v23, v22")
        a(f"v_lshl_add_u32 v{24+s}, v23, 4, v20")
    a(f"s_lshl_b32 s60, s{S_W}, 13")
    a(f"s_add_u32 s62, s60, {WSTG0}")
    a(f"v_bfe_u32 v16, v{V_LANE}, 2, 2")
    a("v_lshl_add_u32 v16, v21, 3, v16")
    a("v_lshlrev_b32 v16, 6, v16")
    a(f"v_bfe_u32 v17, v{V_LANE}, 4, 1")
    a("v_lshl_add_u32 v16, v17, 5, v16")
    a(f"v_and_b32 v17, 3, v{V_LANE}")
    a("v_lshl_add_u32 v16, v17, 3, v16")
    a("v_add_u32 v16, s62, v16")
    for i in range(16):
        a(f"v_mov_b32 v{KACC+i}, 0")
    gemm_addr(a, 'q')
    a(f"v_lshlrev_b32 v18, 4, v{V_LANE}")
    a(f"s_lshl_b32 s60, s{S_W}, 12")
    a(f"s_add_u32 s60, s60, {PART}")
    a("v_add_u32 v19, s60, v18")
    stamp(a, 9)
    a("s_barrier")
    stamp(a, 10)
    for s in range(8):
        a(f"ds_read_b128 {vr(KX+4*s,4)}, v{24+s}")
        a(f"ds_read_b64_tr_b16 {vr(KW+4*s,2)}, v16 offset:{1024*s}")
        a(f"ds_read_b64_tr_b16 {vr(KW+4*s+2,2)}, v16 offset:{1024*s+256}")
        if s in (1, 3, 5): a("s_waitcnt lgkmcnt(6)")
    a("s_and_b32 s60, s5, 1")
    a("s_cmp_eq_u32 s60, 0")
    a("s_waitcnt lgkmcnt(0)")
    a("s_barrier")
    if PROF:
        a("s_cselect_b32 s97, 1, 0")
        stamp(a, 11)
        a("s_cmp_eq_u32 s97, 1")
    a("s_cbranch_scc0 L_kv_isv")
    for s in range(8):
        a(f"v_mfma_f32_32x32x16_bf16 {vr(KACC,16)}, {vr(KW+4*s,4)}, {vr(KX+4*s,4)}, {vr(KACC,16)}")
    a("s_branch L_kv_red")
    a.label("L_kv_isv")
    for s in range(8):
        a(f"v_mfma_f32_32x32x16_bf16 {vr(KACC,16)}, {vr(KX+4*s,4)}, {vr(KW+4*s,4)}, {vr(KACC,16)}")
    a.label("L_kv_red")
    a.nop(16)
    for q in range(4):
        a(f"ds_write_b128 v19, {vr(KACC+4*q,4)} offset:{1024*q}")
    a("s_waitcnt lgkmcnt(0)")
    a("s_barrier")
    stamp(a, 1)
    c_gemm(a, 'q', "q", 0)
    stamp(a, 2)
    a(f"s_mov_b32 s{S_T0}, {fbits(CSCALE)}")
    a(f"v_and_b32 v{A_T}, 6, v{V_LANE}")
    a(f"v_mov_b32 v{A_T+1}, 0x3f803f80")
    a(f"v_cmp_eq_u32 vcc, 0, v{A_T}")
    a("s_nop 1")
    a(f"v_cndmask_b32 v{A_SEL}, 0, v{A_T+1}, vcc")
    a(f"v_cndmask_b32 v{A_SEL+1}, 0, v{A_T+1}, vcc")
    a(f"v_cmp_eq_u32 vcc, 4, v{A_T}")
    a("s_nop 1")
    a(f"v_cndmask_b32 v{A_SEL+2}, 0, v{A_T+1}, vcc")
    a(f"v_cndmask_b32 v{A_SEL+3}, 0, v{A_T+1}, vcc")
    a(f"v_and_b32 v{A_T}, 1, v{V_LANE}")
    a(f"v_mov_b32 v{A_T+1}, 0x4444")
    a(f"v_mov_b32 v{A_T+2}, 0xeeee")
    a(f"v_cmp_eq_u32 vcc, 0, v{A_T}")
    a("s_nop 1")
    a(f"v_cndmask_b32 v{A_IDX}, v{A_T+2}, v{A_T+1}, vcc")
    for i in range(32):
        a(f"v_mul_f32 v{G_ACC+i}, s{S_T0}, v{G_ACC+i}")
    for hd in range(2):
        for d in range(8):
            a(f"v_cvt_pk_bf16_f32 v{A_Q[hd]+d}, v{G_ACC+16*hd+2*d}, v{G_ACC+16*hd+2*d+1}")
    a("s_barrier")
    a(f"v_lshlrev_b32 v{A_KVADDR}, 4, v{V_LANE}")
    a(f"v_add_u32 v{A_KVADDR}, {KVR[0]}, v{A_KVADDR}")
    for i in range(2):
        a(f"ds_read_b128 {vr(A_K[0]+4*i,4)}, v{A_KVADDR} offset:{1024*i}")
    for i in range(2):
        a(f"ds_read_b128 {vr(A_V[0]+4*i,4)}, v{A_KVADDR} offset:{2048+1024*i}")
    for r in range(2):
        for i in range(16): a(f"v_mov_b32 v{A_O[r]+i}, 0")
        for i in range(4): a(f"v_mov_b32 v{A_L[r]+i}, 0")
    for i in range(8): a(f"v_mov_b32 v{A_P[1]+i}, 0")
    for i in range(8): a(f"v_mov_b32 v{A_V[1]+i}, 0")
    a("s_waitcnt lgkmcnt(0)")
    a(f"v_mfma_f32_32x32x16_bf16 {vr(A_S[0],16)}, {vr(A_K[0],4)}, {vr(A_Q[0],4)}, 0")
    a(f"v_mfma_f32_32x32x16_bf16 {vr(A_S[0],16)}, {vr(A_K[0]+4,4)}, {vr(A_Q[0]+4,4)}, {vr(A_S[0],16)}")
    a(f"s_lshl_b32 s{S_OOFF}, s3, 22")
    a(f"s_add_u32 s{S_OOFF}, s{S_OOFF}, {WS_O}")
    a("s_lshl_b32 s60, s4, 2")
    a(f"s_and_b32 s62, s{S_W}, 3")
    a("s_add_u32 s60, s60, s62")
    a("s_lshl_b32 s60, s60, 16")
    a(f"s_add_u32 s{S_OOFF}, s{S_OOFF}, s60")
    a("s_lshl_b32 s60, s5, 2")
    a(f"s_lshr_b32 s62, s{S_W}, 2")
    a("s_lshl_b32 s62, s62, 1")
    a("s_add_u32 s60, s60, s62")
    a("s_lshl_b32 s60, s60, 11")
    a(f"s_add_u32 s{S_OOFF}, s{S_OOFF}, s60")
    a(f"s_mov_b32 s75, {KVR[0]}")
    a(f"s_mov_b32 s76, {KVR[1]}")
    a(f"s_mov_b32 s77, {KVR[2]}")
    a(f"s_mov_b32 s{S_CNT}, 0")
    a.nop(4)
    stamp(a, 3)
    a("s_branch L_att_entry")
    a(".p2align 6")
    a.label("L_att_loop")
    a("s_waitcnt lgkmcnt(0)")
    a("s_barrier")
    a("s_mov_b32 s60, s75")
    a("s_mov_b32 s75, s76")
    a("s_mov_b32 s76, s77")
    a("s_mov_b32 s77, s60")
    a(f"v_lshlrev_b32 v{A_KVADDR}, 4, v{V_LANE}")
    a(f"v_add_u32 v{A_KVADDR}, s75, v{A_KVADDR}")
    for i in range(8):
        t = i - 1
        if i == 1:
            a.label("L_att_entry")
        for r in range(2):
            if r == 1:
                a("s_waitcnt lgkmcnt(0)")
            ap = opt("aprio", "1")
            if ap == "1" and r == 0 and i % 2 == 0: a(f"s_setprio {3 - i//2}")
            if ap == "2" and r == 0 and i % 4 == 0: a(f"s_setprio {1 - i//4}")
            if ap == "3" and r == 0: a(f"s_setprio {3 - (i % 4)}")
            attn_step(a, t & 1 if t >= 0 else 1, r, 'K' if r == 0 else 'V', i*4096)
    a(f"s_add_u32 s{S_CNT}, s{S_CNT}, 1")
    a(f"s_cmp_lt_u32 s{S_CNT}, 8")
    a("s_cbranch_scc1 L_att_loop")
    attn_step(a, 1, 0, None, 0)
    a("s_waitcnt lgkmcnt(0)")
    attn_step(a, 1, 1, None, 0, do_qk=False)
    a("s_nop 1")
    Vp = A_V[1]; Pp = A_P[1]
    a(f"v_mfma_f32_32x32x16_bf16 {vr(A_O[1],16)}, {vr(Vp,4)}, {vr(Pp,4)}, {vr(A_O[1],16)}")
    a(f"v_mfma_f32_32x32x16_bf16 {vr(A_O[1],16)}, {vr(Vp+4,4)}, {vr(Pp+4,4)}, {vr(A_O[1],16)}")
    a(f"v_smfmac_f32_16x16x64_bf16 {vr(A_L[1],4)}, {vr(A_SEL,4)}, {vr(Pp,8)}, v{A_IDX}")
    stamp(a, 4)
    a.nop(16)
    a(f"s_mov_b32 s78, {fbits(2.0**-64)}")
    a(f"s_mov_b32 s79, {fbits(2.0**64)}")
    for r in range(2):
        ok = a.newlabel("rb_ok")
        a(f"v_add_f32 v{A_T}, v{A_L[r]}, v{A_L[r]+1}")
        a(f"v_mov_b32 v{A_T+3}, 0")
        for i in range(16):
            a(f"v_fma_f32 v{A_T+3}, v{A_O[r]+i}, 0, v{A_T+3}")
        a(f"v_cmp_le_f32 vcc, s78, v{A_T}")
        a(f"v_cmp_ge_f32 s[80:81], s79, v{A_T}")
        a(f"v_cmp_o_f32 s[82:83], v{A_T+3}, v{A_T+3}")
        a("s_nop 4")
        a("s_and_b64 s[80:81], s[80:81], vcc")
        a("s_and_b64 s[80:81], s[80:81], s[82:83]")
        a("s_cmp_eq_u64 s[80:81], -1")
        if opt("forceslow", "0") == "1": a("s_cmp_eq_u32 s3, 77")
        a(f"s_cbranch_scc1 {ok}")
        slow_path(a, r)
        a(f"v_add_f32 v{A_T}, v{A_L[r]}, v{A_L[r]+1}")
        a.label(ok)
        a(f"v_rcp_f32 v{A_T+1}, v{A_T}")
        a("s_nop 0")
        for i in range(16):
            a(f"v_mul_f32 v{A_O[r]+i}, v{A_T+1}, v{A_O[r]+i}")
    a(f"v_lshlrev_b32 v{A_T+2}, 4, v{V_LANE}")
    for r in range(2):
        for d in range(8):
            a(f"v_cvt_pk_bf16_f32 v{A_S[r]+d}, v{A_O[r]+2*d}, v{A_O[r]+2*d+1}")
        a(f"buffer_store_dwordx4 {vr(A_S[r],4)}, v{A_T+2}, s[{S_WSSRD}:{S_WSSRD+3}], s{S_OOFF} offen offset:{2048*r} sc1")
        a(f"buffer_store_dwordx4 {vr(A_S[r]+4,4)}, v{A_T+2}, s[{S_WSSRD}:{S_WSSRD+3}], s{S_OOFF} offen offset:{2048*r+1024} sc1")
    a(f"s_lshr_b32 s60, s{S_W}, 2")
    a("s_cmp_eq_u32 s60, 0")
    a(f"s_cselect_b32 s60, {4*SLOT}, 0")
    a(f"s_add_u32 s60, s60, {XPART}")
    a(f"s_and_b32 s62, s{S_W}, 3")
    a("s_lshl_b32 s62, s62, 12")
    a("s_add_u32 s60, s60, s62")
    a(f"v_add_u32 v{A_T+3}, s60, v{A_T+2}")
    for r in range(2):
        for i in range(2):
            a(f"ds_write_b128 v{A_T+3}, {vr(A_S[r]+4*i,4)} offset:{r*2048 + i*1024}")
    gemm_addr(a, 'o')
    for i in range(32):
        a(f"v_mov_b32 v{G_ACC+i}, 0")
    a(f"s_mov_b32 s{S_NXT}, {4*SLOT}")
    a(f"s_mov_b32 s{S_CUR}, 0")
    set_slots(a)
    a("s_waitcnt vmcnt(0) lgkmcnt(0)")
    a("s_barrier")
    stamp(a, 5)
    for j in range(PD):
        gemm_reads(a, 'o', j, True)
    adv_slots(a); set_slots(a)
    c_gemm_chunk(a, 'o', False, True)
    c_gemm_chunk(a, 'o', False, False)
    a(f"s_mov_b32 s{S_NXT}, {1*SLOT}")
    set_slots(a)
    a("s_barrier")
    stamp(a, 6)
    for j in range(PD):
        gemm_reads(a, 'o', j, True)
    adv_slots(a); set_slots(a)
    c_gemm_chunk(a, 'o', False, True)
    a(f"s_mov_b32 s{S_CNT}, 12")
    a(".p2align 6")
    a.label("L_o_loop")
    c_gemm_chunk(a, 'o', True, True)
    a(f"s_sub_u32 s{S_CNT}, s{S_CNT}, 1")
    a(f"s_cmp_lg_u32 s{S_CNT}, 0")
    a("s_cbranch_scc1 L_o_loop")
    c_gemm_chunk(a, 'o', False, False)
    if GPRIO: a("s_setprio 0")
    stamp(a, 7)
    a(f"s_lshl_b32 s7, s4, 7")
    a(f"s_and_b32 s60, s{S_W}, 3")
    a(f"s_lshl_b32 s60, s60, 5")
    a(f"s_add_u32 s7, s7, s60")
    a(f"s_lshl_b32 s7, s7, 12")
    a(f"s_lshl_b32 s60, s3, 11")
    a(f"s_add_u32 s7, s7, s60")
    a(f"s_lshl_b32 s60, s5, 8")
    a(f"s_add_u32 s7, s7, s60")
    a(f"s_lshr_b32 s60, s{S_W}, 2")
    a(f"s_lshl_b32 s60, s60, 7")
    a(f"s_add_u32 s7, s7, s60")
    t = G_TMP
    if opt("cst", "1") == "1":
        OST = 32768; RS = 144
        a(f"s_mul_i32 s60, s{S_W}, {32*RS}")
        a(f"s_add_u32 s60, s60, {OST}")
        a(f"v_and_b32 v{t}, 31, v{V_LANE}")
        a(f"v_mul_u32_u24 v{t}, {RS}, v{t}")
        a(f"v_lshrrev_b32 v{t+1}, 5, v{V_LANE}")
        a(f"v_lshl_add_u32 v{t}, v{t+1}, 4, v{t}")
        a(f"v_add_u32 v{t}, s60, v{t}")
        a(f"v_lshrrev_b32 v{t+1}, 3, v{V_LANE}")
        a(f"v_mul_u32_u24 v{t+2}, {RS}, v{t+1}")
        a(f"v_and_b32 v{t+3}, 7, v{V_LANE}")
        a(f"v_lshl_add_u32 v{t+2}, v{t+3}, 4, v{t+2}")
        a(f"v_add_u32 v{t+2}, s60, v{t+2}")
        a(f"v_lshlrev_b32 v{t+1}, 12, v{t+1}")
        a(f"v_lshl_add_u32 v{t+1}, v{t+3}, 4, v{t+1}")
        for hd in range(2):
            for d in range(8):
                a(f"v_cvt_pk_bf16_f32 v{G_AF+8*hd+d}, v{G_ACC+16*hd+2*d}, v{G_ACC+16*hd+2*d+1}")
        a("s_nop 1")
        for hd in range(2):
            for qd in range(2):
                b = G_AF + 8*hd + 4*qd
                a(f"v_permlane32_swap_b32 v{b}, v{b+2}")
                a(f"v_permlane32_swap_b32 v{b+1}, v{b+3}")
        a("s_nop 1")
        for hd in range(2):
            for qd in range(2):
                b = G_AF + 8*hd + 4*qd
                a(f"ds_write_b128 v{t}, {vr(b,4)} offset:{hd*64 + qd*32}")
        a("s_waitcnt lgkmcnt(0)")
        for i in range(4):
            a(f"ds_read_b128 {vr(G_BF+4*i,4)}, v{t+2} offset:{8*i*RS}")
        for i in range(4):
            a(f"s_waitcnt lgkmcnt({3-i})")
            a(f"buffer_store_dwordx4 {vr(G_BF+4*i,4)}, v{t+1}, s[{S_OUTSRD}:{S_OUTSRD+3}], s7 offen {opt('outf','nt')}")
            if i < 3: a(f"s_add_u32 s7, s7, {8*4096}")
    else:
        a(f"v_and_b32 v{t}, 31, v{V_LANE}")
        a(f"v_lshlrev_b32 v{t}, 12, v{t}")
        a(f"v_lshrrev_b32 v{t+1}, 5, v{V_LANE}")
        a(f"v_lshl_add_u32 v{t}, v{t+1}, 4, v{t}")
        a.nop(8)
        for hd in range(2):
            for d in range(8):
                a(f"v_cvt_pk_bf16_f32 v{G_AF+8*hd+d}, v{G_ACC+16*hd+2*d}, v{G_ACC+16*hd+2*d+1}")
        a("s_nop 1")
        for hd in range(2):
            for qd in range(2):
                b = G_AF + 8*hd + 4*qd
                a(f"v_permlane32_swap_b32 v{b}, v{b+2}")
                a(f"v_permlane32_swap_b32 v{b+1}, v{b+3}")
        a("s_nop 1")
        for hd in range(2):
            for qd in range(2):
                b = G_AF + 8*hd + 4*qd
                a(f"buffer_store_dwordx4 {vr(b,4)}, v{t}, s[{S_OUTSRD}:{S_OUTSRD+3}], s7 offen offset:{hd*64 + qd*32}")
    if PROF:
        a("s_waitcnt vmcnt(0)")
        stamp(a, 8)
        stamp_flush(a)
    a("s_endpgm")

def l_dma_w(a, slot):
    a(f"s_add_u32 m0, s{S_M0W}, {slot*SLOT}")
    a("s_nop 0")
    for j in range(4):
        a(f"buffer_load_dwordx4 v{L_WOFF+j}, s[{S_WSRD}:{S_WSRD+3}], s{S_WSOFF} offen offset:{1024*j} {opt('wf','')} lds")
    a(f"s_add_u32 s{S_WSOFF}, s{S_WSOFF}, {64*2048}")
    a(f"s_and_b32 s{S_WSOFF}, s{S_WSOFF}, 0x1fffff")
def l_dma_x(a, mode, slot):
    a(f"s_add_u32 m0, s{S_M0X}, {slot*SLOT}")
    a("s_nop 0")
    for j in range(4):
        if mode == 'q':
            a(f"buffer_load_dwordx4 v{L_XOFF+j}, s[{S_XSRD}:{S_XSRD+3}], s{S_XSOFF} offen offset:{1024*j} {XFLAG} lds")
        else:
            a(f"buffer_load_dwordx4 v{L_XOFF}, s[{S_XSRD}:{S_XSRD+3}], s{S_XSOFF} offen offset:{1024*j} sc1 lds")
    a(f"s_add_u32 s{S_XSOFF}, s{S_XSOFF}, {128 if mode == 'q' else 4096}")
    a(f"s_and_b32 s{S_XSOFF}, s{S_XSOFF}, {2047 if mode == 'q' else 65535}")
def l_dma_chunk(a, mode, slot):
    if mode == 'o' and opt("nodma", "0") == "1": return
    l_dma_w(a, slot); l_dma_x(a, mode, slot)
def l_kv_dma(a, base_imm=None, base_sgpr=None):
    if base_imm is not None:
        a(f"s_add_u32 m0, s{S_T1}, {base_imm}")
    else:
        a(f"s_add_u32 m0, s{S_T1}, s{base_sgpr}")
    a("s_nop 0")
    for j in range(4):
        a(f"buffer_load_dwordx4 v{L_KVOFF}, s[{S_WSSRD}:{S_WSSRD+3}], s{S_KVSOFF} offen offset:{1024*j} sc1 lds")
    a("s_add_u32 m0, m0, 4096")
    a(f"s_add_u32 s60, s{S_KVSOFF}, 4096")
    for j in range(4):
        a(f"buffer_load_dwordx4 v{L_KVOFF}, s[{S_WSSRD}:{S_WSSRD+3}], s60 offen offset:{1024*j} sc1 lds")
    a(f"s_add_u32 s{S_KVSOFF}, s{S_KVSOFF}, 32768")

def gen_loader(a):
    L = V_LANE
    t0, t1, t2, t3 = L_T, L_T+1, L_T+2, L_T+3
    a(f"s_sub_u32 s{S_LW}, s{S_W}, 8")
    a("s_lshl_b32 s60, s3, 4")
    a("s_add_u32 s60, s60, s4")
    a("s_lshl_b32 s60, s60, 10")
    a(f"s_add_u32 s60, s60, {WS_FLAG}")
    a(f"v_and_b32 v{L_FADDR}, 7, v{L}")
    a(f"v_lshlrev_b32 v{L_FADDR}, 7, v{L_FADDR}")
    a(f"v_add_u32 v{L_FADDR}, s60, v{L_FADDR}")
    a("s_lshr_b32 s60, s5, 1")
    a("s_lshl_b32 s60, s60, 5")
    a("s_add_u32 s60, s60, s7")
    a(f"s_lshl_b32 s65, s{S_LW}, 3")
    a("s_add_u32 s60, s60, s65")
    a("s_lshl_b32 s72, s60, 11")
    a(f"v_lshrrev_b32 v{t0}, 4, v{L}")
    a(f"v_and_b32 v{t1}, 15, v{L}")
    a(f"s_and_b32 s65, s65, 15")
    for e in range(2):
        a(f"v_add_u32 v{t2}, {4*e}, v{t0}")
        a(f"v_add_u32 v{t3}, s65, v{t2}")
        a(f"v_xor_b32 v{t3}, v{t3}, v{t1}")
        a(f"v_lshlrev_b32 v{t3}, 4, v{t3}")
        a(f"v_lshl_add_u32 v{32+e}, v{t2}, 11, v{t3}")
        if e: a(f"v_subrev_u32 v{32+e}, {1024*e}, v{32+e}")
    a(f"v_lshlrev_b32 v34, 4, v{L}")
    a(f"s_lshl_b32 s74, s{S_LW}, 11")
    a("s_and_b32 s77, s5, 1")
    a("s_lshl_b32 s77, s77, 2")
    a("s_lshr_b32 s78, s2, 3")
    if opt("stgrot", "1") != "1":
        a("s_mov_b32 s77, 0"); a("s_mov_b32 s78, 0")
    if opt("stgrot", "1") != "1":
        a("s_mov_b32 s77, 0"); a("s_mov_b32 s78, 0")
    def x_round():
        a("s_and_b32 s77, s77, 7")
        a("s_lshl_b32 s60, s77, 13")
        a("s_add_u32 s60, s60, s74")
        a(f"s_add_u32 m0, s60, {XSTG}")
        a("s_lshl_b32 s65, s77, 8")
        a("s_add_u32 s65, s65, s72")
        for e in range(2):
            a(f"buffer_load_dwordx4 v{32+e}, s[{S_XSRD}:{S_XSRD+3}], s65 offen offset:{1024*e} {XFLAG} lds")
        a("s_add_u32 s77, s77, 1")
    def w_round():
        a("s_and_b32 s78, s78, 7")
        a("s_lshl_b32 s60, s78, 13")
        a("s_add_u32 s60, s60, s74")
        a(f"s_add_u32 m0, s60, {WSTG0}")
        a("s_add_u32 s78, s78, 1")
        for e in range(2):
            a(f"buffer_load_dwordx4 v34, s[{S_KWSRD}:{S_KWSRD+3}], s60 offen offset:{1024*e} {opt('kwf','')} lds")
    WLATE = opt("wlate", "0") == "1"
    if WLATE:
        a("s_lshr_b32 s60, s2, 4")
        a("s_and_b32 s60, s60, 15")
        a("s_lshl_b32 s60, s60, 2")
        a(f"s_add_u32 s60, s60, s{S_LW}")
        a("s_lshl_b32 s60, s60, 10")
        a(f"v_and_b32 v{t0}, 7, v{L}")
        a(f"v_lshlrev_b32 v{t0}, 7, v{t0}")
        a(f"buffer_load_dword v37, v{t0}, s[{S_KWSRD}:{S_KWSRD+3}], s60 offen")
        for r in range(8): x_round()
    else:
        for r in range(8):
            x_round(); w_round()
    stamp(a, 9)
    a(f"v_lshrrev_b32 v{t0}, 4, v{L}")
    a(f"v_bfe_u32 v{t1}, v{L}, 2, 2")
    a(f"v_xor_b32 v{t1}, v{t1}, v{t0}")
    a(f"v_lshlrev_b32 v{t1}, 6, v{t1}")
    a(f"v_lshl_add_u32 v{t1}, v{t0}, 11, v{t1}")
    a(f"v_and_b32 v{t2}, 3, v{L}")
    a(f"v_lshl_add_u32 v{t1}, v{t2}, 4, v{t1}")
    a(f"s_lshl_b32 s60, s{S_LW}, 15")
    a(f"s_lshl_b32 s65, s5, 8")
    a(f"s_add_u32 s60, s60, s65")
    a(f"v_add_u32 v{L_WOFF}, s60, v{t1}")
    for j in range(1, 4):
        a(f"v_add_u32 v{L_WOFF+j}, {j*(8192-1024)}, v{L_WOFF}")
    a(f"v_lshrrev_b32 v{t0}, 3, v{L}")
    a(f"s_lshl_b32 s60, s{S_LW}, 5")
    a(f"s_add_u32 s60, s60, s7")
    a(f"v_add_u32 v{t0}, s60, v{t0}")
    a(f"v_lshlrev_b32 v{t0}, 11, v{t0}")
    a(f"v_and_b32 v{t1}, 7, v{L}")
    a(f"v_lshrrev_b32 v{t2}, 4, v{L}")
    a(f"v_xor_b32 v{t1}, v{t1}, v{t2}")
    for e in range(4):
        if e & 1:
            a(f"v_xor_b32 v{t3}, 4, v{t1}")
            a(f"v_lshl_add_u32 v{L_XOFF+e}, v{t3}, 4, v{t0}")
        else:
            a(f"v_lshl_add_u32 v{L_XOFF+e}, v{t1}, 4, v{t0}")
        if e: a(f"v_add_u32 v{L_XOFF+e}, {e*(8*2048-1024)}, v{L_XOFF+e}")
    a(f"s_lshl_b32 s{S_M0W}, s{S_LW}, 12")
    a(f"s_lshl_b32 s{S_M0X}, s{S_LW}, 12")
    a(f"s_add_u32 s{S_M0X}, s{S_M0X}, {XPART}")
    a("s_and_b32 s60, s4, 3")
    a("s_lshl_b32 s60, s60, 2")
    a("s_lshl_b32 s65, s5, 1")
    a("s_add_u32 s60, s60, s65")
    a("s_and_b32 s60, s60, 15")
    if opt("rot", "1") != "1": a("s_mov_b32 s60, 0")
    a(f"s_lshl_b32 s{S_WSOFF}, s60, 17")
    a(f"s_lshl_b32 s{S_XSOFF}, s60, 7")
    if WLATE:
        if opt("c0first", "1") == "1":
            l_dma_chunk(a, 'q', 0)
            for r in range(8): w_round()
        else:
            for r in range(8): w_round()
            l_dma_chunk(a, 'q', 0)
    else:
        l_dma_chunk(a, 'q', 0)
    a(f"buffer_load_dword v{L_SNAP}, v{L_FADDR}, s[{S_WSSRD}:{S_WSSRD+3}], 0 offen sc1")
    NT = 0
    if opt("wqpf", "0") == "1":
        NT = 2
        a(f"v_lshrrev_b32 v{t0}, 1, v{L}")
        a(f"v_lshlrev_b32 v{t0}, 11, v{t0}")
        a(f"v_and_b32 v{t1}, 1, v{L}")
        a(f"v_lshl_add_u32 v{t0}, v{t1}, 7, v{t0}")
        a("s_lshl_b32 s60, s5, 8")
        a(f"v_add_u32 v{t0}, s60, v{t0}")
        a(f"s_lshl_b32 s60, s{S_LW}, 17")
        a(f"s_add_u32 s60, s60, s{S_WSOFF}")
        a("s_and_b32 s60, s60, 0x1fffff")
        a(f"buffer_load_dword v35, v{t0}, s[{S_WSRD}:{S_WSRD+3}], s60 offen")
        a("s_add_u32 s60, s60, 0x10000")
        a(f"buffer_load_dword v36, v{t0}, s[{S_WSRD}:{S_WSRD+3}], s60 offen")
    a(f"v_mov_b32 v{L_DBG}, s3")
    a(f"v_lshlrev_b32 v{L_DBG}, 7, v{L_DBG}")
    a(f"v_lshlrev_b32 v{L_KVOFF}, 4, v{L}")
    a(f"s_lshl_b32 s{S_T1}, s{S_LW}, 13")
    a(f"v_add_u32 v{L_KVOFF}, s{S_T1}, v{L_KVOFF}")
    a(f"s_lshl_b32 s{S_KVSOFF}, s3, 18")
    if WS_KV: a(f"s_add_u32 s{S_KVSOFF}, s{S_KVSOFF}, {WS_KV}")
    stamp(a, 10)
    a(f"s_waitcnt vmcnt({(1 if (WLATE and opt('c0first','1') == '1') else 9) + NT})")
    stamp(a, 11)
    a("s_barrier")
    a("s_barrier")
    if opt("k1early", "1") == "1":
        l_dma_chunk(a, 'q', 1)
        a("s_barrier")
        l_dma_chunk(a, 'q', 2)
        l_dma_chunk(a, 'q', 3)
    else:
        for c in (1, 2, 3): l_dma_chunk(a, 'q', c)
        a("s_barrier")
    a("s_waitcnt vmcnt(24)")
    a("s_barrier")
    a("s_waitcnt vmcnt(16)")
    a("s_barrier")
    a(f"s_cmp_ge_u32 s{S_LW}, 2")
    a("s_cbranch_scc1 L_l_dummy")
    a(f"s_lshl_b32 s60, s{S_LW}, 11")
    a(f"s_add_u32 s60, s60, {PART}")
    a(f"v_lshlrev_b32 v{t0}, 4, v{L}")
    a(f"v_add_u32 v{t1}, s60, v{t0}")
    for w in range(8):
        a(f"ds_read_b128 {vr(40+8*w,4)}, v{t1} offset:{4096*w}")
        a(f"ds_read_b128 {vr(44+8*w,4)}, v{t1} offset:{4096*w+1024}")
        if w == 3: a("s_waitcnt lgkmcnt(4)")
    a("s_waitcnt lgkmcnt(0)")
    for w in range(1, 8):
        for r in range(8):
            a(f"v_add_f32 v{40+r}, v{40+r}, v{40+8*w+r}")
    for d in range(4):
        a(f"v_cvt_pk_bf16_f32 v{36+d}, v{40+2*d}, v{41+2*d}")
    a("s_lshr_b32 s60, s5, 1")
    a("s_lshl_b32 s65, s4, 2")
    a("s_add_u32 s60, s60, s65")
    a("s_lshl_b32 s60, s60, 12")
    a("s_and_b32 s65, s5, 1")
    a("s_lshl_b32 s65, s65, 11")
    a("s_add_u32 s60, s60, s65")
    a(f"s_lshl_b32 s65, s{S_LW}, 10")
    a("s_add_u32 s60, s60, s65")
    a("s_lshl_b32 s65, s3, 18")
    a("s_add_u32 s60, s60, s65")
    if WS_KV: a(f"s_add_u32 s60, s60, {WS_KV}")
    a(f"buffer_store_dwordx4 v[36:39], v{t0}, s[{S_WSSRD}:{S_WSSRD+3}], s60 offen sc1")
    a("s_branch L_l_red_done")
    a.label("L_l_dummy")
    a(f"buffer_load_dword v36, v{L_FADDR}, s[{S_WSSRD}:{S_WSSRD+3}], 0 offen sc1")
    a.label("L_l_red_done")
    a("s_waitcnt vmcnt(9)")
    a("s_barrier")
    l_dma_chunk(a, 'q', 4)
    l_dma_chunk(a, 'q', 0)
    a("s_waitcnt vmcnt(17)")
    a("s_barrier")
    l_dma_chunk(a, 'q', 6 % NSLOT)
    a("s_waitcnt vmcnt(16)")
    a("s_barrier")
    l_dma_chunk(a, 'q', 7 % NSLOT)
    a(f"s_cmp_eq_u32 s{S_LW}, 0")
    a("s_cbranch_scc0 L_l_nosig")
    a("s_mov_b64 exec, 1")
    a(f"v_mov_b32 v{t0}, 1")
    a(f"global_atomic_add v{L_DBG}, v{t0}, s[{S_DBG}:{S_DBG+1}]")
    a("s_mov_b64 exec, -1")
    a.label("L_l_nosig")
    for c in range(4, 10):
        a("s_waitcnt vmcnt(16)")
        a("s_barrier")
        l_dma_chunk(a, 'q', (c + 4) % NSLOT)
    a(f"global_load_dword v{L_TMP}, v{L_DBG}, s[{S_DBG}:{S_DBG+1}] sc1")
    for c in (10, 11):
        a("s_waitcnt vmcnt(17)")
        a("s_barrier")
        l_dma_chunk(a, 'q', (c + 4) % NSLOT)
    a("s_waitcnt vmcnt(16)")
    a("s_barrier")
    a(f"v_readfirstlane_b32 s60, v{L_TMP}")
    a("s_mov_b32 s65, 0x200000")
    a("s_nop 2")
    a("s_cmp_ge_u32 s60, 128")
    a("s_cbranch_scc1 L_l_kvok")
    a.label("L_l_kvpoll")
    a(f"global_load_dword v{L_TMP}, v{L_DBG}, s[{S_DBG}:{S_DBG+1}] sc1")
    a("s_waitcnt vmcnt(0)")
    a(f"v_readfirstlane_b32 s60, v{L_TMP}")
    a("s_nop 3")
    a("s_cmp_ge_u32 s60, 128")
    a("s_cbranch_scc1 L_l_kvok")
    a("s_sleep 8")
    a("s_sub_u32 s65, s65, 1")
    a("s_cmp_lg_u32 s65, 0")
    a("s_cbranch_scc1 L_l_kvpoll")
    a.label("L_l_kvok")
    l_kv_dma(a, base_imm=KVR[0])
    a("s_waitcnt vmcnt(16)")
    a("s_barrier")
    l_kv_dma(a, base_imm=KVR[1])
    a("s_waitcnt vmcnt(16)")
    a("s_barrier")
    l_kv_dma(a, base_imm=KVR[2])
    srd(a, S_WSRD, 48, 2 << 20)
    srd(a, S_XSRD, 52, WS_SIZE)
    a(f"s_lshl_b32 s60, s{S_LW}, 16")
    a(f"s_lshl_b32 s65, s3, 22")
    a(f"s_add_u32 s60, s60, s65")
    a(f"s_lshl_b32 s65, s4, 18")
    a(f"s_add_u32 s60, s60, s65")
    a(f"s_add_u32 s60, s60, {WS_O}")
    a(f"v_lshlrev_b32 v{t0}, 4, v{L}")
    a(f"v_add_u32 v{L_XOFF}, s60, v{t0}")
    a(f"s_lshl_b32 s{S_WSOFF}, s5, 18")
    a(f"s_lshl_b32 s{S_XSOFF}, s5, 13")
    a(f"s_add_u32 s{S_XSOFF}, s{S_XSOFF}, 8192")
    a(f"s_and_b32 s{S_XSOFF}, s{S_XSOFF}, 65535")
    a(f"v_lshrrev_b32 v{t1}, 1, v{L}")
    a("s_and_b32 s60, s4, 3")
    a("s_lshl_b32 s60, s60, 8")
    a(f"s_lshl_b32 s65, s{S_LW}, 6")
    a("s_add_u32 s60, s60, s65")
    a(f"v_add_u32 v{t1}, s60, v{t1}")
    a(f"v_lshlrev_b32 v{t1}, 11, v{t1}")
    a(f"v_and_b32 v{t2}, 1, v{L}")
    a(f"v_lshl_add_u32 v{t1}, v{t2}, 7, v{t1}")
    a("s_lshl_b32 s60, s5, 8")
    a(f"v_add_u32 v{t1}, s60, v{t1}")
    a("s_waitcnt vmcnt(16)")
    a("s_barrier")
    for j in range(1, 8):
        a("s_waitcnt vmcnt(8)")
        a("s_barrier")
        if j <= 5:
            l_kv_dma(a, base_imm=KVR[(j - 1) % 3])
        if j == 1 and opt("wopf", "1") == "1":
            a(f"buffer_load_dword v{L_TMP}, v{t1}, s[{S_WSRD}:{S_WSRD+3}], 0 offen")
            a(f"s_mov_b32 s60, {32*2048}")
            a(f"buffer_load_dword v{L_TMP}, v{t1}, s[{S_WSRD}:{S_WSRD+3}], s60 offen")
        if j == 6:
            l_dma_w(a, 4); l_dma_w(a, 0)
        if j == 7:
            l_dma_w(a, 1)
    a("s_waitcnt vmcnt(0)")
    a("s_barrier")
    l_dma_w(a, 2)
    a(f"v_add_u32 v{L_SNAP}, 1, v{L_SNAP}")
    a(f"s_cmp_eq_u32 s{S_LW}, 0")
    a("s_cbranch_scc0 L_l_noflag")
    a(f"v_cmp_eq_u32 vcc, s5, v{L}")
    a("s_nop 4")
    a("s_mov_b64 exec, vcc")
    a(f"buffer_store_dword v{L_SNAP}, v{L_FADDR}, s[{S_WSSRD}:{S_WSSRD+3}], 0 offen sc1")
    a("s_mov_b64 exec, -1")
    a.label("L_l_noflag")
    a("s_mov_b32 s65, 0x200000")
    a.label("L_l_opoll")
    a(f"buffer_load_dword v{L_TMP}, v{L_FADDR}, s[{S_WSSRD}:{S_WSSRD+3}], 0 offen sc1")
    a("s_waitcnt vmcnt(0)")
    a(f"v_cmp_eq_u32 vcc, v{L_TMP}, v{L_SNAP}")
    a("s_nop 4")
    a("s_cmp_eq_u64 vcc, -1")
    a("s_cbranch_scc1 L_l_owait")
    a(f"s_sleep {opt('sleep','4')}")
    a("s_sub_u32 s65, s65, 1")
    a("s_cmp_lg_u32 s65, 0")
    a("s_cbranch_scc1 L_l_opoll")
    a.label("L_l_owait")
    for c in (2, 3, 4):
        l_dma_x(a, 'o', (4 + c) % NSLOT)
    l_dma_w(a, (4 + 4) % NSLOT)
    a("s_waitcnt vmcnt(8)")
    a("s_barrier")
    l_dma_chunk(a, 'o', (4 + 5) % NSLOT)
    l_dma_chunk(a, 'o', (4 + 6) % NSLOT)
    for c in range(3, 12):
        a("s_waitcnt vmcnt(16)")
        a("s_barrier")
        l_dma_chunk(a, 'o', (4 + c + 4) % NSLOT)
    a("s_waitcnt vmcnt(16)")
    a("s_barrier")
    a("s_waitcnt vmcnt(8)")
    a("s_barrier")
    a("s_waitcnt vmcnt(0)")
    a("s_barrier")
    if PROF:
        stamp(a, 8)
        stamp_flush(a)
    a("s_endpgm")

def gen_main(a):
    name = KNAME
    a(f".globl {name}\n.p2align 8\n.type {name},@function")
    a.label(name)
    a("s_cmp_ge_u32 s2, 256")
    a("s_cbranch_scc1 L_end")
    a("s_and_b32 s4, s2, 7")
    a("s_lshr_b32 s5, s2, 3")
    a("s_lshr_b32 s3, s4, 2")
    a("s_and_b32 s4, s4, 3")
    a("s_lshl_b32 s4, s4, 2")
    a("s_lshr_b32 s6, s5, 3")
    a("s_add_u32 s4, s4, s6")
    a("s_and_b32 s5, s5, 7")
    load_args(a, 3)
    a("v_lshrrev_b32 v1, 6, v0")
    a(f"v_and_b32 v{V_LANE}, 63, v0")
    a(f"v_readfirstlane_b32 s{S_W}, v1")
    srd(a, S_WSSRD, 52, WS_SIZE)
    srd(a, S_XSRD, 40, 4 << 20)
    srd(a, S_WSRD, 42, 2 << 20)
    a("s_and_b32 s60, s5, 1")
    a("s_cmp_eq_u32 s60, 0")
    a("s_cselect_b32 s54, s44, s46")
    a("s_cselect_b32 s55, s45, s47")
    srd(a, S_KWSRD, 54, 65536)
    srd(a, S_OUTSRD, 50, 8 << 20)
    a("s_lshl_b32 s7, s4, 7")
    stamp_init(a); stamp(a, 0)
    a(f"s_cmp_ge_u32 s{S_W}, 8")
    a("s_cbranch_scc1 L_loader")
    gen_compute(a)
    a.label("L_loader")
    gen_loader(a)
    a.label("L_end")
    a("s_endpgm")
    return name, NVGPR, LDS_MAIN

def main(out_path):
    ref = open("cdna_kernels/" + NAME + ".s.ref").read().split("\n")
    header = [l for l in ref if l.startswith(";") and "@launch" not in l and "Override" not in l and "grid=ceil" not in l]
    a = Asm()
    name, vg, lds = gen_main(a)
    txt = "\n".join(header) + "\n"
    txt += f"; @launch grid=(256,1,1) block=(768,1,1) lds={lds}\n"
    txt += '.amdgcn_target "amdgcn-amd-amdhsa--gfx950"\n.text\n'
    txt += a.text()
    txt += '.section .rodata,"a"\n'
    txt += ".p2align 6\n" + kernel_desc(name, vg)
    open(out_path, "w").write(txt)
    nb = sum(1 for l in a.lines if l.strip() == "s_barrier")
    print("static barriers:", nb)

if __name__ == "__main__":
    if "--prof" in sys.argv:
        PROF = True
        sys.argv.remove("--prof")
    main(sys.argv[1] if len(sys.argv) > 1 else "cdna_kernels/" + NAME + ".s")
```

```python
import sys, math, os, struct
sys.path.insert(0, __file__.rsplit("/", 1)[0])
from asmlib import *

NAME = "concat_heads__grouped_kv_mqa__grouped_kv_mqa__prompt"
KNAME = NAME + "_kernel"
import os as _os
_O = dict(kv.split("=") for kv in _os.environ.get("GENOPT", "").split(",") if "=" in kv)
WS_BASE = int(_O.get("wsbase", "0")) << 20
WS_KV = WS_BASE
WS_O = WS_BASE + (1 << 20)
WS_FLAG = WS_BASE + (10 << 20)
WS_SIZE = 268435456
CSCALE = math.log2(math.e) / math.sqrt(32.0)
def fbits(x): return "0x%08x" % struct.unpack("<I", struct.pack("<f", x))[0]
OPT = dict(kv.split("=") for kv in os.environ.get("GENOPT", "").split(",") if "=" in kv)
def opt(k, d): return OPT.get(k, d)

SLOT = 32768
NSLOT = 5
XPART = 16384
KVR = [32768, 65536, 98304]
PART = 131072
XSTG = 32768
WSTG0 = 98304
LDS_MAIN = 163840
NVGPR = 168

PROF = False
WS_PROF = 12 << 20
V_PROF = 167
S_WSSRD = 56
V_LANE = 2
def stamp(a, idx):
    if not PROF: return
    a("s_memtime s[92:93]")
    a("s_memrealtime s[94:95]")
    a("s_waitcnt lgkmcnt(0)")
    a(f"v_writelane_b32 v{V_PROF}, s92, {idx}")
    a(f"v_writelane_b32 v{V_PROF}, s94, {idx+32}")
def stamp_init(a):
    if not PROF: return
    a(f"v_mov_b32 v{V_PROF}, 0")
def stamp_flush(a):
    if not PROF: return
    a(f"s_mul_i32 s96, s2, 12")
    a(f"s_add_u32 s96, s96, s6")
    a(f"s_lshl_b32 s96, s96, 8")
    a(f"s_add_u32 s96, s96, {WS_PROF + (1<<20)}")
    a(f"v_lshlrev_b32 v{V_PROF-1}, 2, v{V_LANE}")
    a(f"buffer_store_dword v{V_PROF}, v{V_PROF-1}, s[{S_WSSRD}:{S_WSSRD+3}], s96 offen")
    a("s_waitcnt vmcnt(0)")

A_KVADDR = 1
A_SEL = 8
A_IDX = 12
A_Q = [16, 24]
A_O = [32, 48]
A_L = [64, 68]
A_S = [72, 88]
A_P = [104, 112]
A_K = [120, 128]
A_V = [136, 144]
A_T = 152
G_ACC = 32
G_AF = 72
G_BF = 104
G_TMP = 124
L_WOFF = 8
L_XOFF = 12
L_KVOFF = 16
L_DBG = 17
L_TMP = 18
L_SNAP = 19
L_FADDR = 20
L_T = 24
S_XSRD = 8
S_WSRD = 12
S_DBG = 36
S_W = 6
S_LW = 62
S_M0W = 63
S_M0X = 64
S_WSOFF = 66
S_XSOFF = 67
S_CNT = 69
S_T0 = 70
S_T1 = 71
S_KVSOFF = 73
S_OUTSRD = 84
S_KWSRD = 88
S_OOFF = 61
XFLAG = "nt" if opt("xnt", "0") == "1" else ""

def load_args(a, p_sgpr):
    a("s_load_dwordx16 s[16:31], s[0:1], 0")
    a("s_load_dwordx4 s[32:35], s[0:1], 64")
    a("s_load_dwordx2 s[50:51], s[0:1], 80")
    a(f"s_load_dwordx2 s[{S_DBG}:{S_DBG+1}], s[0:1], 88")
    a("s_load_dwordx2 s[52:53], s[0:1], 96")
    a("s_waitcnt lgkmcnt(0)")
    a(f"s_cmp_eq_u32 s{p_sgpr}, 0")
    for i in range(5):
        for h in range(2):
            a(f"s_cselect_b32 s{40+2*i+h}, s{16+2*i+h}, s{26+2*i+h}")

G_AB = 128
G_BB = 130
G_AC = 134
G_AN = 136
G_BD = 138
S_CUR = 75
S_NXT = 76
PD = int(opt("pd", "3"))
GPRIO = opt("gprio", "1") == "1"
def gemm_addr(a, mode):
    lane = V_LANE
    t0, t1, t2, t3 = G_TMP, G_TMP+1, G_TMP+2, G_TMP+3
    a(f"v_bfe_u32 v{t0}, v{lane}, 2, 2")
    a(f"v_lshrrev_b32 v{t1}, 5, v{lane}")
    a(f"v_lshl_add_u32 v{t1}, v{t1}, {3 if mode=='q' else 2}, v{t0}")
    a(f"v_lshlrev_b32 v{t1}, 8, v{t1}")
    a(f"v_bfe_u32 v{t2}, v{lane}, 4, 1")
    a(f"v_lshl_add_u32 v{t1}, v{t2}, 5, v{t1}")
    a(f"v_and_b32 v{t2}, 3, v{lane}")
    a(f"v_lshl_add_u32 v{t1}, v{t2}, 3, v{t1}")
    a(f"s_lshr_b32 s{S_T0}, s{S_W}, 2")
    a(f"s_lshl_b32 s{S_T0}, s{S_T0}, 1")
    for hd in range(2):
        a(f"s_add_u32 s{S_CNT}, s{S_T0}, {hd}")
        a(f"v_xor_b32 v{t2}, s{S_CNT}, v{t0}")
        a(f"v_lshl_add_u32 v{G_AB+hd}, v{t2}, 6, v{t1}")
    if mode == 'q':
        a(f"s_and_b32 s{S_T0}, s{S_W}, 3")
        a(f"s_lshl_b32 s{S_T0}, s{S_T0}, 5")
        a(f"v_and_b32 v{t0}, 31, v{lane}")
        a(f"v_add_u32 v{t0}, s{S_T0}, v{t0}")
        a(f"v_bfe_u32 v{t1}, v{t0}, 1, 3")
        a(f"v_lshrrev_b32 v{t2}, 5, v{lane}")
        a(f"v_lshlrev_b32 v{t0}, 7, v{t0}")
        a(f"v_add_u32 v{t0}, {XPART}, v{t0}")
        for j in range(4):
            a(f"v_or_b32 v{t3}, {2*j}, v{t2}")
            a(f"v_xor_b32 v{t3}, v{t3}, v{t1}")
            a(f"v_lshl_add_u32 v{G_BB+j}, v{t3}, 4, v{t0}")
    else:
        a(f"s_and_b32 s{S_T0}, s{S_W}, 3")
        a(f"s_lshl_b32 s{S_T0}, s{S_T0}, 12")
        a(f"s_add_u32 s{S_T0}, s{S_T0}, {XPART}")
        a(f"v_lshlrev_b32 v{t0}, 4, v{lane}")
        a(f"v_add_u32 v{t0}, s{S_T0}, v{t0}")
        for j in range(4):
            a(f"v_add_u32 v{G_BB+j}, {j*1024}, v{t0}")

def gemm_reads(a, mode, j, nxt):
    if mode == 'o' and opt("noreads", "0") == "1": return
    af = G_AF + 8*j
    bf = G_BF + 4*j
    second = 1024 if mode == 'q' else 2048
    A = G_AN if nxt else G_AC
    a(f"ds_read_b128 {vr(bf,4)}, v{G_BD+j}")
    for hd in range(2):
        a(f"ds_read_b64_tr_b16 {vr(af+4*hd,2)}, v{A+hd} offset:{j*4096}")
        a(f"ds_read_b64_tr_b16 {vr(af+4*hd+2,2)}, v{A+hd} offset:{j*4096 + second}")

def set_slots(a):
    for hd in range(2): a(f"v_add_u32 v{G_AC+hd}, s{S_CUR}, v{G_AB+hd}")
    for hd in range(2): a(f"v_add_u32 v{G_AN+hd}, s{S_NXT}, v{G_AB+hd}")
    for j in range(4):
        a(f"v_add_u32 v{G_BD+j}, s{S_CUR if j >= PD else S_NXT}, v{G_BB+j}")
def adv_slots(a):
    a(f"s_mov_b32 s{S_CUR}, s{S_NXT}")
    a(f"s_add_u32 s{S_NXT}, s{S_NXT}, {SLOT}")
    a(f"s_cmp_eq_u32 s{S_NXT}, {SLOT*NSLOT}")
    a(f"s_cselect_b32 s{S_NXT}, 0, s{S_NXT}")

def c_gemm_chunk(a, mode, barrier, next_reads):
    if barrier:
        if PROF and opt("chunkprof", "") == mode:
            a("s_memtime s[92:93]")
        a("s_barrier")
        if PROF and opt("chunkprof", "") == mode:
            a("s_memtime s[94:95]")
            a(f"s_sub_u32 m0, 26, s{S_CNT}")
            a("s_waitcnt lgkmcnt(0)")
            a(f"v_writelane_b32 v{V_PROF}, s92, m0")
            a(f"s_add_u32 m0, m0, 16")
            a("s_nop 3")
            a(f"v_writelane_b32 v{V_PROF}, s94, m0")
    for j in range(4):
        if GPRIO: a(f"s_setprio {3 - j}")
        ahead = PD - 1 if next_reads else min(PD - 1, 3 - j)
        a(f"s_waitcnt lgkmcnt({5*ahead})")
        af = G_AF + 8*j; bf = G_BF + 4*j
        jn = j + PD
        R = Asm()
        if jn < 4:
            gemm_reads(R, mode, jn, False)
        elif next_reads:
            gemm_reads(R, mode, jn - 4, True)
        rl = R.lines
        for hd in range(2):
            acc = G_ACC + 16*hd
            a(f"v_mfma_f32_32x32x16_bf16 {vr(acc,16)}, {vr(af+4*hd,4)}, {vr(bf,4)}, {vr(acc,16)}")
            if hd == 0: a.lines.extend(rl[:2])
        a.lines.extend(rl[2:])
        if j == 3 and next_reads:
            adv_slots(a)
            set_slots(a)

def c_gemm(a, mode, tag, first_slot):
    for i in range(32):
        a(f"v_mov_b32 v{G_ACC+i}, 0")
    a(f"s_mov_b32 s{S_NXT}, {first_slot*SLOT}")
    a(f"s_mov_b32 s{S_CUR}, 0")
    set_slots(a)
    a("s_barrier")
    for j in range(PD):
        gemm_reads(a, mode, j, True)
    adv_slots(a)
    set_slots(a)
    a(f"s_mov_b32 s{S_CNT}, 15")
    a(".p2align 6")
    a.label(f"L_{tag}_loop")
    c_gemm_chunk(a, mode, True, True)
    a(f"s_sub_u32 s{S_CNT}, s{S_CNT}, 1")
    a(f"s_cmp_lg_u32 s{S_CNT}, 0")
    a(f"s_cbranch_scc1 L_{tag}_loop")
    c_gemm_chunk(a, mode, False, False)
    if GPRIO: a("s_setprio 0")

def attn_step(a, t, r, read, off, do_qk=True):
    S = A_S[r]; Sn = A_S[r ^ 1]
    P = A_P[r]; Pp = A_P[r ^ 1]
    tn = t if r == 0 else t + 1
    Kn = A_K[tn & 1]; Qn = A_Q[r ^ 1]
    tp = t - 1 if r == 0 else t
    Vp = A_V[tp & 1]; Op = A_O[r ^ 1]; Lp = A_L[r ^ 1]
    E = lambda i: a(f"v_exp_f32 v{S+i}, v{S+i}")
    C = lambda i: a(f"v_cvt_pk_bf16_f32 v{P+i//2}, v{S+i}, v{S+i+1}")
    def RD(i):
        if read == 'K': a(f"ds_read_b128 {vr(A_K[(t+1)&1]+4*i,4)}, v{A_KVADDR} offset:{off+1024*i}")
        if read == 'V': a(f"ds_read_b128 {vr(A_V[(t+1)&1]+4*i,4)}, v{A_KVADDR} offset:{off+2048+1024*i}")
    if do_qk: a(f"v_mfma_f32_32x32x16_bf16 {vr(Sn,16)}, {vr(Kn,4)}, {vr(Qn,4)}, 0")
    RD(0)
    E(0); E(1); E(2); E(3)
    if do_qk: a(f"v_mfma_f32_32x32x16_bf16 {vr(Sn,16)}, {vr(Kn+4,4)}, {vr(Qn+4,4)}, {vr(Sn,16)}")
    RD(1)
    E(4); E(5); E(6); C(0); C(2)
    a(f"v_mfma_f32_32x32x16_bf16 {vr(Op,16)}, {vr(Vp,4)}, {vr(Pp,4)}, {vr(Op,16)}")
    E(7); E(8); E(9); C(4); C(6)
    a(f"v_mfma_f32_32x32x16_bf16 {vr(Op,16)}, {vr(Vp+4,4)}, {vr(Pp+4,4)}, {vr(Op,16)}")
    E(10); E(11); E(12); C(8); C(10)
    a(f"v_smfmac_f32_16x16x64_bf16 {vr(Lp,4)}, {vr(A_SEL,4)}, {vr(Pp,8)}, v{A_IDX}")
    E(13); E(14); E(15); C(12); C(14)

def slow_path(a, r):
    Q = A_Q[r]; O = A_O[r]; L = A_L[r]
    S = A_S[0]; NM = A_S[1]; P = A_P[0]; K = A_K[0]; V = A_V[0]
    M = A_T + 4; ADDR = A_T + 5
    l1 = a.newlabel("slow1"); l2 = a.newlabel("slow2")
    a(f"v_lshlrev_b32 v{ADDR}, 4, v{V_LANE}")
    a(f"s_lshl_b32 s60, s3, 18")
    if WS_KV: a(f"s_add_u32 s60, s60, {WS_KV}")
    a(f"s_mov_b32 s62, 64")
    a(f"v_mov_b32 v{M}, 0xff800000")
    a.label(l1)
    a(f"buffer_load_dwordx4 {vr(K,4)}, v{ADDR}, s[{S_WSSRD}:{S_WSSRD+3}], s60 offen sc1")
    a(f"buffer_load_dwordx4 {vr(K+4,4)}, v{ADDR}, s[{S_WSSRD}:{S_WSSRD+3}], s60 offen offset:1024 sc1")
    a("s_waitcnt vmcnt(0)")
    a(f"v_mfma_f32_32x32x16_bf16 {vr(S,16)}, {vr(K,4)}, {vr(Q,4)}, 0")
    a(f"v_mfma_f32_32x32x16_bf16 {vr(S,16)}, {vr(K+4,4)}, {vr(Q+4,4)}, {vr(S,16)}")
    a.nop(16)
    for i in range(8):
        a(f"v_max3_f32 v{M}, v{S+2*i}, v{S+2*i+1}, v{M}")
    a("s_add_u32 s60, s60, 4096")
    a("s_sub_u32 s62, s62, 1")
    a("s_cmp_lg_u32 s62, 0")
    a(f"s_cbranch_scc1 {l1}")
    a(f"v_mov_b32 v{M+2}, v{M}")
    a("s_nop 1")
    a(f"v_permlane32_swap_b32 v{M+2}, v{M}")
    a("s_nop 1")
    a(f"v_max_f32 v{M}, v{M}, v{M+2}")
    a(f"v_sub_f32 v{M}, 0, v{M}")
    for i in range(16): a(f"v_mov_b32 v{NM+i}, v{M}")
    for i in range(16): a(f"v_mov_b32 v{O+i}, 0")
    for i in range(4): a(f"v_mov_b32 v{L+i}, 0")
    a(f"s_lshl_b32 s60, s3, 18")
    if WS_KV: a(f"s_add_u32 s60, s60, {WS_KV}")
    a(f"s_mov_b32 s62, 64")
    a.label(l2)
    a(f"buffer_load_dwordx4 {vr(K,4)}, v{ADDR}, s[{S_WSSRD}:{S_WSSRD+3}], s60 offen sc1")
    a(f"buffer_load_dwordx4 {vr(K+4,4)}, v{ADDR}, s[{S_WSSRD}:{S_WSSRD+3}], s60 offen offset:1024 sc1")
    a(f"buffer_load_dwordx4 {vr(V,4)}, v{ADDR}, s[{S_WSSRD}:{S_WSSRD+3}], s60 offen offset:2048 sc1")
    a(f"buffer_load_dwordx4 {vr(V+4,4)}, v{ADDR}, s[{S_WSSRD}:{S_WSSRD+3}], s60 offen offset:3072 sc1")
    a("s_waitcnt vmcnt(0)")
    a(f"v_mfma_f32_32x32x16_bf16 {vr(S,16)}, {vr(K,4)}, {vr(Q,4)}, {vr(NM,16)}")
    a(f"v_mfma_f32_32x32x16_bf16 {vr(S,16)}, {vr(K+4,4)}, {vr(Q+4,4)}, {vr(S,16)}")
    a.nop(16)
    for i in range(16): a(f"v_exp_f32 v{S+i}, v{S+i}")
    a("s_nop 1")
    for i in range(8): a(f"v_cvt_pk_bf16_f32 v{P+i}, v{S+2*i}, v{S+2*i+1}")
    a("s_nop 2")
    a(f"v_mfma_f32_32x32x16_bf16 {vr(O,16)}, {vr(V,4)}, {vr(P,4)}, {vr(O,16)}")
    a(f"v_mfma_f32_32x32x16_bf16 {vr(O,16)}, {vr(V+4,4)}, {vr(P+4,4)}, {vr(O,16)}")
    a(f"v_smfmac_f32_16x16x64_bf16 {vr(L,4)}, {vr(A_SEL,4)}, {vr(P,8)}, v{A_IDX}")
    a.nop(16)
    a("s_add_u32 s60, s60, 4096")
    a("s_sub_u32 s62, s62, 1")
    a("s_cmp_lg_u32 s62, 0")
    a(f"s_cbranch_scc1 {l2}")

def gen_compute(a):
    KX = 32; KACC = 64; KW = 80
    a(f"v_and_b32 v20, 31, v{V_LANE}")
    a(f"v_lshrrev_b32 v21, 5, v{V_LANE}")
    a(f"v_and_b32 v22, 15, v{V_LANE}")
    a(f"s_lshl_b32 s60, s{S_W}, 13")
    a(f"s_add_u32 s60, s60, {XSTG}")
    a("v_lshlrev_b32 v20, 8, v20")
    a("v_add_u32 v20, s60, v20")
    for s in range(8):
        a(f"v_or_b32 v23, {2*s}, v21")
        a("v_xor_b32 v23, v23, v22")
        a(f"v_lshl_add_u32 v{24+s}, v23, 4, v20")
    a(f"s_lshl_b32 s60, s{S_W}, 13")
    a(f"s_add_u32 s62, s60, {WSTG0}")
    a(f"v_bfe_u32 v16, v{V_LANE}, 2, 2")
    a("v_lshl_add_u32 v16, v21, 3, v16")
    a("v_lshlrev_b32 v16, 6, v16")
    a(f"v_bfe_u32 v17, v{V_LANE}, 4, 1")
    a("v_lshl_add_u32 v16, v17, 5, v16")
    a(f"v_and_b32 v17, 3, v{V_LANE}")
    a("v_lshl_add_u32 v16, v17, 3, v16")
    a("v_add_u32 v16, s62, v16")
    for i in range(16):
        a(f"v_mov_b32 v{KACC+i}, 0")
    gemm_addr(a, 'q')
    a(f"v_lshlrev_b32 v18, 4, v{V_LANE}")
    a(f"s_lshl_b32 s60, s{S_W}, 12")
    a(f"s_add_u32 s60, s60, {PART}")
    a("v_add_u32 v19, s60, v18")
    stamp(a, 9)
    a("s_barrier")
    stamp(a, 10)
    for s in range(8):
        a(f"ds_read_b128 {vr(KX+4*s,4)}, v{24+s}")
        a(f"ds_read_b64_tr_b16 {vr(KW+4*s,2)}, v16 offset:{1024*s}")
        a(f"ds_read_b64_tr_b16 {vr(KW+4*s+2,2)}, v16 offset:{1024*s+256}")
        if s in (1, 3, 5): a("s_waitcnt lgkmcnt(6)")
    a("s_and_b32 s60, s5, 1")
    a("s_cmp_eq_u32 s60, 0")
    a("s_waitcnt lgkmcnt(0)")
    a("s_barrier")
    if PROF:
        a("s_cselect_b32 s97, 1, 0")
        stamp(a, 11)
        a("s_cmp_eq_u32 s97, 1")
    a("s_cbranch_scc0 L_kv_isv")
    for s in range(8):
        a(f"v_mfma_f32_32x32x16_bf16 {vr(KACC,16)}, {vr(KW+4*s,4)}, {vr(KX+4*s,4)}, {vr(KACC,16)}")
    a("s_branch L_kv_red")
    a.label("L_kv_isv")
    for s in range(8):
        a(f"v_mfma_f32_32x32x16_bf16 {vr(KACC,16)}, {vr(KX+4*s,4)}, {vr(KW+4*s,4)}, {vr(KACC,16)}")
    a.label("L_kv_red")
    a.nop(16)
    for q in range(4):
        a(f"ds_write_b128 v19, {vr(KACC+4*q,4)} offset:{1024*q}")
    a("s_waitcnt lgkmcnt(0)")
    a("s_barrier")
    stamp(a, 1)
    c_gemm(a, 'q', "q", 0)
    stamp(a, 2)
    a(f"s_mov_b32 s{S_T0}, {fbits(CSCALE)}")
    a(f"v_and_b32 v{A_T}, 6, v{V_LANE}")
    a(f"v_mov_b32 v{A_T+1}, 0x3f803f80")
    a(f"v_cmp_eq_u32 vcc, 0, v{A_T}")
    a("s_nop 1")
    a(f"v_cndmask_b32 v{A_SEL}, 0, v{A_T+1}, vcc")
    a(f"v_cndmask_b32 v{A_SEL+1}, 0, v{A_T+1}, vcc")
    a(f"v_cmp_eq_u32 vcc, 4, v{A_T}")
    a("s_nop 1")
    a(f"v_cndmask_b32 v{A_SEL+2}, 0, v{A_T+1}, vcc")
    a(f"v_cndmask_b32 v{A_SEL+3}, 0, v{A_T+1}, vcc")
    a(f"v_and_b32 v{A_T}, 1, v{V_LANE}")
    a(f"v_mov_b32 v{A_T+1}, 0x4444")
    a(f"v_mov_b32 v{A_T+2}, 0xeeee")
    a(f"v_cmp_eq_u32 vcc, 0, v{A_T}")
    a("s_nop 1")
    a(f"v_cndmask_b32 v{A_IDX}, v{A_T+2}, v{A_T+1}, vcc")
    for i in range(32):
        a(f"v_mul_f32 v{G_ACC+i}, s{S_T0}, v{G_ACC+i}")
    for hd in range(2):
        for d in range(8):
            a(f"v_cvt_pk_bf16_f32 v{A_Q[hd]+d}, v{G_ACC+16*hd+2*d}, v{G_ACC+16*hd+2*d+1}")
    a("s_barrier")
    a(f"v_lshlrev_b32 v{A_KVADDR}, 4, v{V_LANE}")
    a(f"v_add_u32 v{A_KVADDR}, {KVR[0]}, v{A_KVADDR}")
    for i in range(2):
        a(f"ds_read_b128 {vr(A_K[0]+4*i,4)}, v{A_KVADDR} offset:{1024*i}")
    for i in range(2):
        a(f"ds_read_b128 {vr(A_V[0]+4*i,4)}, v{A_KVADDR} offset:{2048+1024*i}")
    for r in range(2):
        for i in range(16): a(f"v_mov_b32 v{A_O[r]+i}, 0")
        for i in range(4): a(f"v_mov_b32 v{A_L[r]+i}, 0")
    for i in range(8): a(f"v_mov_b32 v{A_P[1]+i}, 0")
    for i in range(8): a(f"v_mov_b32 v{A_V[1]+i}, 0")
    a("s_waitcnt lgkmcnt(0)")
    a(f"v_mfma_f32_32x32x16_bf16 {vr(A_S[0],16)}, {vr(A_K[0],4)}, {vr(A_Q[0],4)}, 0")
    a(f"v_mfma_f32_32x32x16_bf16 {vr(A_S[0],16)}, {vr(A_K[0]+4,4)}, {vr(A_Q[0]+4,4)}, {vr(A_S[0],16)}")
    a(f"s_lshl_b32 s{S_OOFF}, s3, 22")
    a(f"s_add_u32 s{S_OOFF}, s{S_OOFF}, {WS_O}")
    a("s_lshl_b32 s60, s4, 2")
    a(f"s_and_b32 s62, s{S_W}, 3")
    a("s_add_u32 s60, s60, s62")
    a("s_lshl_b32 s60, s60, 16")
    a(f"s_add_u32 s{S_OOFF}, s{S_OOFF}, s60")
    a("s_lshl_b32 s60, s5, 2")
    a(f"s_lshr_b32 s62, s{S_W}, 2")
    a("s_lshl_b32 s62, s62, 1")
    a("s_add_u32 s60, s60, s62")
    a("s_lshl_b32 s60, s60, 11")
    a(f"s_add_u32 s{S_OOFF}, s{S_OOFF}, s60")
    a(f"s_mov_b32 s75, {KVR[0]}")
    a(f"s_mov_b32 s76, {KVR[1]}")
    a(f"s_mov_b32 s77, {KVR[2]}")
    a(f"s_mov_b32 s{S_CNT}, 0")
    a.nop(4)
    stamp(a, 3)
    a("s_branch L_att_entry")
    a(".p2align 6")
    a.label("L_att_loop")
    a("s_waitcnt lgkmcnt(0)")
    a("s_barrier")
    a("s_mov_b32 s60, s75")
    a("s_mov_b32 s75, s76")
    a("s_mov_b32 s76, s77")
    a("s_mov_b32 s77, s60")
    a(f"v_lshlrev_b32 v{A_KVADDR}, 4, v{V_LANE}")
    a(f"v_add_u32 v{A_KVADDR}, s75, v{A_KVADDR}")
    for i in range(8):
        t = i - 1
        if i == 1:
            a.label("L_att_entry")
        for r in range(2):
            if r == 1:
                a("s_waitcnt lgkmcnt(0)")
            ap = opt("aprio", "1")
            if ap == "1" and r == 0 and i % 2 == 0: a(f"s_setprio {3 - i//2}")
            if ap == "2" and r == 0 and i % 4 == 0: a(f"s_setprio {1 - i//4}")
            if ap == "3" and r == 0: a(f"s_setprio {3 - (i % 4)}")
            attn_step(a, t & 1 if t >= 0 else 1, r, 'K' if r == 0 else 'V', i*4096)
    a(f"s_add_u32 s{S_CNT}, s{S_CNT}, 1")
    a(f"s_cmp_lt_u32 s{S_CNT}, 8")
    a("s_cbranch_scc1 L_att_loop")
    attn_step(a, 1, 0, None, 0)
    a("s_waitcnt lgkmcnt(0)")
    attn_step(a, 1, 1, None, 0, do_qk=False)
    a("s_nop 1")
    Vp = A_V[1]; Pp = A_P[1]
    a(f"v_mfma_f32_32x32x16_bf16 {vr(A_O[1],16)}, {vr(Vp,4)}, {vr(Pp,4)}, {vr(A_O[1],16)}")
    a(f"v_mfma_f32_32x32x16_bf16 {vr(A_O[1],16)}, {vr(Vp+4,4)}, {vr(Pp+4,4)}, {vr(A_O[1],16)}")
    a(f"v_smfmac_f32_16x16x64_bf16 {vr(A_L[1],4)}, {vr(A_SEL,4)}, {vr(Pp,8)}, v{A_IDX}")
    stamp(a, 4)
    a.nop(16)
    a(f"s_mov_b32 s78, {fbits(2.0**-64)}")
    a(f"s_mov_b32 s79, {fbits(2.0**64)}")
    for r in range(2):
        ok = a.newlabel("rb_ok")
        a(f"v_add_f32 v{A_T}, v{A_L[r]}, v{A_L[r]+1}")
        a(f"v_mov_b32 v{A_T+3}, 0")
        for i in range(16):
            a(f"v_fma_f32 v{A_T+3}, v{A_O[r]+i}, 0, v{A_T+3}")
        a(f"v_cmp_le_f32 vcc, s78, v{A_T}")
        a(f"v_cmp_ge_f32 s[80:81], s79, v{A_T}")
        a(f"v_cmp_o_f32 s[82:83], v{A_T+3}, v{A_T+3}")
        a("s_nop 4")
        a("s_and_b64 s[80:81], s[80:81], vcc")
        a("s_and_b64 s[80:81], s[80:81], s[82:83]")
        a("s_cmp_eq_u64 s[80:81], -1")
        if opt("forceslow", "0") == "1": a("s_cmp_eq_u32 s3, 77")
        a(f"s_cbranch_scc1 {ok}")
        slow_path(a, r)
        a(f"v_add_f32 v{A_T}, v{A_L[r]}, v{A_L[r]+1}")
        a.label(ok)
        a(f"v_rcp_f32 v{A_T+1}, v{A_T}")
        a("s_nop 0")
        for i in range(16):
            a(f"v_mul_f32 v{A_O[r]+i}, v{A_T+1}, v{A_O[r]+i}")
    a(f"v_lshlrev_b32 v{A_T+2}, 4, v{V_LANE}")
    for r in range(2):
        for d in range(8):
            a(f"v_cvt_pk_bf16_f32 v{A_S[r]+d}, v{A_O[r]+2*d}, v{A_O[r]+2*d+1}")
        a(f"buffer_store_dwordx4 {vr(A_S[r],4)}, v{A_T+2}, s[{S_WSSRD}:{S_WSSRD+3}], s{S_OOFF} offen offset:{2048*r} sc1")
        a(f"buffer_store_dwordx4 {vr(A_S[r]+4,4)}, v{A_T+2}, s[{S_WSSRD}:{S_WSSRD+3}], s{S_OOFF} offen offset:{2048*r+1024} sc1")
    a(f"s_lshr_b32 s60, s{S_W}, 2")
    a("s_cmp_eq_u32 s60, 0")
    a(f"s_cselect_b32 s60, {4*SLOT}, 0")
    a(f"s_add_u32 s60, s60, {XPART}")
    a(f"s_and_b32 s62, s{S_W}, 3")
    a("s_lshl_b32 s62, s62, 12")
    a("s_add_u32 s60, s60, s62")
    a(f"v_add_u32 v{A_T+3}, s60, v{A_T+2}")
    for r in range(2):
        for i in range(2):
            a(f"ds_write_b128 v{A_T+3}, {vr(A_S[r]+4*i,4)} offset:{r*2048 + i*1024}")
    gemm_addr(a, 'o')
    for i in range(32):
        a(f"v_mov_b32 v{G_ACC+i}, 0")
    a(f"s_mov_b32 s{S_NXT}, {4*SLOT}")
    a(f"s_mov_b32 s{S_CUR}, 0")
    set_slots(a)
    a("s_waitcnt vmcnt(0) lgkmcnt(0)")
    a("s_barrier")
    stamp(a, 5)
    for j in range(PD):
        gemm_reads(a, 'o', j, True)
    adv_slots(a); set_slots(a)
    c_gemm_chunk(a, 'o', False, True)
    c_gemm_chunk(a, 'o', False, False)
    a(f"s_mov_b32 s{S_NXT}, {1*SLOT}")
    set_slots(a)
    a("s_barrier")
    stamp(a, 6)
    for j in range(PD):
        gemm_reads(a, 'o', j, True)
    adv_slots(a); set_slots(a)
    c_gemm_chunk(a, 'o', False, True)
    a(f"s_mov_b32 s{S_CNT}, 12")
    a(".p2align 6")
    a.label("L_o_loop")
    c_gemm_chunk(a, 'o', True, True)
    a(f"s_sub_u32 s{S_CNT}, s{S_CNT}, 1")
    a(f"s_cmp_lg_u32 s{S_CNT}, 0")
    a("s_cbranch_scc1 L_o_loop")
    c_gemm_chunk(a, 'o', False, False)
    if GPRIO: a("s_setprio 0")
    stamp(a, 7)
    a(f"s_lshl_b32 s7, s4, 7")
    a(f"s_and_b32 s60, s{S_W}, 3")
    a(f"s_lshl_b32 s60, s60, 5")
    a(f"s_add_u32 s7, s7, s60")
    a(f"s_lshl_b32 s7, s7, 12")
    a(f"s_lshl_b32 s60, s3, 11")
    a(f"s_add_u32 s7, s7, s60")
    a(f"s_lshl_b32 s60, s5, 8")
    a(f"s_add_u32 s7, s7, s60")
    a(f"s_lshr_b32 s60, s{S_W}, 2")
    a(f"s_lshl_b32 s60, s60, 7")
    a(f"s_add_u32 s7, s7, s60")
    t = G_TMP
    if opt("cst", "1") == "1":
        OST = 32768; RS = 144
        a(f"s_mul_i32 s60, s{S_W}, {32*RS}")
        a(f"s_add_u32 s60, s60, {OST}")
        a(f"v_and_b32 v{t}, 31, v{V_LANE}")
        a(f"v_mul_u32_u24 v{t}, {RS}, v{t}")
        a(f"v_lshrrev_b32 v{t+1}, 5, v{V_LANE}")
        a(f"v_lshl_add_u32 v{t}, v{t+1}, 4, v{t}")
        a(f"v_add_u32 v{t}, s60, v{t}")
        a(f"v_lshrrev_b32 v{t+1}, 3, v{V_LANE}")
        a(f"v_mul_u32_u24 v{t+2}, {RS}, v{t+1}")
        a(f"v_and_b32 v{t+3}, 7, v{V_LANE}")
        a(f"v_lshl_add_u32 v{t+2}, v{t+3}, 4, v{t+2}")
        a(f"v_add_u32 v{t+2}, s60, v{t+2}")
        a(f"v_lshlrev_b32 v{t+1}, 12, v{t+1}")
        a(f"v_lshl_add_u32 v{t+1}, v{t+3}, 4, v{t+1}")
        for hd in range(2):
            for d in range(8):
                a(f"v_cvt_pk_bf16_f32 v{G_AF+8*hd+d}, v{G_ACC+16*hd+2*d}, v{G_ACC+16*hd+2*d+1}")
        a("s_nop 1")
        for hd in range(2):
            for qd in range(2):
                b = G_AF + 8*hd + 4*qd
                a(f"v_permlane32_swap_b32 v{b}, v{b+2}")
                a(f"v_permlane32_swap_b32 v{b+1}, v{b+3}")
        a("s_nop 1")
        for hd in range(2):
            for qd in range(2):
                b = G_AF + 8*hd + 4*qd
                a(f"ds_write_b128 v{t}, {vr(b,4)} offset:{hd*64 + qd*32}")
        a("s_waitcnt lgkmcnt(0)")
        for i in range(4):
            a(f"ds_read_b128 {vr(G_BF+4*i,4)}, v{t+2} offset:{8*i*RS}")
        for i in range(4):
            a(f"s_waitcnt lgkmcnt({3-i})")
            a(f"buffer_store_dwordx4 {vr(G_BF+4*i,4)}, v{t+1}, s[{S_OUTSRD}:{S_OUTSRD+3}], s7 offen {opt('outf','nt')}")
            if i < 3: a(f"s_add_u32 s7, s7, {8*4096}")
    else:
        a(f"v_and_b32 v{t}, 31, v{V_LANE}")
        a(f"v_lshlrev_b32 v{t}, 12, v{t}")
        a(f"v_lshrrev_b32 v{t+1}, 5, v{V_LANE}")
        a(f"v_lshl_add_u32 v{t}, v{t+1}, 4, v{t}")
        a.nop(8)
        for hd in range(2):
            for d in range(8):
                a(f"v_cvt_pk_bf16_f32 v{G_AF+8*hd+d}, v{G_ACC+16*hd+2*d}, v{G_ACC+16*hd+2*d+1}")
        a("s_nop 1")
        for hd in range(2):
            for qd in range(2):
                b = G_AF + 8*hd + 4*qd
                a(f"v_permlane32_swap_b32 v{b}, v{b+2}")
                a(f"v_permlane32_swap_b32 v{b+1}, v{b+3}")
        a("s_nop 1")
        for hd in range(2):
            for qd in range(2):
                b = G_AF + 8*hd + 4*qd
                a(f"buffer_store_dwordx4 {vr(b,4)}, v{t}, s[{S_OUTSRD}:{S_OUTSRD+3}], s7 offen offset:{hd*64 + qd*32}")
    if PROF:
        a("s_waitcnt vmcnt(0)")
        stamp(a, 8)
        stamp_flush(a)
    a("s_endpgm")

def l_dma_w(a, slot):
    a(f"s_add_u32 m0, s{S_M0W}, {slot*SLOT}")
    a("s_nop 0")
    for j in range(4):
        a(f"buffer_load_dwordx4 v{L_WOFF+j}, s[{S_WSRD}:{S_WSRD+3}], s{S_WSOFF} offen offset:{1024*j} {opt('wf','')} lds")
    a(f"s_add_u32 s{S_WSOFF}, s{S_WSOFF}, {64*2048}")
    a(f"s_and_b32 s{S_WSOFF}, s{S_WSOFF}, 0x1fffff")
def l_dma_x(a, mode, slot):
    a(f"s_add_u32 m0, s{S_M0X}, {slot*SLOT}")
    a("s_nop 0")
    for j in range(4):
        if mode == 'q':
            a(f"buffer_load_dwordx4 v{L_XOFF+j}, s[{S_XSRD}:{S_XSRD+3}], s{S_XSOFF} offen offset:{1024*j} {XFLAG} lds")
        else:
            a(f"buffer_load_dwordx4 v{L_XOFF}, s[{S_XSRD}:{S_XSRD+3}], s{S_XSOFF} offen offset:{1024*j} sc1 lds")
    a(f"s_add_u32 s{S_XSOFF}, s{S_XSOFF}, {128 if mode == 'q' else 4096}")
    a(f"s_and_b32 s{S_XSOFF}, s{S_XSOFF}, {2047 if mode == 'q' else 65535}")
def l_dma_chunk(a, mode, slot):
    if mode == 'o' and opt("nodma", "0") == "1": return
    l_dma_w(a, slot); l_dma_x(a, mode, slot)
def l_kv_dma(a, base_imm=None, base_sgpr=None):
    if base_imm is not None:
        a(f"s_add_u32 m0, s{S_T1}, {base_imm}")
    else:
        a(f"s_add_u32 m0, s{S_T1}, s{base_sgpr}")
    a("s_nop 0")
    for j in range(4):
        a(f"buffer_load_dwordx4 v{L_KVOFF}, s[{S_WSSRD}:{S_WSSRD+3}], s{S_KVSOFF} offen offset:{1024*j} sc1 lds")
    a("s_add_u32 m0, m0, 4096")
    a(f"s_add_u32 s60, s{S_KVSOFF}, 4096")
    for j in range(4):
        a(f"buffer_load_dwordx4 v{L_KVOFF}, s[{S_WSSRD}:{S_WSSRD+3}], s60 offen offset:{1024*j} sc1 lds")
    a(f"s_add_u32 s{S_KVSOFF}, s{S_KVSOFF}, 32768")

def gen_loader(a):
    L = V_LANE
    t0, t1, t2, t3 = L_T, L_T+1, L_T+2, L_T+3
    a(f"s_sub_u32 s{S_LW}, s{S_W}, 8")
    a("s_lshl_b32 s60, s3, 4")
    a("s_add_u32 s60, s60, s4")
    a("s_lshl_b32 s60, s60, 10")
    a(f"s_add_u32 s60, s60, {WS_FLAG}")
    a(f"v_and_b32 v{L_FADDR}, 7, v{L}")
    a(f"v_lshlrev_b32 v{L_FADDR}, 7, v{L_FADDR}")
    a(f"v_add_u32 v{L_FADDR}, s60, v{L_FADDR}")
    a("s_lshr_b32 s60, s5, 1")
    a("s_lshl_b32 s60, s60, 5")
    a("s_add_u32 s60, s60, s7")
    a(f"s_lshl_b32 s65, s{S_LW}, 3")
    a("s_add_u32 s60, s60, s65")
    a("s_lshl_b32 s72, s60, 11")
    a(f"v_lshrrev_b32 v{t0}, 4, v{L}")
    a(f"v_and_b32 v{t1}, 15, v{L}")
    a(f"s_and_b32 s65, s65, 15")
    for e in range(2):
        a(f"v_add_u32 v{t2}, {4*e}, v{t0}")
        a(f"v_add_u32 v{t3}, s65, v{t2}")
        a(f"v_xor_b32 v{t3}, v{t3}, v{t1}")
        a(f"v_lshlrev_b32 v{t3}, 4, v{t3}")
        a(f"v_lshl_add_u32 v{32+e}, v{t2}, 11, v{t3}")
        if e: a(f"v_subrev_u32 v{32+e}, {1024*e}, v{32+e}")
    a(f"v_lshlrev_b32 v34, 4, v{L}")
    a(f"s_lshl_b32 s74, s{S_LW}, 11")
    a("s_and_b32 s77, s5, 1")
    a("s_lshl_b32 s77, s77, 2")
    a("s_lshr_b32 s78, s2, 3")
    if opt("stgrot", "1") != "1":
        a("s_mov_b32 s77, 0"); a("s_mov_b32 s78, 0")
    if opt("stgrot", "1") != "1":
        a("s_mov_b32 s77, 0"); a("s_mov_b32 s78, 0")
    def x_round():
        a("s_and_b32 s77, s77, 7")
        a("s_lshl_b32 s60, s77, 13")
        a("s_add_u32 s60, s60, s74")
        a(f"s_add_u32 m0, s60, {XSTG}")
        a("s_lshl_b32 s65, s77, 8")
        a("s_add_u32 s65, s65, s72")
        for e in range(2):
            a(f"buffer_load_dwordx4 v{32+e}, s[{S_XSRD}:{S_XSRD+3}], s65 offen offset:{1024*e} {XFLAG} lds")
        a("s_add_u32 s77, s77, 1")
    def w_round():
        a("s_and_b32 s78, s78, 7")
        a("s_lshl_b32 s60, s78, 13")
        a("s_add_u32 s60, s60, s74")
        a(f"s_add_u32 m0, s60, {WSTG0}")
        a("s_add_u32 s78, s78, 1")
        for e in range(2):
            a(f"buffer_load_dwordx4 v34, s[{S_KWSRD}:{S_KWSRD+3}], s60 offen offset:{1024*e} {opt('kwf','')} lds")
    WLATE = opt("wlate", "0") == "1"
    if WLATE:
        a("s_lshr_b32 s60, s2, 4")
        a("s_and_b32 s60, s60, 15")
        a("s_lshl_b32 s60, s60, 2")
        a(f"s_add_u32 s60, s60, s{S_LW}")
        a("s_lshl_b32 s60, s60, 10")
        a(f"v_and_b32 v{t0}, 7, v{L}")
        a(f"v_lshlrev_b32 v{t0}, 7, v{t0}")
        a(f"buffer_load_dword v37, v{t0}, s[{S_KWSRD}:{S_KWSRD+3}], s60 offen")
        for r in range(8): x_round()
    else:
        for r in range(8):
            x_round(); w_round()
    stamp(a, 9)
    a(f"v_lshrrev_b32 v{t0}, 4, v{L}")
    a(f"v_bfe_u32 v{t1}, v{L}, 2, 2")
    a(f"v_xor_b32 v{t1}, v{t1}, v{t0}")
    a(f"v_lshlrev_b32 v{t1}, 6, v{t1}")
    a(f"v_lshl_add_u32 v{t1}, v{t0}, 11, v{t1}")
    a(f"v_and_b32 v{t2}, 3, v{L}")
    a(f"v_lshl_add_u32 v{t1}, v{t2}, 4, v{t1}")
    a(f"s_lshl_b32 s60, s{S_LW}, 15")
    a(f"s_lshl_b32 s65, s5, 8")
    a(f"s_add_u32 s60, s60, s65")
    a(f"v_add_u32 v{L_WOFF}, s60, v{t1}")
    for j in range(1, 4):
        a(f"v_add_u32 v{L_WOFF+j}, {j*(8192-1024)}, v{L_WOFF}")
    a(f"v_lshrrev_b32 v{t0}, 3, v{L}")
    a(f"s_lshl_b32 s60, s{S_LW}, 5")
    a(f"s_add_u32 s60, s60, s7")
    a(f"v_add_u32 v{t0}, s60, v{t0}")
    a(f"v_lshlrev_b32 v{t0}, 11, v{t0}")
    a(f"v_and_b32 v{t1}, 7, v{L}")
    a(f"v_lshrrev_b32 v{t2}, 4, v{L}")
    a(f"v_xor_b32 v{t1}, v{t1}, v{t2}")
    for e in range(4):
        if e & 1:
            a(f"v_xor_b32 v{t3}, 4, v{t1}")
            a(f"v_lshl_add_u32 v{L_XOFF+e}, v{t3}, 4, v{t0}")
        else:
            a(f"v_lshl_add_u32 v{L_XOFF+e}, v{t1}, 4, v{t0}")
        if e: a(f"v_add_u32 v{L_XOFF+e}, {e*(8*2048-1024)}, v{L_XOFF+e}")
    a(f"s_lshl_b32 s{S_M0W}, s{S_LW}, 12")
    a(f"s_lshl_b32 s{S_M0X}, s{S_LW}, 12")
    a(f"s_add_u32 s{S_M0X}, s{S_M0X}, {XPART}")
    a("s_and_b32 s60, s4, 3")
    a("s_lshl_b32 s60, s60, 2")
    a("s_lshl_b32 s65, s5, 1")
    a("s_add_u32 s60, s60, s65")
    a("s_and_b32 s60, s60, 15")
    if opt("rot", "1") != "1": a("s_mov_b32 s60, 0")
    a(f"s_lshl_b32 s{S_WSOFF}, s60, 17")
    a(f"s_lshl_b32 s{S_XSOFF}, s60, 7")
    if WLATE:
        if opt("c0first", "1") == "1":
            l_dma_chunk(a, 'q', 0)
            for r in range(8): w_round()
        else:
            for r in range(8): w_round()
            l_dma_chunk(a, 'q', 0)
    else:
        l_dma_chunk(a, 'q', 0)
    a(f"buffer_load_dword v{L_SNAP}, v{L_FADDR}, s[{S_WSSRD}:{S_WSSRD+3}], 0 offen sc1")
    NT = 0
    if opt("wqpf", "0") == "1":
        NT = 2
        a(f"v_lshrrev_b32 v{t0}, 1, v{L}")
        a(f"v_lshlrev_b32 v{t0}, 11, v{t0}")
        a(f"v_and_b32 v{t1}, 1, v{L}")
        a(f"v_lshl_add_u32 v{t0}, v{t1}, 7, v{t0}")
        a("s_lshl_b32 s60, s5, 8")
        a(f"v_add_u32 v{t0}, s60, v{t0}")
        a(f"s_lshl_b32 s60, s{S_LW}, 17")
        a(f"s_add_u32 s60, s60, s{S_WSOFF}")
        a("s_and_b32 s60, s60, 0x1fffff")
        a(f"buffer_load_dword v35, v{t0}, s[{S_WSRD}:{S_WSRD+3}], s60 offen")
        a("s_add_u32 s60, s60, 0x10000")
        a(f"buffer_load_dword v36, v{t0}, s[{S_WSRD}:{S_WSRD+3}], s60 offen")
    a(f"v_mov_b32 v{L_DBG}, s3")
    a(f"v_lshlrev_b32 v{L_DBG}, 7, v{L_DBG}")
    a(f"v_lshlrev_b32 v{L_KVOFF}, 4, v{L}")
    a(f"s_lshl_b32 s{S_T1}, s{S_LW}, 13")
    a(f"v_add_u32 v{L_KVOFF}, s{S_T1}, v{L_KVOFF}")
    a(f"s_lshl_b32 s{S_KVSOFF}, s3, 18")
    if WS_KV: a(f"s_add_u32 s{S_KVSOFF}, s{S_KVSOFF}, {WS_KV}")
    stamp(a, 10)
    a(f"s_waitcnt vmcnt({(1 if (WLATE and opt('c0first','1') == '1') else 9) + NT})")
    stamp(a, 11)
    a("s_barrier")
    a("s_barrier")
    if opt("k1early", "1") == "1":
        l_dma_chunk(a, 'q', 1)
        a("s_barrier")
        l_dma_chunk(a, 'q', 2)
        l_dma_chunk(a, 'q', 3)
    else:
        for c in (1, 2, 3): l_dma_chunk(a, 'q', c)
        a("s_barrier")
    a("s_waitcnt vmcnt(24)")
    a("s_barrier")
    a("s_waitcnt vmcnt(16)")
    a("s_barrier")
    a(f"s_cmp_ge_u32 s{S_LW}, 2")
    a("s_cbranch_scc1 L_l_dummy")
    a(f"s_lshl_b32 s60, s{S_LW}, 11")
    a(f"s_add_u32 s60, s60, {PART}")
    a(f"v_lshlrev_b32 v{t0}, 4, v{L}")
    a(f"v_add_u32 v{t1}, s60, v{t0}")
    for w in range(8):
        a(f"ds_read_b128 {vr(40+8*w,4)}, v{t1} offset:{4096*w}")
        a(f"ds_read_b128 {vr(44+8*w,4)}, v{t1} offset:{4096*w+1024}")
        if w == 3: a("s_waitcnt lgkmcnt(4)")
    a("s_waitcnt lgkmcnt(0)")
    for w in range(1, 8):
        for r in range(8):
            a(f"v_add_f32 v{40+r}, v{40+r}, v{40+8*w+r}")
    for d in range(4):
        a(f"v_cvt_pk_bf16_f32 v{36+d}, v{40+2*d}, v{41+2*d}")
    a("s_lshr_b32 s60, s5, 1")
    a("s_lshl_b32 s65, s4, 2")
    a("s_add_u32 s60, s60, s65")
    a("s_lshl_b32 s60, s60, 12")
    a("s_and_b32 s65, s5, 1")
    a("s_lshl_b32 s65, s65, 11")
    a("s_add_u32 s60, s60, s65")
    a(f"s_lshl_b32 s65, s{S_LW}, 10")
    a("s_add_u32 s60, s60, s65")
    a("s_lshl_b32 s65, s3, 18")
    a("s_add_u32 s60, s60, s65")
    if WS_KV: a(f"s_add_u32 s60, s60, {WS_KV}")
    a(f"buffer_store_dwordx4 v[36:39], v{t0}, s[{S_WSSRD}:{S_WSSRD+3}], s60 offen sc1")
    a("s_branch L_l_red_done")
    a.label("L_l_dummy")
    a(f"buffer_load_dword v36, v{L_FADDR}, s[{S_WSSRD}:{S_WSSRD+3}], 0 offen sc1")
    a.label("L_l_red_done")
    a("s_waitcnt vmcnt(9)")
    a("s_barrier")
    l_dma_chunk(a, 'q', 4)
    l_dma_chunk(a, 'q', 0)
    a("s_waitcnt vmcnt(17)")
    a("s_barrier")
    l_dma_chunk(a, 'q', 6 % NSLOT)
    a("s_waitcnt vmcnt(16)")
    a("s_barrier")
    l_dma_chunk(a, 'q', 7 % NSLOT)
    a(f"s_cmp_eq_u32 s{S_LW}, 0")
    a("s_cbranch_scc0 L_l_nosig")
    a("s_mov_b64 exec, 1")
    a(f"v_mov_b32 v{t0}, 1")
    a(f"global_atomic_add v{L_DBG}, v{t0}, s[{S_DBG}:{S_DBG+1}]")
    a("s_mov_b64 exec, -1")
    a.label("L_l_nosig")
    for c in range(4, 10):
        a("s_waitcnt vmcnt(16)")
        a("s_barrier")
        l_dma_chunk(a, 'q', (c + 4) % NSLOT)
    a(f"global_load_dword v{L_TMP}, v{L_DBG}, s[{S_DBG}:{S_DBG+1}] sc1")
    for c in (10, 11):
        a("s_waitcnt vmcnt(17)")
        a("s_barrier")
        l_dma_chunk(a, 'q', (c + 4) % NSLOT)
    a("s_waitcnt vmcnt(16)")
    a("s_barrier")
    a(f"v_readfirstlane_b32 s60, v{L_TMP}")
    a("s_mov_b32 s65, 0x200000")
    a("s_nop 2")
    a("s_cmp_ge_u32 s60, 128")
    a("s_cbranch_scc1 L_l_kvok")
    a.label("L_l_kvpoll")
    a(f"global_load_dword v{L_TMP}, v{L_DBG}, s[{S_DBG}:{S_DBG+1}] sc1")
    a("s_waitcnt vmcnt(0)")
    a(f"v_readfirstlane_b32 s60, v{L_TMP}")
    a("s_nop 3")
    a("s_cmp_ge_u32 s60, 128")
    a("s_cbranch_scc1 L_l_kvok")
    a("s_sleep 8")
    a("s_sub_u32 s65, s65, 1")
    a("s_cmp_lg_u32 s65, 0")
    a("s_cbranch_scc1 L_l_kvpoll")
    a.label("L_l_kvok")
    l_kv_dma(a, base_imm=KVR[0])
    a("s_waitcnt vmcnt(16)")
    a("s_barrier")
    l_kv_dma(a, base_imm=KVR[1])
    a("s_waitcnt vmcnt(16)")
    a("s_barrier")
    l_kv_dma(a, base_imm=KVR[2])
    srd(a, S_WSRD, 48, 2 << 20)
    srd(a, S_XSRD, 52, WS_SIZE)
    a(f"s_lshl_b32 s60, s{S_LW}, 16")
    a(f"s_lshl_b32 s65, s3, 22")
    a(f"s_add_u32 s60, s60, s65")
    a(f"s_lshl_b32 s65, s4, 18")
    a(f"s_add_u32 s60, s60, s65")
    a(f"s_add_u32 s60, s60, {WS_O}")
    a(f"v_lshlrev_b32 v{t0}, 4, v{L}")
    a(f"v_add_u32 v{L_XOFF}, s60, v{t0}")
    a(f"s_lshl_b32 s{S_WSOFF}, s5, 18")
    a(f"s_lshl_b32 s{S_XSOFF}, s5, 13")
    a(f"s_add_u32 s{S_XSOFF}, s{S_XSOFF}, 8192")
    a(f"s_and_b32 s{S_XSOFF}, s{S_XSOFF}, 65535")
    a(f"v_lshrrev_b32 v{t1}, 1, v{L}")
    a("s_and_b32 s60, s4, 3")
    a("s_lshl_b32 s60, s60, 8")
    a(f"s_lshl_b32 s65, s{S_LW}, 6")
    a("s_add_u32 s60, s60, s65")
    a(f"v_add_u32 v{t1}, s60, v{t1}")
    a(f"v_lshlrev_b32 v{t1}, 11, v{t1}")
    a(f"v_and_b32 v{t2}, 1, v{L}")
    a(f"v_lshl_add_u32 v{t1}, v{t2}, 7, v{t1}")
    a("s_lshl_b32 s60, s5, 8")
    a(f"v_add_u32 v{t1}, s60, v{t1}")
    a("s_waitcnt vmcnt(16)")
    a("s_barrier")
    for j in range(1, 8):
        a("s_waitcnt vmcnt(8)")
        a("s_barrier")
        if j <= 5:
            l_kv_dma(a, base_imm=KVR[(j - 1) % 3])
        if j == 1 and opt("wopf", "1") == "1":
            a(f"buffer_load_dword v{L_TMP}, v{t1}, s[{S_WSRD}:{S_WSRD+3}], 0 offen")
            a(f"s_mov_b32 s60, {32*2048}")
            a(f"buffer_load_dword v{L_TMP}, v{t1}, s[{S_WSRD}:{S_WSRD+3}], s60 offen")
        if j == 6:
            l_dma_w(a, 4); l_dma_w(a, 0)
        if j == 7:
            l_dma_w(a, 1)
    a("s_waitcnt vmcnt(0)")
    a("s_barrier")
    l_dma_w(a, 2)
    a(f"v_add_u32 v{L_SNAP}, 1, v{L_SNAP}")
    a(f"s_cmp_eq_u32 s{S_LW}, 0")
    a("s_cbranch_scc0 L_l_noflag")
    a(f"v_cmp_eq_u32 vcc, s5, v{L}")
    a("s_nop 4")
    a("s_mov_b64 exec, vcc")
    a(f"buffer_store_dword v{L_SNAP}, v{L_FADDR}, s[{S_WSSRD}:{S_WSSRD+3}], 0 offen sc1")
    a("s_mov_b64 exec, -1")
    a.label("L_l_noflag")
    a("s_mov_b32 s65, 0x200000")
    a.label("L_l_opoll")
    a(f"buffer_load_dword v{L_TMP}, v{L_FADDR}, s[{S_WSSRD}:{S_WSSRD+3}], 0 offen sc1")
    a("s_waitcnt vmcnt(0)")
    a(f"v_cmp_eq_u32 vcc, v{L_TMP}, v{L_SNAP}")
    a("s_nop 4")
    a("s_cmp_eq_u64 vcc, -1")
    a("s_cbranch_scc1 L_l_owait")
    a(f"s_sleep {opt('sleep','4')}")
    a("s_sub_u32 s65, s65, 1")
    a("s_cmp_lg_u32 s65, 0")
    a("s_cbranch_scc1 L_l_opoll")
    a.label("L_l_owait")
    for c in (2, 3, 4):
        l_dma_x(a, 'o', (4 + c) % NSLOT)
    l_dma_w(a, (4 + 4) % NSLOT)
    a("s_waitcnt vmcnt(8)")
    a("s_barrier")
    l_dma_chunk(a, 'o', (4 + 5) % NSLOT)
    l_dma_chunk(a, 'o', (4 + 6) % NSLOT)
    for c in range(3, 12):
        a("s_waitcnt vmcnt(16)")
        a("s_barrier")
        l_dma_chunk(a, 'o', (4 + c + 4) % NSLOT)
    a("s_waitcnt vmcnt(16)")
    a("s_barrier")
    a("s_waitcnt vmcnt(8)")
    a("s_barrier")
    a("s_waitcnt vmcnt(0)")
    a("s_barrier")
    if PROF:
        stamp(a, 8)
        stamp_flush(a)
    a("s_endpgm")

def gen_main(a):
    name = KNAME
    a(f".globl {name}\n.p2align 8\n.type {name},@function")
    a.label(name)
    a("s_cmp_ge_u32 s2, 256")
    a("s_cbranch_scc1 L_end")
    a("s_and_b32 s4, s2, 7")
    a("s_lshr_b32 s5, s2, 3")
    a("s_lshr_b32 s3, s4, 2")
    a("s_and_b32 s4, s4, 3")
    a("s_lshl_b32 s4, s4, 2")
    a("s_lshr_b32 s6, s5, 3")
    a("s_add_u32 s4, s4, s6")
    a("s_and_b32 s5, s5, 7")
    load_args(a, 3)
    a("v_lshrrev_b32 v1, 6, v0")
    a(f"v_and_b32 v{V_LANE}, 63, v0")
    a(f"v_readfirstlane_b32 s{S_W}, v1")
    srd(a, S_WSSRD, 52, WS_SIZE)
    srd(a, S_XSRD, 40, 4 << 20)
    srd(a, S_WSRD, 42, 2 << 20)
    a("s_and_b32 s60, s5, 1")
    a("s_cmp_eq_u32 s60, 0")
    a("s_cselect_b32 s54, s44, s46")
    a("s_cselect_b32 s55, s45, s47")
    srd(a, S_KWSRD, 54, 65536)
    srd(a, S_OUTSRD, 50, 8 << 20)
    a("s_lshl_b32 s7, s4, 7")
    stamp_init(a); stamp(a, 0)
    if opt("codepf", "0") == "1":
        lab = a.newlabel("cpf")
        a(f"s_cmp_eq_u32 s{S_W}, 7")
        a(f"s_cbranch_scc0 {lab}")
        a("s_getpc_b64 s[80:81]")
        a(f"v_lshlrev_b32 v4, 7, v{V_LANE}")
        for i in range(int(opt("codekb", "28")) // 8):
            a(f"global_load_dword v5, v4, s[80:81]")
            a(f"v_add_u32 v4, 8192, v4")
        a.label(lab)
    if opt("lfirst", "1") == "1":
        a(f"s_cmp_lt_u32 s{S_W}, 8")
        a("s_cbranch_scc1 L_compute")
        gen_loader(a)
        a.label("L_compute")
        gen_compute(a)
    else:
        a(f"s_cmp_ge_u32 s{S_W}, 8")
        a("s_cbranch_scc1 L_loader")
        gen_compute(a)
        a.label("L_loader")
        gen_loader(a)
    a.label("L_end")
    a("s_endpgm")
    return name, NVGPR, LDS_MAIN

def main(out_path):
    ref = open("cdna_kernels/" + NAME + ".s.ref").read().split("\n")
    header = [l for l in ref if l.startswith(";") and "@launch" not in l and "Override" not in l and "grid=ceil" not in l]
    a = Asm()
    name, vg, lds = gen_main(a)
    txt = "\n".join(header) + "\n"
    txt += f"; @launch grid=(256,1,1) block=(768,1,1) lds={lds}\n"
    txt += '.amdgcn_target "amdgcn-amd-amdhsa--gfx950"\n.text\n'
    txt += a.text()
    txt += '.section .rodata,"a"\n'
    txt += ".p2align 6\n" + kernel_desc(name, vg)
    open(out_path, "w").write(txt)
    nb = sum(1 for l in a.lines if l.strip() == "s_barrier")
    print("static barriers:", nb)

if __name__ == "__main__":
    if "--prof" in sys.argv:
        PROF = True
        sys.argv.remove("--prof")
    main(sys.argv[1] if len(sys.argv) > 1 else "cdna_kernels/" + NAME + ".s")
```

```python
import sys, math, os, struct
sys.path.insert(0, __file__.rsplit("/", 1)[0])
from asmlib import *

NAME = "concat_heads__grouped_kv_mqa__grouped_kv_mqa__prompt"
KNAME = NAME + "_kernel"
import os as _os
_O = dict(kv.split("=") for kv in _os.environ.get("GENOPT", "").split(",") if "=" in kv)
WS_BASE = int(_O.get("wsbase", "0")) << 20
WS_KV = WS_BASE
WS_O = WS_BASE + (1 << 20)
WS_FLAG = WS_BASE + (10 << 20)
WS_SIZE = 268435456
CSCALE = math.log2(math.e) / math.sqrt(32.0)
def fbits(x): return "0x%08x" % struct.unpack("<I", struct.pack("<f", x))[0]
OPT = dict(kv.split("=") for kv in os.environ.get("GENOPT", "").split(",") if "=" in kv)
def opt(k, d): return OPT.get(k, d)

OS0_ = 4
SLOT = 32768
NSLOT = 5
XPART = 16384
KVR = [32768, 65536, 98304]
PART = 131072
XSTG = 32768
WSTG0 = 98304
LDS_MAIN = 163840
NVGPR = 168

PROF = False
WS_PROF = 12 << 20
V_PROF = 167
S_WSSRD = 56
V_LANE = 2
def stamp(a, idx):
    if not PROF: return
    a("s_memtime s[92:93]")
    a("s_memrealtime s[94:95]")
    a("s_waitcnt lgkmcnt(0)")
    a(f"v_writelane_b32 v{V_PROF}, s92, {idx}")
    a(f"v_writelane_b32 v{V_PROF}, s94, {idx+32}")
def stamp_init(a):
    if not PROF: return
    a(f"v_mov_b32 v{V_PROF}, 0")
def stamp_flush(a):
    if not PROF: return
    a(f"s_mul_i32 s96, s2, 12")
    a(f"s_add_u32 s96, s96, s6")
    a(f"s_lshl_b32 s96, s96, 8")
    a(f"s_add_u32 s96, s96, {WS_PROF + (1<<20)}")
    a(f"v_lshlrev_b32 v{V_PROF-1}, 2, v{V_LANE}")
    a(f"buffer_store_dword v{V_PROF}, v{V_PROF-1}, s[{S_WSSRD}:{S_WSSRD+3}], s96 offen")
    a("s_waitcnt vmcnt(0)")

A_KVADDR = 1
A_SEL = 8
A_IDX = 12
A_Q = [16, 24]
A_O = [32, 48]
A_L = [64, 68]
A_S = [72, 88]
A_P = [104, 112]
A_K = [120, 128]
A_V = [136, 144]
A_T = 152
G_ACC = 32
G_AF = 72
G_BF = 104
G_TMP = 124
L_WOFF = 8
L_XOFF = 12
L_KVOFF = 16
L_DBG = 17
L_TMP = 18
L_SNAP = 19
L_FADDR = 20
L_T = 24
S_XSRD = 8
S_WSRD = 12
S_DBG = 36
S_W = 6
S_LW = 62
S_M0W = 63
S_M0X = 64
S_WSOFF = 66
S_XSOFF = 67
S_CNT = 69
S_T0 = 70
S_T1 = 71
S_KVSOFF = 73
S_OUTSRD = 84
S_KWSRD = 88
S_OOFF = 61
XFLAG = "nt" if opt("xnt", "0") == "1" else ""

def load_args(a, p_sgpr):
    a("s_load_dwordx16 s[16:31], s[0:1], 0")
    a("s_load_dwordx4 s[32:35], s[0:1], 64")
    a("s_load_dwordx2 s[50:51], s[0:1], 80")
    a(f"s_load_dwordx2 s[{S_DBG}:{S_DBG+1}], s[0:1], 88")
    a("s_load_dwordx2 s[52:53], s[0:1], 96")
    a("s_waitcnt lgkmcnt(0)")
    a(f"s_cmp_eq_u32 s{p_sgpr}, 0")
    for i in range(5):
        for h in range(2):
            a(f"s_cselect_b32 s{40+2*i+h}, s{16+2*i+h}, s{26+2*i+h}")

G_A = 128
G_B = 132
S_CUR = 75
S_DELTA = 76
GPRIO = opt("gprio", "1") == "1"
def accreg(nb, qb): return G_ACC + 4*(2*nb + qb)
def gemm_addr(a, mode, first_slot):
    lane = V_LANE
    t0, t1, t2, t3 = G_TMP, G_TMP+1, G_TMP+2, G_TMP+3
    a(f"v_bfe_u32 v{t0}, v{lane}, 2, 2")
    a(f"v_lshrrev_b32 v{t1}, 4, v{lane}")
    if mode == 'q':
        a(f"v_lshl_add_u32 v{t2}, v{t1}, 3, v{t0}")
    else:
        a(f"v_lshrrev_b32 v{t2}, 1, v{t1}")
        a(f"v_lshlrev_b32 v{t2}, 4, v{t2}")
        a(f"v_and_b32 v{t3}, 1, v{t1}")
        a(f"v_lshl_add_u32 v{t2}, v{t3}, 2, v{t2}")
        a(f"v_add_u32 v{t2}, v{t2}, v{t0}")
    a(f"v_lshlrev_b32 v{t2}, 8, v{t2}")
    a(f"v_and_b32 v{t3}, 3, v{lane}")
    a(f"v_lshl_add_u32 v{t2}, v{t3}, 3, v{t2}")
    a(f"v_lshlrev_b32 v{t0}, 1, v{t0}")
    a(f"v_and_b32 v{t1}, 1, v{t1}")
    a(f"v_xor_b32 v{t0}, v{t0}, v{t1}")
    a(f"s_lshr_b32 s{S_T0}, s{S_W}, 2")
    a(f"s_lshl_b32 s{S_T0}, s{S_T0}, 2")
    a(f"v_xor_b32 v{t0}, s{S_T0}, v{t0}")
    if first_slot: a(f"v_add_u32 v{t2}, {first_slot*SLOT}, v{t2}")
    for nb in range(4):
        a(f"v_xor_b32 v{t1}, {nb}, v{t0}")
        a(f"v_lshl_add_u32 v{G_A+nb}, v{t1}, 5, v{t2}")
    if mode == 'q':
        a(f"s_and_b32 s{S_T0}, s{S_W}, 3")
        a(f"s_lshl_b32 s{S_T0}, s{S_T0}, 5")
        a(f"v_and_b32 v{t0}, 15, v{lane}")
        a(f"v_add_u32 v{t0}, s{S_T0}, v{t0}")
        a(f"v_bfe_u32 v{t1}, v{t0}, 1, 3")
        a(f"v_lshrrev_b32 v{t2}, 4, v{lane}")
        a(f"v_xor_b32 v{t1}, v{t1}, v{t2}")
        a(f"v_lshlrev_b32 v{t0}, 7, v{t0}")
        a(f"v_add_u32 v{t0}, {XPART + first_slot*SLOT}, v{t0}")
        a(f"v_lshl_add_u32 v{G_B}, v{t1}, 4, v{t0}")
        a(f"v_xor_b32 v{G_B+1}, 64, v{G_B}")
    else:
        a(f"s_and_b32 s{S_T0}, s{S_W}, 3")
        a(f"s_lshl_b32 s{S_T0}, s{S_T0}, 12")
        a(f"s_add_u32 s{S_T0}, s{S_T0}, {XPART + first_slot*SLOT}")
        a(f"v_and_b32 v{t0}, 15, v{lane}")
        a(f"v_lshlrev_b32 v{t0}, 4, v{t0}")
        a(f"v_lshrrev_b32 v{t1}, 5, v{lane}")
        a(f"v_lshl_add_u32 v{t0}, v{t1}, 10, v{t0}")
        a(f"v_bfe_u32 v{t1}, v{lane}, 4, 1")
        a(f"v_lshl_add_u32 v{t0}, v{t1}, 9, v{t0}")
        a(f"v_add_u32 v{G_B}, s{S_T0}, v{t0}")
    a(f"s_mov_b32 s{S_CUR}, {first_slot*SLOT}")

def gemm_read_list(mode, st):
    L = []
    af = G_AF + 16*st; bf = G_BF + 8*st
    for qb in range(2):
        if mode == 'q': L.append(f"ds_read_b128 {vr(bf+4*qb,4)}, v{G_B+st} offset:{qb*2048}")
        else: L.append(f"ds_read_b128 {vr(bf+4*qb,4)}, v{G_B} offset:{st*2048 + qb*256}")
    second = 1024 if mode == 'q' else 2048
    for nb in range(4):
        L.append(f"ds_read_b64_tr_b16 {vr(af+4*nb,2)}, v{G_A+nb} offset:{st*8192}")
        L.append(f"ds_read_b64_tr_b16 {vr(af+4*nb+2,2)}, v{G_A+(nb^1)} offset:{st*8192 + second}")
    return L

def gemm_move(a, mode, nslot):
    a(f"s_add_u32 s{S_T0}, s{S_CUR}, {SLOT}")
    a(f"s_cmp_eq_u32 s{S_T0}, {SLOT*nslot}")
    a(f"s_cselect_b32 s{S_T0}, 0, s{S_T0}")
    a(f"s_sub_u32 s{S_DELTA}, s{S_T0}, s{S_CUR}")
    a(f"s_mov_b32 s{S_CUR}, s{S_T0}")
    for nb in range(4): a(f"v_add_u32 v{G_A+nb}, s{S_DELTA}, v{G_A+nb}")
    for j in range(2 if mode == 'q' else 1): a(f"v_add_u32 v{G_B+j}, s{S_DELTA}, v{G_B+j}")

def c_gemm_chunk(a, mode, barrier, next_reads):
    if barrier:
        a("s_barrier")
    for st in range(2):
        if GPRIO: a(f"s_setprio {3 - 2*st}")
        a("s_waitcnt lgkmcnt(0)")
        if st == 0: rl = gemm_read_list(mode, 1)
        else: rl = gemm_read_list(mode, 0) if next_reads else []
        af = G_AF + 16*st; bf = G_BF + 8*st
        k = 0
        for nb in range(4):
            for qb in range(2):
                acc = accreg(nb, qb)
                a(f"v_mfma_f32_16x16x32_bf16 {vr(acc,4)}, {vr(af+4*nb,4)}, {vr(bf+4*qb,4)}, {vr(acc,4)}")
                n = 2 if (2*nb + qb) in (0, 2) else 1
                for _ in range(n):
                    if k < len(rl): a(rl[k]); k += 1
        while k < len(rl): a(rl[k]); k += 1
        if st == 0 and next_reads:
            gemm_move(a, mode, 5)

def gemm_first_reads(a, mode):
    for r in gemm_read_list(mode, 0): a(r)

def c_gemm(a, mode, tag, first_slot):
    for i in range(32):
        a(f"v_mov_b32 v{G_ACC+i}, 0")
    a("s_barrier")
    gemm_first_reads(a, mode)
    a(f"s_mov_b32 s{S_CNT}, 15")
    a(".p2align 6")
    a.label(f"L_{tag}_loop")
    c_gemm_chunk(a, mode, True, True)
    a(f"s_sub_u32 s{S_CNT}, s{S_CNT}, 1")
    a(f"s_cmp_lg_u32 s{S_CNT}, 0")
    a(f"s_cbranch_scc1 L_{tag}_loop")
    c_gemm_chunk(a, mode, False, False)
    if GPRIO: a("s_setprio 0")

def attn_step(a, t, r, read, off, do_qk=True):
    S = A_S[r]; Sn = A_S[r ^ 1]
    P = A_P[r]; Pp = A_P[r ^ 1]
    tn = t if r == 0 else t + 1
    Kn = A_K[tn & 1]; Qn = A_Q[r ^ 1]
    tp = t - 1 if r == 0 else t
    Vp = A_V[tp & 1]; Op = A_O[r ^ 1]; Lp = A_L[r ^ 1]
    E = lambda i: a(f"v_exp_f32 v{S+i}, v{S+i}")
    C = lambda i: a(f"v_cvt_pk_bf16_f32 v{P+i//2}, v{S+i}, v{S+i+1}")
    def RD(i):
        if read == 'K': a(f"ds_read_b128 {vr(A_K[(t+1)&1]+4*i,4)}, v{A_KVADDR} offset:{off+1024*i}")
        if read == 'V': a(f"ds_read_b128 {vr(A_V[(t+1)&1]+4*i,4)}, v{A_KVADDR} offset:{off+2048+1024*i}")
    if do_qk: a(f"v_mfma_f32_32x32x16_bf16 {vr(Sn,16)}, {vr(Kn,4)}, {vr(Qn,4)}, 0")
    RD(0)
    E(0); E(1); E(2); E(3)
    if do_qk: a(f"v_mfma_f32_32x32x16_bf16 {vr(Sn,16)}, {vr(Kn+4,4)}, {vr(Qn+4,4)}, {vr(Sn,16)}")
    RD(1)
    E(4); E(5); E(6); C(0); C(2)
    a(f"v_mfma_f32_32x32x16_bf16 {vr(Op,16)}, {vr(Vp,4)}, {vr(Pp,4)}, {vr(Op,16)}")
    E(7); E(8); E(9); C(4); C(6)
    a(f"v_mfma_f32_32x32x16_bf16 {vr(Op,16)}, {vr(Vp+4,4)}, {vr(Pp+4,4)}, {vr(Op,16)}")
    E(10); E(11); E(12); C(8); C(10)
    a(f"v_smfmac_f32_16x16x64_bf16 {vr(Lp,4)}, {vr(A_SEL,4)}, {vr(Pp,8)}, v{A_IDX}")
    E(13); E(14); E(15); C(12); C(14)

def slow_path(a, r):
    Q = A_Q[r]; O = A_O[r]; L = A_L[r]
    S = A_S[0]; NM = A_S[1]; P = A_P[0]; K = A_K[0]; V = A_V[0]
    M = A_T + 4; ADDR = A_T + 5
    l1 = a.newlabel("slow1"); l2 = a.newlabel("slow2")
    a(f"v_lshlrev_b32 v{ADDR}, 4, v{V_LANE}")
    a(f"s_lshl_b32 s60, s3, 18")
    if WS_KV: a(f"s_add_u32 s60, s60, {WS_KV}")
    a(f"s_mov_b32 s62, 64")
    a(f"v_mov_b32 v{M}, 0xff800000")
    a.label(l1)
    a(f"buffer_load_dwordx4 {vr(K,4)}, v{ADDR}, s[{S_WSSRD}:{S_WSSRD+3}], s60 offen sc1")
    a(f"buffer_load_dwordx4 {vr(K+4,4)}, v{ADDR}, s[{S_WSSRD}:{S_WSSRD+3}], s60 offen offset:1024 sc1")
    a("s_waitcnt vmcnt(0)")
    a(f"v_mfma_f32_32x32x16_bf16 {vr(S,16)}, {vr(K,4)}, {vr(Q,4)}, 0")
    a(f"v_mfma_f32_32x32x16_bf16 {vr(S,16)}, {vr(K+4,4)}, {vr(Q+4,4)}, {vr(S,16)}")
    a.nop(16)
    for i in range(8):
        a(f"v_max3_f32 v{M}, v{S+2*i}, v{S+2*i+1}, v{M}")
    a("s_add_u32 s60, s60, 4096")
    a("s_sub_u32 s62, s62, 1")
    a("s_cmp_lg_u32 s62, 0")
    a(f"s_cbranch_scc1 {l1}")
    a(f"v_mov_b32 v{M+2}, v{M}")
    a("s_nop 1")
    a(f"v_permlane32_swap_b32 v{M+2}, v{M}")
    a("s_nop 1")
    a(f"v_max_f32 v{M}, v{M}, v{M+2}")
    a(f"v_sub_f32 v{M}, 0, v{M}")
    for i in range(16): a(f"v_mov_b32 v{NM+i}, v{M}")
    for i in range(16): a(f"v_mov_b32 v{O+i}, 0")
    for i in range(4): a(f"v_mov_b32 v{L+i}, 0")
    a(f"s_lshl_b32 s60, s3, 18")
    if WS_KV: a(f"s_add_u32 s60, s60, {WS_KV}")
    a(f"s_mov_b32 s62, 64")
    a.label(l2)
    a(f"buffer_load_dwordx4 {vr(K,4)}, v{ADDR}, s[{S_WSSRD}:{S_WSSRD+3}], s60 offen sc1")
    a(f"buffer_load_dwordx4 {vr(K+4,4)}, v{ADDR}, s[{S_WSSRD}:{S_WSSRD+3}], s60 offen offset:1024 sc1")
    a(f"buffer_load_dwordx4 {vr(V,4)}, v{ADDR}, s[{S_WSSRD}:{S_WSSRD+3}], s60 offen offset:2048 sc1")
    a(f"buffer_load_dwordx4 {vr(V+4,4)}, v{ADDR}, s[{S_WSSRD}:{S_WSSRD+3}], s60 offen offset:3072 sc1")
    a("s_waitcnt vmcnt(0)")
    a(f"v_mfma_f32_32x32x16_bf16 {vr(S,16)}, {vr(K,4)}, {vr(Q,4)}, {vr(NM,16)}")
    a(f"v_mfma_f32_32x32x16_bf16 {vr(S,16)}, {vr(K+4,4)}, {vr(Q+4,4)}, {vr(S,16)}")
    a.nop(16)
    for i in range(16): a(f"v_exp_f32 v{S+i}, v{S+i}")
    a("s_nop 1")
    for i in range(8): a(f"v_cvt_pk_bf16_f32 v{P+i}, v{S+2*i}, v{S+2*i+1}")
    a("s_nop 2")
    a(f"v_mfma_f32_32x32x16_bf16 {vr(O,16)}, {vr(V,4)}, {vr(P,4)}, {vr(O,16)}")
    a(f"v_mfma_f32_32x32x16_bf16 {vr(O,16)}, {vr(V+4,4)}, {vr(P+4,4)}, {vr(O,16)}")
    a(f"v_smfmac_f32_16x16x64_bf16 {vr(L,4)}, {vr(A_SEL,4)}, {vr(P,8)}, v{A_IDX}")
    a.nop(16)
    a("s_add_u32 s60, s60, 4096")
    a("s_sub_u32 s62, s62, 1")
    a("s_cmp_lg_u32 s62, 0")
    a(f"s_cbranch_scc1 {l2}")

def gen_compute(a):
    KX = 32; KACC = 64; KW = 80
    a(f"v_and_b32 v20, 31, v{V_LANE}")
    a(f"v_lshrrev_b32 v21, 5, v{V_LANE}")
    a(f"v_and_b32 v22, 15, v{V_LANE}")
    a(f"s_lshl_b32 s60, s{S_W}, 13")
    a(f"s_add_u32 s60, s60, {XSTG}")
    a("v_lshlrev_b32 v20, 8, v20")
    a("v_add_u32 v20, s60, v20")
    for s in range(8):
        a(f"v_or_b32 v23, {2*s}, v21")
        a("v_xor_b32 v23, v23, v22")
        a(f"v_lshl_add_u32 v{24+s}, v23, 4, v20")
    a(f"s_lshl_b32 s60, s{S_W}, 13")
    a(f"s_add_u32 s62, s60, {WSTG0}")
    a(f"v_bfe_u32 v16, v{V_LANE}, 2, 2")
    a("v_lshl_add_u32 v16, v21, 3, v16")
    a("v_lshlrev_b32 v16, 6, v16")
    a(f"v_bfe_u32 v17, v{V_LANE}, 4, 1")
    a("v_lshl_add_u32 v16, v17, 5, v16")
    a(f"v_and_b32 v17, 3, v{V_LANE}")
    a("v_lshl_add_u32 v16, v17, 3, v16")
    a("v_add_u32 v16, s62, v16")
    for i in range(16):
        a(f"v_mov_b32 v{KACC+i}, 0")
    gemm_addr(a, 'q', 0)
    a(f"v_lshlrev_b32 v18, 4, v{V_LANE}")
    a(f"s_lshl_b32 s60, s{S_W}, 12")
    a(f"s_add_u32 s60, s60, {PART}")
    a("v_add_u32 v19, s60, v18")
    stamp(a, 9)
    a("s_barrier")
    stamp(a, 10)
    for s in range(8):
        a(f"ds_read_b128 {vr(KX+4*s,4)}, v{24+s}")
        a(f"ds_read_b64_tr_b16 {vr(KW+4*s,2)}, v16 offset:{1024*s}")
        a(f"ds_read_b64_tr_b16 {vr(KW+4*s+2,2)}, v16 offset:{1024*s+256}")
        if s in (1, 3, 5): a("s_waitcnt lgkmcnt(6)")
    a("s_and_b32 s60, s5, 1")
    a("s_cmp_eq_u32 s60, 0")
    a("s_waitcnt lgkmcnt(0)")
    a("s_barrier")
    if PROF:
        a("s_cselect_b32 s97, 1, 0")
        stamp(a, 11)
        a("s_cmp_eq_u32 s97, 1")
    a("s_cbranch_scc0 L_kv_isv")
    for s in range(8):
        a(f"v_mfma_f32_32x32x16_bf16 {vr(KACC,16)}, {vr(KW+4*s,4)}, {vr(KX+4*s,4)}, {vr(KACC,16)}")
    a("s_branch L_kv_red")
    a.label("L_kv_isv")
    for s in range(8):
        a(f"v_mfma_f32_32x32x16_bf16 {vr(KACC,16)}, {vr(KX+4*s,4)}, {vr(KW+4*s,4)}, {vr(KACC,16)}")
    a.label("L_kv_red")
    a.nop(16)
    for q in range(4):
        a(f"ds_write_b128 v19, {vr(KACC+4*q,4)} offset:{1024*q}")
    a("s_waitcnt lgkmcnt(0)")
    a("s_barrier")
    stamp(a, 1)
    c_gemm(a, 'q', "q", 0)
    stamp(a, 2)
    a(f"v_and_b32 v{A_T}, 6, v{V_LANE}")
    a(f"v_mov_b32 v{A_T+1}, 0x3f803f80")
    a(f"v_cmp_eq_u32 vcc, 0, v{A_T}")
    a("s_nop 1")
    a(f"v_cndmask_b32 v{A_SEL}, 0, v{A_T+1}, vcc")
    a(f"v_cndmask_b32 v{A_SEL+1}, 0, v{A_T+1}, vcc")
    a(f"v_cmp_eq_u32 vcc, 4, v{A_T}")
    a("s_nop 1")
    a(f"v_cndmask_b32 v{A_SEL+2}, 0, v{A_T+1}, vcc")
    a(f"v_cndmask_b32 v{A_SEL+3}, 0, v{A_T+1}, vcc")
    a(f"v_and_b32 v{A_T}, 1, v{V_LANE}")
    a(f"v_mov_b32 v{A_T+1}, 0x4444")
    a(f"v_mov_b32 v{A_T+2}, 0xeeee")
    a(f"v_cmp_eq_u32 vcc, 0, v{A_T}")
    a("s_nop 1")
    a(f"v_cndmask_b32 v{A_IDX}, v{A_T+2}, v{A_T+1}, vcc")
    for hd in range(2):
        for i in range(2):
            nb = 2*hd + i
            for qb in range(2):
                for d in range(2):
                    a(f"v_cvt_pk_bf16_f32 v{A_Q[hd]+4*i+2*qb+d}, v{accreg(nb,qb)+2*d}, v{accreg(nb,qb)+2*d+1}")
    a("s_nop 1")
    for hd in range(2):
        for i in range(2):
            b = A_Q[hd] + 4*i
            a(f"v_permlane16_swap_b32 v{b}, v{b+2}")
            a(f"v_permlane16_swap_b32 v{b+1}, v{b+3}")
    a("s_barrier")
    a(f"v_lshlrev_b32 v{A_KVADDR}, 4, v{V_LANE}")
    a(f"v_add_u32 v{A_KVADDR}, {KVR[0]}, v{A_KVADDR}")
    for i in range(2):
        a(f"ds_read_b128 {vr(A_K[0]+4*i,4)}, v{A_KVADDR} offset:{1024*i}")
    for i in range(2):
        a(f"ds_read_b128 {vr(A_V[0]+4*i,4)}, v{A_KVADDR} offset:{2048+1024*i}")
    for r in range(2):
        for i in range(16): a(f"v_mov_b32 v{A_O[r]+i}, 0")
        for i in range(4): a(f"v_mov_b32 v{A_L[r]+i}, 0")
    for i in range(8): a(f"v_mov_b32 v{A_P[1]+i}, 0")
    for i in range(8): a(f"v_mov_b32 v{A_V[1]+i}, 0")
    a("s_waitcnt lgkmcnt(0)")
    a(f"v_mfma_f32_32x32x16_bf16 {vr(A_S[0],16)}, {vr(A_K[0],4)}, {vr(A_Q[0],4)}, 0")
    a(f"v_mfma_f32_32x32x16_bf16 {vr(A_S[0],16)}, {vr(A_K[0]+4,4)}, {vr(A_Q[0]+4,4)}, {vr(A_S[0],16)}")
    a(f"s_lshl_b32 s{S_OOFF}, s3, 22")
    a(f"s_add_u32 s{S_OOFF}, s{S_OOFF}, {WS_O}")
    a("s_lshl_b32 s60, s4, 2")
    a(f"s_and_b32 s62, s{S_W}, 3")
    a("s_add_u32 s60, s60, s62")
    a("s_lshl_b32 s60, s60, 16")
    a(f"s_add_u32 s{S_OOFF}, s{S_OOFF}, s60")
    a("s_lshl_b32 s60, s5, 2")
    a(f"s_lshr_b32 s62, s{S_W}, 2")
    a("s_lshl_b32 s62, s62, 1")
    a("s_add_u32 s60, s60, s62")
    a("s_lshl_b32 s60, s60, 11")
    a(f"s_add_u32 s{S_OOFF}, s{S_OOFF}, s60")
    a(f"s_mov_b32 s75, {KVR[0]}")
    a(f"s_mov_b32 s76, {KVR[1]}")
    a(f"s_mov_b32 s77, {KVR[2]}")
    a(f"s_mov_b32 s{S_CNT}, 0")
    a.nop(4)
    stamp(a, 3)
    a("s_branch L_att_entry")
    a(".p2align 6")
    a.label("L_att_loop")
    a("s_waitcnt lgkmcnt(0)")
    a("s_barrier")
    a("s_mov_b32 s60, s75")
    a("s_mov_b32 s75, s76")
    a("s_mov_b32 s76, s77")
    a("s_mov_b32 s77, s60")
    a(f"v_lshlrev_b32 v{A_KVADDR}, 4, v{V_LANE}")
    a(f"v_add_u32 v{A_KVADDR}, s75, v{A_KVADDR}")
    for i in range(8):
        t = i - 1
        if i == 1:
            a.label("L_att_entry")
        for r in range(2):
            if r == 1:
                a("s_waitcnt lgkmcnt(0)")
            ap = opt("aprio", "1")
            if ap == "1" and r == 0 and i % 2 == 0: a(f"s_setprio {3 - i//2}")
            if ap == "2" and r == 0 and i % 4 == 0: a(f"s_setprio {1 - i//4}")
            if ap == "3" and r == 0: a(f"s_setprio {3 - (i % 4)}")
            attn_step(a, t & 1 if t >= 0 else 1, r, 'K' if r == 0 else 'V', i*4096)
    a(f"s_add_u32 s{S_CNT}, s{S_CNT}, 1")
    a(f"s_cmp_lt_u32 s{S_CNT}, 8")
    a("s_cbranch_scc1 L_att_loop")
    attn_step(a, 1, 0, None, 0)
    a("s_waitcnt lgkmcnt(0)")
    attn_step(a, 1, 1, None, 0, do_qk=False)
    a("s_nop 1")
    Vp = A_V[1]; Pp = A_P[1]
    a(f"v_mfma_f32_32x32x16_bf16 {vr(A_O[1],16)}, {vr(Vp,4)}, {vr(Pp,4)}, {vr(A_O[1],16)}")
    a(f"v_mfma_f32_32x32x16_bf16 {vr(A_O[1],16)}, {vr(Vp+4,4)}, {vr(Pp+4,4)}, {vr(A_O[1],16)}")
    a(f"v_smfmac_f32_16x16x64_bf16 {vr(A_L[1],4)}, {vr(A_SEL,4)}, {vr(Pp,8)}, v{A_IDX}")
    stamp(a, 4)
    a.nop(16)
    a(f"s_mov_b32 s78, {fbits(2.0**-64)}")
    a(f"s_mov_b32 s79, {fbits(2.0**64)}")
    for r in range(2):
        ok = a.newlabel("rb_ok")
        a(f"v_add_f32 v{A_T}, v{A_L[r]}, v{A_L[r]+1}")
        a(f"v_mov_b32 v{A_T+3}, 0")
        for i in range(16):
            a(f"v_fma_f32 v{A_T+3}, v{A_O[r]+i}, 0, v{A_T+3}")
        a(f"v_cmp_le_f32 vcc, s78, v{A_T}")
        a(f"v_cmp_ge_f32 s[80:81], s79, v{A_T}")
        a(f"v_cmp_o_f32 s[82:83], v{A_T+3}, v{A_T+3}")
        a("s_nop 4")
        a("s_and_b64 s[80:81], s[80:81], vcc")
        a("s_and_b64 s[80:81], s[80:81], s[82:83]")
        a("s_cmp_eq_u64 s[80:81], -1")
        if opt("forceslow", "0") == "1": a("s_cmp_eq_u32 s3, 77")
        a(f"s_cbranch_scc1 {ok}")
        slow_path(a, r)
        a(f"v_add_f32 v{A_T}, v{A_L[r]}, v{A_L[r]+1}")
        a.label(ok)
        a(f"v_rcp_f32 v{A_T+1}, v{A_T}")
        a("s_nop 0")
        for i in range(16):
            a(f"v_mul_f32 v{A_O[r]+i}, v{A_T+1}, v{A_O[r]+i}")
    a(f"v_lshlrev_b32 v{A_T+2}, 4, v{V_LANE}")
    for r in range(2):
        for d in range(8):
            a(f"v_cvt_pk_bf16_f32 v{A_S[r]+d}, v{A_O[r]+2*d}, v{A_O[r]+2*d+1}")
        a(f"buffer_store_dwordx4 {vr(A_S[r],4)}, v{A_T+2}, s[{S_WSSRD}:{S_WSSRD+3}], s{S_OOFF} offen offset:{2048*r} sc1")
        a(f"buffer_store_dwordx4 {vr(A_S[r]+4,4)}, v{A_T+2}, s[{S_WSSRD}:{S_WSSRD+3}], s{S_OOFF} offen offset:{2048*r+1024} sc1")
    a(f"s_lshr_b32 s60, s{S_W}, 2")
    a("s_cmp_eq_u32 s60, 0")
    a(f"s_cselect_b32 s60, {4*SLOT}, 0")
    a(f"s_add_u32 s60, s60, {XPART}")
    a(f"s_and_b32 s62, s{S_W}, 3")
    a("s_lshl_b32 s62, s62, 12")
    a("s_add_u32 s60, s60, s62")
    a(f"v_add_u32 v{A_T+3}, s60, v{A_T+2}")
    for r in range(2):
        for i in range(2):
            a(f"ds_write_b128 v{A_T+3}, {vr(A_S[r]+4*i,4)} offset:{r*2048 + i*1024}")
    gemm_addr(a, 'o', 4)
    for i in range(32):
        a(f"v_mov_b32 v{G_ACC+i}, 0")
    a("s_waitcnt vmcnt(0) lgkmcnt(0)")
    a("s_barrier")
    stamp(a, 5)
    gemm_first_reads(a, 'o')
    c_gemm_chunk(a, 'o', False, True)
    c_gemm_chunk(a, 'o', False, False)
    gemm_move(a, 'o', 5)
    a("s_barrier")
    stamp(a, 6)
    gemm_first_reads(a, 'o')
    c_gemm_chunk(a, 'o', False, True)
    a(f"s_mov_b32 s{S_CNT}, 12")
    a(".p2align 6")
    a.label("L_o_loop")
    c_gemm_chunk(a, 'o', True, True)
    a(f"s_sub_u32 s{S_CNT}, s{S_CNT}, 1")
    a(f"s_cmp_lg_u32 s{S_CNT}, 0")
    a("s_cbranch_scc1 L_o_loop")
    c_gemm_chunk(a, 'o', False, False)
    if GPRIO: a("s_setprio 0")
    stamp(a, 7)
    a(f"s_lshl_b32 s7, s4, 7")
    a(f"s_and_b32 s60, s{S_W}, 3")
    a(f"s_lshl_b32 s60, s60, 5")
    a(f"s_add_u32 s7, s7, s60")
    a(f"s_lshl_b32 s7, s7, 12")
    a(f"s_lshl_b32 s60, s3, 11")
    a(f"s_add_u32 s7, s7, s60")
    a(f"s_lshl_b32 s60, s5, 8")
    a(f"s_add_u32 s7, s7, s60")
    a(f"s_lshr_b32 s60, s{S_W}, 2")
    a(f"s_lshl_b32 s60, s60, 7")
    a(f"s_add_u32 s7, s7, s60")
    t = G_TMP
    if opt("cst", "1") == "1":
        OST = 32768; RS = 144
        a(f"s_mul_i32 s60, s{S_W}, {32*RS}")
        a(f"s_add_u32 s60, s60, {OST}")
        a(f"v_and_b32 v{t}, 15, v{V_LANE}")
        a(f"v_mul_u32_u24 v{t}, {RS}, v{t}")
        a(f"v_lshrrev_b32 v{t+1}, 4, v{V_LANE}")
        a(f"v_lshl_add_u32 v{t}, v{t+1}, 3, v{t}")
        a(f"v_add_u32 v{t}, s60, v{t}")
        a(f"v_lshrrev_b32 v{t+1}, 3, v{V_LANE}")
        a(f"v_mul_u32_u24 v{t+2}, {RS}, v{t+1}")
        a(f"v_and_b32 v{t+3}, 7, v{V_LANE}")
        a(f"v_lshl_add_u32 v{t+2}, v{t+3}, 4, v{t+2}")
        a(f"v_add_u32 v{t+2}, s60, v{t+2}")
        a(f"v_lshlrev_b32 v{t+1}, 12, v{t+1}")
        a(f"v_lshl_add_u32 v{t+1}, v{t+3}, 4, v{t+1}")
        for nb in range(4):
            for qb in range(2):
                b = G_AF + 2*(2*nb + qb)
                for d in range(2):
                    a(f"v_cvt_pk_bf16_f32 v{b+d}, v{accreg(nb,qb)+2*d}, v{accreg(nb,qb)+2*d+1}")
        for nb in range(4):
            for qb in range(2):
                b = G_AF + 2*(2*nb + qb)
                a(f"ds_write_b64 v{t}, {vr(b,2)} offset:{qb*16*RS + nb*32}")
        a("s_waitcnt lgkmcnt(0)")
        for i in range(4):
            a(f"ds_read_b128 {vr(G_BF+4*i,4)}, v{t+2} offset:{8*i*RS}")
        for i in range(4):
            a(f"s_waitcnt lgkmcnt({3-i})")
            a(f"buffer_store_dwordx4 {vr(G_BF+4*i,4)}, v{t+1}, s[{S_OUTSRD}:{S_OUTSRD+3}], s7 offen {opt('outf','nt')}")
            if i < 3: a(f"s_add_u32 s7, s7, {8*4096}")
    else:
        a(f"v_and_b32 v{t}, 31, v{V_LANE}")
        a(f"v_lshlrev_b32 v{t}, 12, v{t}")
        a(f"v_lshrrev_b32 v{t+1}, 5, v{V_LANE}")
        a(f"v_lshl_add_u32 v{t}, v{t+1}, 4, v{t}")
        a.nop(8)
        for hd in range(2):
            for d in range(8):
                a(f"v_cvt_pk_bf16_f32 v{G_AF+8*hd+d}, v{G_ACC+16*hd+2*d}, v{G_ACC+16*hd+2*d+1}")
        a("s_nop 1")
        for hd in range(2):
            for qd in range(2):
                b = G_AF + 8*hd + 4*qd
                a(f"v_permlane32_swap_b32 v{b}, v{b+2}")
                a(f"v_permlane32_swap_b32 v{b+1}, v{b+3}")
        a("s_nop 1")
        for hd in range(2):
            for qd in range(2):
                b = G_AF + 8*hd + 4*qd
                a(f"buffer_store_dwordx4 {vr(b,4)}, v{t}, s[{S_OUTSRD}:{S_OUTSRD+3}], s7 offen offset:{hd*64 + qd*32}")
    if PROF:
        a("s_waitcnt vmcnt(0)")
        stamp(a, 8)
        stamp_flush(a)
    a("s_endpgm")

def l_dma_w(a, slot):
    a(f"s_add_u32 m0, s{S_M0W}, {slot*SLOT}")
    a("s_nop 0")
    for j in range(4):
        a(f"buffer_load_dwordx4 v{L_WOFF+j}, s[{S_WSRD}:{S_WSRD+3}], s{S_WSOFF} offen offset:{1024*j} {opt('wf','')} lds")
    a(f"s_add_u32 s{S_WSOFF}, s{S_WSOFF}, {64*2048}")
    a(f"s_and_b32 s{S_WSOFF}, s{S_WSOFF}, 0x1fffff")
def l_dma_x(a, mode, slot):
    a(f"s_add_u32 m0, s{S_M0X}, {slot*SLOT}")
    a("s_nop 0")
    for j in range(4):
        if mode == 'q':
            a(f"buffer_load_dwordx4 v{L_XOFF+j}, s[{S_XSRD}:{S_XSRD+3}], s{S_XSOFF} offen offset:{1024*j} {XFLAG} lds")
        else:
            a(f"buffer_load_dwordx4 v{L_XOFF}, s[{S_XSRD}:{S_XSRD+3}], s{S_XSOFF} offen offset:{1024*j} sc1 lds")
    a(f"s_add_u32 s{S_XSOFF}, s{S_XSOFF}, {128 if mode == 'q' else 4096}")
    a(f"s_and_b32 s{S_XSOFF}, s{S_XSOFF}, {2047 if mode == 'q' else 65535}")
def l_dma_chunk(a, mode, slot):
    if mode == 'o' and opt("nodma", "0") == "1": return
    l_dma_w(a, slot); l_dma_x(a, mode, slot)
def l_kv_dma(a, base_imm=None, base_sgpr=None):
    if base_imm is not None:
        a(f"s_add_u32 m0, s{S_T1}, {base_imm}")
    else:
        a(f"s_add_u32 m0, s{S_T1}, s{base_sgpr}")
    a("s_nop 0")
    for j in range(4):
        a(f"buffer_load_dwordx4 v{L_KVOFF}, s[{S_WSSRD}:{S_WSSRD+3}], s{S_KVSOFF} offen offset:{1024*j} sc1 lds")
    a("s_add_u32 m0, m0, 4096")
    a(f"s_add_u32 s60, s{S_KVSOFF}, 4096")
    for j in range(4):
        a(f"buffer_load_dwordx4 v{L_KVOFF}, s[{S_WSSRD}:{S_WSSRD+3}], s60 offen offset:{1024*j} sc1 lds")
    a(f"s_add_u32 s{S_KVSOFF}, s{S_KVSOFF}, 32768")

def gen_loader(a):
    L = V_LANE
    t0, t1, t2, t3 = L_T, L_T+1, L_T+2, L_T+3
    a(f"s_sub_u32 s{S_LW}, s{S_W}, 8")
    a("s_lshl_b32 s60, s3, 4")
    a("s_add_u32 s60, s60, s4")
    if opt("oline", "0") == "1":
        a("s_lshl_b32 s60, s60, 7")
        a(f"s_add_u32 s60, s60, {WS_FLAG}")
        a(f"v_and_b32 v{L_FADDR}, 7, v{L}")
        a(f"v_lshlrev_b32 v{L_FADDR}, 2, v{L_FADDR}")
    else:
        a("s_lshl_b32 s60, s60, 10")
        a(f"s_add_u32 s60, s60, {WS_FLAG}")
        a(f"v_and_b32 v{L_FADDR}, 7, v{L}")
        a(f"v_lshlrev_b32 v{L_FADDR}, 7, v{L_FADDR}")
    a(f"v_add_u32 v{L_FADDR}, s60, v{L_FADDR}")
    a("s_lshr_b32 s60, s5, 1")
    a("s_lshl_b32 s60, s60, 5")
    a("s_add_u32 s60, s60, s7")
    a(f"s_lshl_b32 s65, s{S_LW}, 3")
    a("s_add_u32 s60, s60, s65")
    a("s_lshl_b32 s72, s60, 11")
    a(f"v_lshrrev_b32 v{t0}, 4, v{L}")
    a(f"v_and_b32 v{t1}, 15, v{L}")
    a(f"s_and_b32 s65, s65, 15")
    for e in range(2):
        a(f"v_add_u32 v{t2}, {4*e}, v{t0}")
        a(f"v_add_u32 v{t3}, s65, v{t2}")
        a(f"v_xor_b32 v{t3}, v{t3}, v{t1}")
        a(f"v_lshlrev_b32 v{t3}, 4, v{t3}")
        a(f"v_lshl_add_u32 v{32+e}, v{t2}, 11, v{t3}")
        if e: a(f"v_subrev_u32 v{32+e}, {1024*e}, v{32+e}")
    a(f"v_lshlrev_b32 v34, 4, v{L}")
    a(f"s_lshl_b32 s74, s{S_LW}, 11")
    a("s_and_b32 s77, s5, 1")
    a("s_lshl_b32 s77, s77, 2")
    a("s_lshr_b32 s78, s2, 3")
    if opt("stgrot", "1") != "1":
        a("s_mov_b32 s77, 0"); a("s_mov_b32 s78, 0")
    if opt("stgrot", "1") != "1":
        a("s_mov_b32 s77, 0"); a("s_mov_b32 s78, 0")
    def x_round():
        a("s_and_b32 s77, s77, 7")
        a("s_lshl_b32 s60, s77, 13")
        a("s_add_u32 s60, s60, s74")
        a(f"s_add_u32 m0, s60, {XSTG}")
        a("s_lshl_b32 s65, s77, 8")
        a("s_add_u32 s65, s65, s72")
        for e in range(2):
            a(f"buffer_load_dwordx4 v{32+e}, s[{S_XSRD}:{S_XSRD+3}], s65 offen offset:{1024*e} {XFLAG} lds")
        a("s_add_u32 s77, s77, 1")
    def w_round():
        a("s_and_b32 s78, s78, 7")
        a("s_lshl_b32 s60, s78, 13")
        a("s_add_u32 s60, s60, s74")
        a(f"s_add_u32 m0, s60, {WSTG0}")
        a("s_add_u32 s78, s78, 1")
        for e in range(2):
            a(f"buffer_load_dwordx4 v34, s[{S_KWSRD}:{S_KWSRD+3}], s60 offen offset:{1024*e} {opt('kwf','')} lds")
    WLATE = opt("wlate", "0") == "1"
    if WLATE:
        a("s_lshr_b32 s60, s2, 4")
        a("s_and_b32 s60, s60, 15")
        a("s_lshl_b32 s60, s60, 2")
        a(f"s_add_u32 s60, s60, s{S_LW}")
        a("s_lshl_b32 s60, s60, 10")
        a(f"v_and_b32 v{t0}, 7, v{L}")
        a(f"v_lshlrev_b32 v{t0}, 7, v{t0}")
        a(f"buffer_load_dword v37, v{t0}, s[{S_KWSRD}:{S_KWSRD+3}], s60 offen")
        for r in range(8): x_round()
    else:
        for r in range(8):
            x_round(); w_round()
    stamp(a, 9)
    a(f"v_lshrrev_b32 v{t0}, 4, v{L}")
    a(f"v_bfe_u32 v{t1}, v{L}, 1, 3")
    a(f"v_lshlrev_b32 v{t2}, 1, v{t0}")
    a(f"v_xor_b32 v{t1}, v{t1}, v{t2}")
    a(f"v_lshlrev_b32 v{t0}, 11, v{t0}")
    a(f"v_and_b32 v{t2}, 1, v{L}")
    a(f"v_lshl_add_u32 v{t0}, v{t2}, 4, v{t0}")
    a(f"s_lshl_b32 s60, s{S_LW}, 15")
    a(f"s_lshl_b32 s65, s5, 8")
    a(f"s_add_u32 s60, s60, s65")
    a(f"v_add_u32 v{t0}, s60, v{t0}")
    for j in range(4):
        bj = (j ^ (j >> 1)) & 1
        a(f"v_xor_b32 v{t2}, {bj}, v{t1}")
        a(f"v_lshl_add_u32 v{L_WOFF+j}, v{t2}, 5, v{t0}")
        if j: a(f"v_add_u32 v{L_WOFF+j}, {j*(8192-1024)}, v{L_WOFF+j}")
    a(f"v_lshrrev_b32 v{t0}, 3, v{L}")
    a(f"s_lshl_b32 s60, s{S_LW}, 5")
    a(f"s_add_u32 s60, s60, s7")
    a(f"v_add_u32 v{t0}, s60, v{t0}")
    a(f"v_lshlrev_b32 v{t0}, 11, v{t0}")
    a(f"v_and_b32 v{t1}, 7, v{L}")
    a(f"v_lshrrev_b32 v{t2}, 4, v{L}")
    a(f"v_xor_b32 v{t1}, v{t1}, v{t2}")
    for e in range(4):
        if e & 1:
            a(f"v_xor_b32 v{t3}, 4, v{t1}")
            a(f"v_lshl_add_u32 v{L_XOFF+e}, v{t3}, 4, v{t0}")
        else:
            a(f"v_lshl_add_u32 v{L_XOFF+e}, v{t1}, 4, v{t0}")
        if e: a(f"v_add_u32 v{L_XOFF+e}, {e*(8*2048-1024)}, v{L_XOFF+e}")
    a(f"s_lshl_b32 s{S_M0W}, s{S_LW}, 12")
    a(f"s_lshl_b32 s{S_M0X}, s{S_LW}, 12")
    a(f"s_add_u32 s{S_M0X}, s{S_M0X}, {XPART}")
    a("s_and_b32 s60, s4, 3")
    a("s_lshl_b32 s60, s60, 2")
    a("s_lshl_b32 s65, s5, 1")
    a("s_add_u32 s60, s60, s65")
    a("s_and_b32 s60, s60, 15")
    if opt("rot", "1") != "1": a("s_mov_b32 s60, 0")
    a(f"s_lshl_b32 s{S_WSOFF}, s60, 17")
    a(f"s_lshl_b32 s{S_XSOFF}, s60, 7")
    if WLATE:
        if opt("c0first", "1") == "1":
            l_dma_chunk(a, 'q', 0)
            for r in range(8): w_round()
        else:
            for r in range(8): w_round()
            l_dma_chunk(a, 'q', 0)
    else:
        l_dma_chunk(a, 'q', 0)
    a(f"buffer_load_dword v{L_SNAP}, v{L_FADDR}, s[{S_WSSRD}:{S_WSSRD+3}], 0 offen sc1")
    NT = 0
    if opt("wqpf", "0") == "1":
        NT = 2
        a(f"v_lshrrev_b32 v{t0}, 1, v{L}")
        a(f"v_lshlrev_b32 v{t0}, 11, v{t0}")
        a(f"v_and_b32 v{t1}, 1, v{L}")
        a(f"v_lshl_add_u32 v{t0}, v{t1}, 7, v{t0}")
        a("s_lshl_b32 s60, s5, 8")
        a(f"v_add_u32 v{t0}, s60, v{t0}")
        a(f"s_lshl_b32 s60, s{S_LW}, 17")
        a(f"s_add_u32 s60, s60, s{S_WSOFF}")
        a("s_and_b32 s60, s60, 0x1fffff")
        a(f"buffer_load_dword v35, v{t0}, s[{S_WSRD}:{S_WSRD+3}], s60 offen")
        a("s_add_u32 s60, s60, 0x10000")
        a(f"buffer_load_dword v36, v{t0}, s[{S_WSRD}:{S_WSRD+3}], s60 offen")
    a(f"v_mov_b32 v{L_DBG}, s3")
    a(f"v_lshlrev_b32 v{L_DBG}, 7, v{L_DBG}")
    a(f"v_lshlrev_b32 v{L_KVOFF}, 4, v{L}")
    a(f"s_lshl_b32 s{S_T1}, s{S_LW}, 13")
    a(f"v_add_u32 v{L_KVOFF}, s{S_T1}, v{L_KVOFF}")
    a(f"s_lshl_b32 s{S_KVSOFF}, s3, 18")
    if WS_KV: a(f"s_add_u32 s{S_KVSOFF}, s{S_KVSOFF}, {WS_KV}")
    stamp(a, 10)
    a(f"s_waitcnt vmcnt({(1 if (WLATE and opt('c0first','1') == '1') else 9) + NT})")
    stamp(a, 11)
    a("s_barrier")
    a("s_barrier")
    if opt("k1early", "1") == "1":
        l_dma_chunk(a, 'q', 1)
        a("s_barrier")
        l_dma_chunk(a, 'q', 2)
        l_dma_chunk(a, 'q', 3)
    else:
        for c in (1, 2, 3): l_dma_chunk(a, 'q', c)
        a("s_barrier")
    a("s_waitcnt vmcnt(24)")
    a("s_barrier")
    a("s_waitcnt vmcnt(16)")
    a("s_barrier")
    a(f"s_cmp_ge_u32 s{S_LW}, 2")
    a("s_cbranch_scc1 L_l_dummy")
    a(f"s_lshl_b32 s60, s{S_LW}, 11")
    a(f"s_add_u32 s60, s60, {PART}")
    a(f"v_lshlrev_b32 v{t0}, 4, v{L}")
    a(f"v_add_u32 v{t1}, s60, v{t0}")
    for w in range(8):
        a(f"ds_read_b128 {vr(40+8*w,4)}, v{t1} offset:{4096*w}")
        a(f"ds_read_b128 {vr(44+8*w,4)}, v{t1} offset:{4096*w+1024}")
        if w == 3: a("s_waitcnt lgkmcnt(4)")
    a("s_waitcnt lgkmcnt(0)")
    for w in range(1, 8):
        for r in range(8):
            a(f"v_add_f32 v{40+r}, v{40+r}, v{40+8*w+r}")
    a("s_and_b32 s60, s5, 1")
    a("s_cmp_eq_u32 s60, 0")
    a(f"s_cselect_b32 s60, {fbits(CSCALE)}, 1.0")
    for r in range(8):
        a(f"v_mul_f32 v{40+r}, s60, v{40+r}")
    for d in range(4):
        a(f"v_cvt_pk_bf16_f32 v{36+d}, v{40+2*d}, v{41+2*d}")
    a("s_and_b32 s60, s5, 1")
    a("s_cmp_eq_u32 s60, 0")
    a("s_cbranch_scc0 L_l_nokswap")
    a("s_nop 1")
    a("v_permlane32_swap_b32 v36, v38")
    a("v_permlane32_swap_b32 v37, v39")
    a("s_nop 1")
    a.label("L_l_nokswap")
    a("s_lshr_b32 s60, s5, 1")
    a("s_lshl_b32 s65, s4, 2")
    a("s_add_u32 s60, s60, s65")
    a("s_lshl_b32 s60, s60, 12")
    a("s_and_b32 s65, s5, 1")
    a("s_lshl_b32 s65, s65, 11")
    a("s_add_u32 s60, s60, s65")
    a(f"s_lshl_b32 s65, s{S_LW}, 10")
    a("s_add_u32 s60, s60, s65")
    a("s_lshl_b32 s65, s3, 18")
    a("s_add_u32 s60, s60, s65")
    if WS_KV: a(f"s_add_u32 s60, s60, {WS_KV}")
    a(f"buffer_store_dwordx4 v[36:39], v{t0}, s[{S_WSSRD}:{S_WSSRD+3}], s60 offen sc1")
    a("s_branch L_l_red_done")
    a.label("L_l_dummy")
    a(f"buffer_load_dword v36, v{L_FADDR}, s[{S_WSSRD}:{S_WSSRD+3}], 0 offen sc1")
    a.label("L_l_red_done")
    a("s_waitcnt vmcnt(9)")
    a("s_barrier")
    l_dma_chunk(a, 'q', 4)
    l_dma_chunk(a, 'q', 0)
    a("s_waitcnt vmcnt(17)")
    a("s_barrier")
    l_dma_chunk(a, 'q', 6 % NSLOT)
    a("s_waitcnt vmcnt(16)")
    a("s_barrier")
    l_dma_chunk(a, 'q', 7 % NSLOT)
    a(f"s_cmp_eq_u32 s{S_LW}, 0")
    a("s_cbranch_scc0 L_l_nosig")
    a("s_mov_b64 exec, 1")
    a(f"v_mov_b32 v{t0}, 1")
    a(f"global_atomic_add v{L_DBG}, v{t0}, s[{S_DBG}:{S_DBG+1}]")
    a("s_mov_b64 exec, -1")
    a.label("L_l_nosig")
    for c in range(4, 10):
        a("s_waitcnt vmcnt(16)")
        a("s_barrier")
        l_dma_chunk(a, 'q', (c + 4) % NSLOT)
    a(f"global_load_dword v{L_TMP}, v{L_DBG}, s[{S_DBG}:{S_DBG+1}] sc1")
    for c in (10, 11):
        a("s_waitcnt vmcnt(17)")
        a("s_barrier")
        l_dma_chunk(a, 'q', (c + 4) % NSLOT)
    a("s_waitcnt vmcnt(16)")
    a("s_barrier")
    a(f"v_readfirstlane_b32 s60, v{L_TMP}")
    a("s_mov_b32 s65, 0x200000")
    a("s_nop 2")
    a("s_cmp_ge_u32 s60, 128")
    a("s_cbranch_scc1 L_l_kvok")
    a.label("L_l_kvpoll")
    a(f"global_load_dword v{L_TMP}, v{L_DBG}, s[{S_DBG}:{S_DBG+1}] sc1")
    a("s_waitcnt vmcnt(0)")
    a(f"v_readfirstlane_b32 s60, v{L_TMP}")
    a("s_nop 3")
    a("s_cmp_ge_u32 s60, 128")
    a("s_cbranch_scc1 L_l_kvok")
    a("s_sleep 8")
    a("s_sub_u32 s65, s65, 1")
    a("s_cmp_lg_u32 s65, 0")
    a("s_cbranch_scc1 L_l_kvpoll")
    a.label("L_l_kvok")
    l_kv_dma(a, base_imm=KVR[0])
    a("s_waitcnt vmcnt(16)")
    a("s_barrier")
    l_kv_dma(a, base_imm=KVR[1])
    a("s_waitcnt vmcnt(16)")
    a("s_barrier")
    l_kv_dma(a, base_imm=KVR[2])
    srd(a, S_WSRD, 48, 2 << 20)
    srd(a, S_XSRD, 52, WS_SIZE)
    a(f"s_lshl_b32 s60, s{S_LW}, 16")
    a(f"s_lshl_b32 s65, s3, 22")
    a(f"s_add_u32 s60, s60, s65")
    a(f"s_lshl_b32 s65, s4, 18")
    a(f"s_add_u32 s60, s60, s65")
    a(f"s_add_u32 s60, s60, {WS_O}")
    a(f"v_lshlrev_b32 v{t0}, 4, v{L}")
    a(f"v_add_u32 v{L_XOFF}, s60, v{t0}")
    a(f"s_lshl_b32 s{S_WSOFF}, s5, 18")
    a(f"s_lshl_b32 s{S_XSOFF}, s5, 13")
    a(f"s_add_u32 s{S_XSOFF}, s{S_XSOFF}, 8192")
    a(f"s_and_b32 s{S_XSOFF}, s{S_XSOFF}, 65535")
    a(f"v_lshrrev_b32 v{t1}, 1, v{L}")
    a("s_and_b32 s60, s4, 3")
    a("s_lshl_b32 s60, s60, 8")
    a(f"s_lshl_b32 s65, s{S_LW}, 6")
    a("s_add_u32 s60, s60, s65")
    a(f"v_add_u32 v{t1}, s60, v{t1}")
    a(f"v_lshlrev_b32 v{t1}, 11, v{t1}")
    a(f"v_and_b32 v{t2}, 1, v{L}")
    a(f"v_lshl_add_u32 v{t1}, v{t2}, 7, v{t1}")
    a("s_lshl_b32 s60, s5, 8")
    a(f"v_add_u32 v{t1}, s60, v{t1}")
    a("s_waitcnt vmcnt(16)")
    a("s_barrier")
    for j in range(1, 8):
        a("s_waitcnt vmcnt(8)")
        a("s_barrier")
        if j <= 5:
            l_kv_dma(a, base_imm=KVR[(j - 1) % 3])
        if j == 1 and opt("wopf", "1") == "1":
            a(f"buffer_load_dword v{L_TMP}, v{t1}, s[{S_WSRD}:{S_WSRD+3}], 0 offen")
            a(f"s_mov_b32 s60, {32*2048}")
            a(f"buffer_load_dword v{L_TMP}, v{t1}, s[{S_WSRD}:{S_WSRD+3}], s60 offen")
        if j == 6:
            l_dma_w(a, 4); l_dma_w(a, 0)
        if j == 7:
            l_dma_w(a, 1)
            if opt("omb", "1") == "1":
                a(f"s_lshl_b32 s60, s{S_LW}, 12")
                a(f"s_add_u32 s60, s60, {((OS0_ + 2) % NSLOT)*SLOT + XPART}")
                a(f"v_mov_b32 v{t2}, s60")
                a(f"v_mov_b32 v{t3}, 0")
                a(f"ds_write_b32 v{t2}, v{t3}")
                a("s_movk_i32 s79, 0x5a5a")
                a("s_waitcnt lgkmcnt(0)")
    a("s_waitcnt vmcnt(0)")
    a("s_barrier")
    l_dma_w(a, 2)
    a(f"v_add_u32 v{L_SNAP}, 1, v{L_SNAP}")
    a(f"s_cmp_eq_u32 s{S_LW}, 0")
    a("s_cbranch_scc0 L_l_noflag")
    a(f"v_cmp_eq_u32 vcc, s5, v{L}")
    a("s_nop 4")
    a("s_mov_b64 exec, vcc")
    a(f"buffer_store_dword v{L_SNAP}, v{L_FADDR}, s[{S_WSSRD}:{S_WSSRD+3}], 0 offen sc1")
    a("s_mov_b64 exec, -1")
    a.label("L_l_noflag")
    if opt("omb", "1") == "1":
        OMB = ((OS0_ + 2) % NSLOT)*SLOT + XPART
        a(f"s_lshl_b32 s60, s{S_LW}, 12")
        a(f"s_add_u32 s60, s60, {OMB}")
        a(f"v_mov_b32 v{t2}, s60")
        a(f"s_cmp_eq_u32 s{S_LW}, 0")
        a("s_cbranch_scc1 L_l_opoll0")
        a.label("L_l_ombwait")
        a(f"ds_read_b32 v{t3}, v{t2}")
        a("s_waitcnt lgkmcnt(0)")
        a(f"v_readfirstlane_b32 s60, v{t3}")
        a("s_nop 3")
        a("s_cmp_eq_u32 s60, s79")
        a("s_cbranch_scc1 L_l_owait")
        a("s_sleep 1")
        a("s_branch L_l_ombwait")
        a.label("L_l_opoll0")
    a("s_mov_b32 s65, 0x200000")
    a.label("L_l_opoll")
    a(f"buffer_load_dword v{L_TMP}, v{L_FADDR}, s[{S_WSSRD}:{S_WSSRD+3}], 0 offen sc1")
    a("s_waitcnt vmcnt(0)")
    a(f"v_cmp_eq_u32 vcc, v{L_TMP}, v{L_SNAP}")
    a("s_nop 4")
    a("s_cmp_eq_u64 vcc, -1")
    a("s_cbranch_scc1 L_l_oset")
    a(f"s_sleep {opt('sleep','4')}")
    a("s_sub_u32 s65, s65, 1")
    a("s_cmp_lg_u32 s65, 0")
    a("s_cbranch_scc1 L_l_opoll")
    a.label("L_l_oset")
    if opt("omb", "1") == "1":
        a(f"v_mov_b32 v{t3}, s79")
        for lw in range(1, 4):
            a(f"ds_write_b32 v{t2}, v{t3} offset:{4096*lw}")
        a("s_waitcnt lgkmcnt(0)")
    a.label("L_l_owait")
    for c in (2, 3, 4):
        l_dma_x(a, 'o', (4 + c) % NSLOT)
    l_dma_w(a, (4 + 4) % NSLOT)
    a("s_waitcnt vmcnt(8)")
    a("s_barrier")
    l_dma_chunk(a, 'o', (4 + 5) % NSLOT)
    l_dma_chunk(a, 'o', (4 + 6) % NSLOT)
    for c in range(3, 12):
        a("s_waitcnt vmcnt(16)")
        a("s_barrier")
        l_dma_chunk(a, 'o', (4 + c + 4) % NSLOT)
    a("s_waitcnt vmcnt(16)")
    a("s_barrier")
    a("s_waitcnt vmcnt(8)")
    a("s_barrier")
    a("s_waitcnt vmcnt(0)")
    a("s_barrier")
    if PROF:
        stamp(a, 8)
        stamp_flush(a)
    a("s_endpgm")

def gen_main(a):
    name = KNAME
    a(f".globl {name}\n.p2align 8\n.type {name},@function")
    a.label(name)
    a("s_cmp_ge_u32 s2, 256")
    a("s_cbranch_scc1 L_end")
    a("s_and_b32 s4, s2, 7")
    a("s_lshr_b32 s5, s2, 3")
    a("s_lshr_b32 s3, s4, 2")
    a("s_and_b32 s4, s4, 3")
    a("s_lshl_b32 s4, s4, 2")
    a("s_lshr_b32 s6, s5, 3")
    a("s_add_u32 s4, s4, s6")
    a("s_and_b32 s5, s5, 7")
    load_args(a, 3)
    a("v_lshrrev_b32 v1, 6, v0")
    a(f"v_and_b32 v{V_LANE}, 63, v0")
    a(f"v_readfirstlane_b32 s{S_W}, v1")
    srd(a, S_WSSRD, 52, WS_SIZE)
    srd(a, S_XSRD, 40, 4 << 20)
    srd(a, S_WSRD, 42, 2 << 20)
    a("s_and_b32 s60, s5, 1")
    a("s_cmp_eq_u32 s60, 0")
    a("s_cselect_b32 s54, s44, s46")
    a("s_cselect_b32 s55, s45, s47")
    srd(a, S_KWSRD, 54, 65536)
    srd(a, S_OUTSRD, 50, 8 << 20)
    a("s_lshl_b32 s7, s4, 7")
    stamp_init(a); stamp(a, 0)
    if opt("codepf", "0") == "1":
        lab = a.newlabel("cpf")
        a(f"s_cmp_eq_u32 s{S_W}, 7")
        a(f"s_cbranch_scc0 {lab}")
        a("s_getpc_b64 s[80:81]")
        a(f"v_lshlrev_b32 v4, 7, v{V_LANE}")
        for i in range(int(opt("codekb", "28")) // 8):
            a(f"global_load_dword v5, v4, s[80:81]")
            a(f"v_add_u32 v4, 8192, v4")
        a.label(lab)
    if opt("lfirst", "1") == "1":
        a(f"s_cmp_lt_u32 s{S_W}, 8")
        a("s_cbranch_scc1 L_compute")
        gen_loader(a)
        a.label("L_compute")
        gen_compute(a)
    else:
        a(f"s_cmp_ge_u32 s{S_W}, 8")
        a("s_cbranch_scc1 L_loader")
        gen_compute(a)
        a.label("L_loader")
        gen_loader(a)
    a.label("L_end")
    a("s_endpgm")
    return name, NVGPR, LDS_MAIN

def main(out_path):
    ref = open("cdna_kernels/" + NAME + ".s.ref").read().split("\n")
    header = [l for l in ref if l.startswith(";") and "@launch" not in l and "Override" not in l and "grid=ceil" not in l]
    a = Asm()
    name, vg, lds = gen_main(a)
    txt = "\n".join(header) + "\n"
    txt += f"; @launch grid=(256,1,1) block=(768,1,1) lds={lds}\n"
    txt += '.amdgcn_target "amdgcn-amd-amdhsa--gfx950"\n.text\n'
    txt += a.text()
    txt += '.section .rodata,"a"\n'
    txt += ".p2align 6\n" + kernel_desc(name, vg)
    open(out_path, "w").write(txt)
    nb = sum(1 for l in a.lines if l.strip() == "s_barrier")
    print("static barriers:", nb)

if __name__ == "__main__":
    if "--prof" in sys.argv:
        PROF = True
        sys.argv.remove("--prof")
    main(sys.argv[1] if len(sys.argv) > 1 else "cdna_kernels/" + NAME + ".s")
```

```python
import sys, math, os, struct
sys.path.insert(0, __file__.rsplit("/", 1)[0])
from asmlib import *

NAME = "concat_heads__grouped_kv_mqa__grouped_kv_mqa__prompt"
KNAME = NAME + "_kernel"
import os as _os
_O = dict(kv.split("=") for kv in _os.environ.get("GENOPT", "").split(",") if "=" in kv)
WS_BASE = int(_O.get("wsbase", "0")) << 20
WS_KV = WS_BASE
WS_O = WS_BASE + (1 << 20)
WS_FLAG = WS_BASE + (10 << 20)
WS_SIZE = 268435456
CSCALE = math.log2(math.e) / math.sqrt(32.0)
def fbits(x): return "0x%08x" % struct.unpack("<I", struct.pack("<f", x))[0]
OPT = dict(kv.split("=") for kv in os.environ.get("GENOPT", "").split(",") if "=" in kv)
def opt(k, d): return OPT.get(k, d)

OS0_ = 4
SLOT = 32768
NSLOT = 5
XPART = 16384
KVR = [32768, 65536, 98304]
PART = 131072
XSTG = 32768
WSTG0 = 98304
LDS_MAIN = 163840
NVGPR = 168

PROF = False
WS_PROF = 12 << 20
V_PROF = 167
S_WSSRD = 56
V_LANE = 2
def stamp(a, idx):
    if not PROF: return
    a("s_memtime s[92:93]")
    a("s_memrealtime s[94:95]")
    a("s_waitcnt lgkmcnt(0)")
    a(f"v_writelane_b32 v{V_PROF}, s92, {idx}")
    a(f"v_writelane_b32 v{V_PROF}, s94, {idx+32}")
def stamp_init(a):
    if not PROF: return
    a(f"v_mov_b32 v{V_PROF}, 0")
def stamp_flush(a):
    if not PROF: return
    a(f"s_mul_i32 s96, s2, 12")
    a(f"s_add_u32 s96, s96, s6")
    a(f"s_lshl_b32 s96, s96, 8")
    a(f"s_add_u32 s96, s96, {WS_PROF + (1<<20)}")
    a(f"v_lshlrev_b32 v{V_PROF-1}, 2, v{V_LANE}")
    a(f"buffer_store_dword v{V_PROF}, v{V_PROF-1}, s[{S_WSSRD}:{S_WSSRD+3}], s96 offen")
    a("s_waitcnt vmcnt(0)")

A_KVADDR = 1
A_SEL = 8
A_IDX = 12
A_Q = [16, 24]
A_O = [32, 48]
A_L = [64, 68]
A_S = [72, 88]
A_P = [104, 112]
A_K = [120, 128]
A_V = [136, 144]
A_T = 152
G_ACC = 32
G_AF = 72
G_BF = 104
G_TMP = 124
L_WOFF = 8
L_XOFF = 12
L_KVOFF = 16
L_DBG = 17
L_TMP = 18
L_SNAP = 19
L_FADDR = 20
L_T = 24
S_XSRD = 8
S_WSRD = 12
S_DBG = 36
S_W = 6
S_LW = 62
S_M0W = 63
S_M0X = 64
S_WSOFF = 66
S_XSOFF = 67
S_CNT = 69
S_T0 = 70
S_T1 = 71
S_KVSOFF = 73
S_OUTSRD = 84
S_KWSRD = 88
S_OOFF = 61
XFLAG = "nt" if opt("xnt", "0") == "1" else ""

def load_args(a, p_sgpr):
    a("s_load_dwordx16 s[16:31], s[0:1], 0")
    a("s_load_dwordx4 s[32:35], s[0:1], 64")
    a("s_load_dwordx2 s[50:51], s[0:1], 80")
    a(f"s_load_dwordx2 s[{S_DBG}:{S_DBG+1}], s[0:1], 88")
    a("s_load_dwordx2 s[52:53], s[0:1], 96")
    a("s_waitcnt lgkmcnt(0)")
    a(f"s_cmp_eq_u32 s{p_sgpr}, 0")
    for i in range(5):
        for h in range(2):
            a(f"s_cselect_b32 s{40+2*i+h}, s{16+2*i+h}, s{26+2*i+h}")

G_A = 128
G_B = 132
S_CUR = 75
S_DELTA = 76
GPRIO = opt("gprio", "1") == "1"
def accreg(nb, qb): return G_ACC + 4*(2*nb + qb)
def gemm_addr(a, mode, first_slot):
    lane = V_LANE
    t0, t1, t2, t3 = G_TMP, G_TMP+1, G_TMP+2, G_TMP+3
    a(f"v_bfe_u32 v{t0}, v{lane}, 2, 2")
    a(f"v_lshrrev_b32 v{t1}, 4, v{lane}")
    if mode == 'q':
        a(f"v_lshl_add_u32 v{t2}, v{t1}, 3, v{t0}")
    else:
        a(f"v_lshrrev_b32 v{t2}, 1, v{t1}")
        a(f"v_lshlrev_b32 v{t2}, 4, v{t2}")
        a(f"v_and_b32 v{t3}, 1, v{t1}")
        a(f"v_lshl_add_u32 v{t2}, v{t3}, 2, v{t2}")
        a(f"v_add_u32 v{t2}, v{t2}, v{t0}")
    a(f"v_lshlrev_b32 v{t2}, 8, v{t2}")
    a(f"v_and_b32 v{t3}, 3, v{lane}")
    a(f"v_lshl_add_u32 v{t2}, v{t3}, 3, v{t2}")
    a(f"v_lshlrev_b32 v{t0}, 1, v{t0}")
    a(f"v_and_b32 v{t1}, 1, v{t1}")
    a(f"v_xor_b32 v{t0}, v{t0}, v{t1}")
    a(f"s_lshr_b32 s{S_T0}, s{S_W}, 2")
    a(f"s_lshl_b32 s{S_T0}, s{S_T0}, 2")
    a(f"v_xor_b32 v{t0}, s{S_T0}, v{t0}")
    if first_slot: a(f"v_add_u32 v{t2}, {first_slot*SLOT}, v{t2}")
    for nb in range(4):
        a(f"v_xor_b32 v{t1}, {nb}, v{t0}")
        a(f"v_lshl_add_u32 v{G_A+nb}, v{t1}, 5, v{t2}")
    if mode == 'q':
        a(f"s_and_b32 s{S_T0}, s{S_W}, 3")
        a(f"s_lshl_b32 s{S_T0}, s{S_T0}, 5")
        a(f"v_and_b32 v{t0}, 15, v{lane}")
        a(f"v_add_u32 v{t0}, s{S_T0}, v{t0}")
        a(f"v_bfe_u32 v{t1}, v{t0}, 1, 3")
        a(f"v_lshrrev_b32 v{t2}, 4, v{lane}")
        a(f"v_xor_b32 v{t1}, v{t1}, v{t2}")
        a(f"v_lshlrev_b32 v{t0}, 7, v{t0}")
        a(f"v_add_u32 v{t0}, {XPART + first_slot*SLOT}, v{t0}")
        a(f"v_lshl_add_u32 v{G_B}, v{t1}, 4, v{t0}")
        a(f"v_xor_b32 v{G_B+1}, 64, v{G_B}")
    else:
        a(f"s_and_b32 s{S_T0}, s{S_W}, 3")
        a(f"s_lshl_b32 s{S_T0}, s{S_T0}, 12")
        a(f"s_add_u32 s{S_T0}, s{S_T0}, {XPART + first_slot*SLOT}")
        a(f"v_and_b32 v{t0}, 15, v{lane}")
        a(f"v_lshlrev_b32 v{t0}, 4, v{t0}")
        a(f"v_lshrrev_b32 v{t1}, 5, v{lane}")
        a(f"v_lshl_add_u32 v{t0}, v{t1}, 10, v{t0}")
        a(f"v_bfe_u32 v{t1}, v{lane}, 4, 1")
        a(f"v_lshl_add_u32 v{t0}, v{t1}, 9, v{t0}")
        a(f"v_add_u32 v{G_B}, s{S_T0}, v{t0}")
    a(f"s_mov_b32 s{S_CUR}, {first_slot*SLOT}")

def gemm_read_list(mode, st):
    L = []
    af = G_AF + 16*st; bf = G_BF + 8*st
    for qb in range(2):
        if mode == 'q': L.append(f"ds_read_b128 {vr(bf+4*qb,4)}, v{G_B+st} offset:{qb*2048}")
        else: L.append(f"ds_read_b128 {vr(bf+4*qb,4)}, v{G_B} offset:{st*2048 + qb*256}")
    second = 1024 if mode == 'q' else 2048
    for nb in range(4):
        L.append(f"ds_read_b64_tr_b16 {vr(af+4*nb,2)}, v{G_A+nb} offset:{st*8192}")
        L.append(f"ds_read_b64_tr_b16 {vr(af+4*nb+2,2)}, v{G_A+(nb^1)} offset:{st*8192 + second}")
    return L

def gemm_move(a, mode, nslot):
    a(f"s_add_u32 s{S_T0}, s{S_CUR}, {SLOT}")
    a(f"s_cmp_eq_u32 s{S_T0}, {SLOT*nslot}")
    a(f"s_cselect_b32 s{S_T0}, 0, s{S_T0}")
    a(f"s_sub_u32 s{S_DELTA}, s{S_T0}, s{S_CUR}")
    a(f"s_mov_b32 s{S_CUR}, s{S_T0}")
    for nb in range(4): a(f"v_add_u32 v{G_A+nb}, s{S_DELTA}, v{G_A+nb}")
    for j in range(2 if mode == 'q' else 1): a(f"v_add_u32 v{G_B+j}, s{S_DELTA}, v{G_B+j}")

def c_gemm_chunk(a, mode, barrier, next_reads):
    if barrier:
        a("s_barrier")
    for st in range(2):
        if GPRIO: a(f"s_setprio {3 - 2*st}")
        a("s_waitcnt lgkmcnt(0)")
        if st == 0: rl = gemm_read_list(mode, 1)
        else: rl = gemm_read_list(mode, 0) if next_reads else []
        af = G_AF + 16*st; bf = G_BF + 8*st
        k = 0
        for nb in range(4):
            for qb in range(2):
                acc = accreg(nb, qb)
                a(f"v_mfma_f32_16x16x32_bf16 {vr(acc,4)}, {vr(af+4*nb,4)}, {vr(bf+4*qb,4)}, {vr(acc,4)}")
                n = 2 if (2*nb + qb) in (0, 2) else 1
                for _ in range(n):
                    if k < len(rl): a(rl[k]); k += 1
        while k < len(rl): a(rl[k]); k += 1
        if st == 0 and next_reads:
            gemm_move(a, mode, 5)

def gemm_first_reads(a, mode):
    for r in gemm_read_list(mode, 0): a(r)

def c_gemm(a, mode, tag, first_slot):
    for i in range(32):
        a(f"v_mov_b32 v{G_ACC+i}, 0")
    a("s_barrier")
    gemm_first_reads(a, mode)
    a(f"s_mov_b32 s{S_CNT}, 15")
    a(".p2align 6")
    a.label(f"L_{tag}_loop")
    c_gemm_chunk(a, mode, True, True)
    a(f"s_sub_u32 s{S_CNT}, s{S_CNT}, 1")
    a(f"s_cmp_lg_u32 s{S_CNT}, 0")
    a(f"s_cbranch_scc1 L_{tag}_loop")
    c_gemm_chunk(a, mode, False, False)
    if GPRIO: a("s_setprio 0")

def attn_step(a, t, r, read, off, do_qk=True):
    S = A_S[r]; Sn = A_S[r ^ 1]
    P = A_P[r]; Pp = A_P[r ^ 1]
    tn = t if r == 0 else t + 1
    Kn = A_K[tn & 1]; Qn = A_Q[r ^ 1]
    tp = t - 1 if r == 0 else t
    Vp = A_V[tp & 1]; Op = A_O[r ^ 1]; Lp = A_L[r ^ 1]
    E = lambda i: a(f"v_exp_f32 v{S+i}, v{S+i}")
    C = lambda i: a(f"v_cvt_pk_bf16_f32 v{P+i//2}, v{S+i}, v{S+i+1}")
    def RD(i):
        if read == 'K': a(f"ds_read_b128 {vr(A_K[(t+1)&1]+4*i,4)}, v{A_KVADDR} offset:{off+1024*i}")
        if read == 'V': a(f"ds_read_b128 {vr(A_V[(t+1)&1]+4*i,4)}, v{A_KVADDR} offset:{off+2048+1024*i}")
    qs = opt("qswap", "0") == "1"
    if do_qk: a(f"v_mfma_f32_32x32x16_bf16 {vr(Sn,16)}, {vr(Qn if qs else Kn,4)}, {vr(Kn if qs else Qn,4)}, 0")
    RD(0)
    E(0); E(1); E(2); E(3)
    if do_qk: a(f"v_mfma_f32_32x32x16_bf16 {vr(Sn,16)}, {vr((Qn if qs else Kn)+4,4)}, {vr((Kn if qs else Qn)+4,4)}, {vr(Sn,16)}")
    RD(1)
    E(4); E(5); E(6); C(0); C(2)
    def PV(k):
        if opt("pswap", "0") == "1": a(f"v_mfma_f32_32x32x16_bf16 {vr(Op,16)}, {vr(Pp+4*k,4)}, {vr(Vp+4*k,4)}, {vr(Op,16)}")
        else: a(f"v_mfma_f32_32x32x16_bf16 {vr(Op,16)}, {vr(Vp+4*k,4)}, {vr(Pp+4*k,4)}, {vr(Op,16)}")
    PV(0)
    E(7); E(8); E(9); C(4); C(6)
    PV(1)
    E(10); E(11); E(12); C(8); C(10)
    if opt("nosum", "0") != "1": a(f"v_smfmac_f32_16x16x64_bf16 {vr(Lp,4)}, {vr(A_SEL,4)}, {vr(Pp,8)}, v{A_IDX}")
    E(13); E(14); E(15); C(12); C(14)

def slow_path(a, r):
    Q = A_Q[r]; O = A_O[r]; L = A_L[r]
    S = A_S[0]; NM = A_S[1]; P = A_P[0]; K = A_K[0]; V = A_V[0]
    M = A_T + 4; ADDR = A_T + 5
    l1 = a.newlabel("slow1"); l2 = a.newlabel("slow2")
    a(f"v_lshlrev_b32 v{ADDR}, 4, v{V_LANE}")
    a(f"s_lshl_b32 s60, s3, 18")
    if WS_KV: a(f"s_add_u32 s60, s60, {WS_KV}")
    a(f"s_mov_b32 s62, 64")
    a(f"v_mov_b32 v{M}, 0xff800000")
    a.label(l1)
    a(f"buffer_load_dwordx4 {vr(K,4)}, v{ADDR}, s[{S_WSSRD}:{S_WSSRD+3}], s60 offen sc1")
    a(f"buffer_load_dwordx4 {vr(K+4,4)}, v{ADDR}, s[{S_WSSRD}:{S_WSSRD+3}], s60 offen offset:1024 sc1")
    a("s_waitcnt vmcnt(0)")
    a(f"v_mfma_f32_32x32x16_bf16 {vr(S,16)}, {vr(K,4)}, {vr(Q,4)}, 0")
    a(f"v_mfma_f32_32x32x16_bf16 {vr(S,16)}, {vr(K+4,4)}, {vr(Q+4,4)}, {vr(S,16)}")
    a.nop(16)
    for i in range(8):
        a(f"v_max3_f32 v{M}, v{S+2*i}, v{S+2*i+1}, v{M}")
    a("s_add_u32 s60, s60, 4096")
    a("s_sub_u32 s62, s62, 1")
    a("s_cmp_lg_u32 s62, 0")
    a(f"s_cbranch_scc1 {l1}")
    a(f"v_mov_b32 v{M+2}, v{M}")
    a("s_nop 1")
    a(f"v_permlane32_swap_b32 v{M+2}, v{M}")
    a("s_nop 1")
    a(f"v_max_f32 v{M}, v{M}, v{M+2}")
    a(f"v_sub_f32 v{M}, 0, v{M}")
    for i in range(16): a(f"v_mov_b32 v{NM+i}, v{M}")
    for i in range(16): a(f"v_mov_b32 v{O+i}, 0")
    for i in range(4): a(f"v_mov_b32 v{L+i}, 0")
    a(f"s_lshl_b32 s60, s3, 18")
    if WS_KV: a(f"s_add_u32 s60, s60, {WS_KV}")
    a(f"s_mov_b32 s62, 64")
    a.label(l2)
    a(f"buffer_load_dwordx4 {vr(K,4)}, v{ADDR}, s[{S_WSSRD}:{S_WSSRD+3}], s60 offen sc1")
    a(f"buffer_load_dwordx4 {vr(K+4,4)}, v{ADDR}, s[{S_WSSRD}:{S_WSSRD+3}], s60 offen offset:1024 sc1")
    a(f"buffer_load_dwordx4 {vr(V,4)}, v{ADDR}, s[{S_WSSRD}:{S_WSSRD+3}], s60 offen offset:2048 sc1")
    a(f"buffer_load_dwordx4 {vr(V+4,4)}, v{ADDR}, s[{S_WSSRD}:{S_WSSRD+3}], s60 offen offset:3072 sc1")
    a("s_waitcnt vmcnt(0)")
    a(f"v_mfma_f32_32x32x16_bf16 {vr(S,16)}, {vr(K,4)}, {vr(Q,4)}, {vr(NM,16)}")
    a(f"v_mfma_f32_32x32x16_bf16 {vr(S,16)}, {vr(K+4,4)}, {vr(Q+4,4)}, {vr(S,16)}")
    a.nop(16)
    for i in range(16): a(f"v_exp_f32 v{S+i}, v{S+i}")
    a("s_nop 1")
    for i in range(8): a(f"v_cvt_pk_bf16_f32 v{P+i}, v{S+2*i}, v{S+2*i+1}")
    a("s_nop 2")
    a(f"v_mfma_f32_32x32x16_bf16 {vr(O,16)}, {vr(V,4)}, {vr(P,4)}, {vr(O,16)}")
    a(f"v_mfma_f32_32x32x16_bf16 {vr(O,16)}, {vr(V+4,4)}, {vr(P+4,4)}, {vr(O,16)}")
    a(f"v_smfmac_f32_16x16x64_bf16 {vr(L,4)}, {vr(A_SEL,4)}, {vr(P,8)}, v{A_IDX}")
    a.nop(16)
    a("s_add_u32 s60, s60, 4096")
    a("s_sub_u32 s62, s62, 1")
    a("s_cmp_lg_u32 s62, 0")
    a(f"s_cbranch_scc1 {l2}")

def gen_compute(a):
    a(f"v_and_b32 v{A_T}, 6, v{V_LANE}")
    a(f"v_mov_b32 v{A_T+1}, 0x3f803f80")
    a(f"v_cmp_eq_u32 vcc, 0, v{A_T}")
    a("s_nop 1")
    a(f"v_cndmask_b32 v{A_SEL}, 0, v{A_T+1}, vcc")
    a(f"v_cndmask_b32 v{A_SEL+1}, 0, v{A_T+1}, vcc")
    a(f"v_cmp_eq_u32 vcc, 4, v{A_T}")
    a("s_nop 1")
    a(f"v_cndmask_b32 v{A_SEL+2}, 0, v{A_T+1}, vcc")
    a(f"v_cndmask_b32 v{A_SEL+3}, 0, v{A_T+1}, vcc")
    a(f"v_and_b32 v{A_T}, 1, v{V_LANE}")
    a(f"v_mov_b32 v{A_T+1}, 0x4444")
    a(f"v_mov_b32 v{A_T+2}, 0xeeee")
    a(f"v_cmp_eq_u32 vcc, 0, v{A_T}")
    a("s_nop 1")
    a(f"v_cndmask_b32 v{A_IDX}, v{A_T+2}, v{A_T+1}, vcc")
    a(f"s_lshl_b32 s{S_OOFF}, s3, 22")
    a(f"s_add_u32 s{S_OOFF}, s{S_OOFF}, {WS_O}")
    a("s_lshl_b32 s60, s4, 2")
    a(f"s_and_b32 s62, s{S_W}, 3")
    a("s_add_u32 s60, s60, s62")
    a("s_lshl_b32 s60, s60, 16")
    a(f"s_add_u32 s{S_OOFF}, s{S_OOFF}, s60")
    a("s_lshl_b32 s60, s5, 2")
    a(f"s_lshr_b32 s62, s{S_W}, 2")
    a("s_lshl_b32 s62, s62, 1")
    a("s_add_u32 s60, s60, s62")
    a("s_lshl_b32 s60, s60, 11")
    a(f"s_add_u32 s{S_OOFF}, s{S_OOFF}, s60")
    for i in range(8): a(f"v_mov_b32 v{A_V[1]+i}, 0")
    KX = 32; KACC = 64; KW = 80
    a(f"v_and_b32 v20, 31, v{V_LANE}")
    a(f"v_lshrrev_b32 v21, 5, v{V_LANE}")
    a(f"v_and_b32 v22, 15, v{V_LANE}")
    a(f"s_lshl_b32 s60, s{S_W}, 13")
    a(f"s_add_u32 s60, s60, {XSTG}")
    a("v_lshlrev_b32 v20, 8, v20")
    a("v_add_u32 v20, s60, v20")
    for s in range(8):
        a(f"v_or_b32 v23, {2*s}, v21")
        a("v_xor_b32 v23, v23, v22")
        a(f"v_lshl_add_u32 v{24+s}, v23, 4, v20")
    a(f"s_lshl_b32 s60, s{S_W}, 13")
    a(f"s_add_u32 s62, s60, {WSTG0}")
    a(f"v_bfe_u32 v16, v{V_LANE}, 2, 2")
    a("v_lshl_add_u32 v16, v21, 3, v16")
    a("v_lshlrev_b32 v16, 6, v16")
    a(f"v_bfe_u32 v17, v{V_LANE}, 4, 1")
    a("v_lshl_add_u32 v16, v17, 5, v16")
    a(f"v_and_b32 v17, 3, v{V_LANE}")
    a("v_lshl_add_u32 v16, v17, 3, v16")
    a("v_add_u32 v16, s62, v16")
    for i in range(16):
        a(f"v_mov_b32 v{KACC+i}, 0")
    gemm_addr(a, 'q', 0)
    a(f"v_lshlrev_b32 v18, 4, v{V_LANE}")
    a(f"s_lshl_b32 s60, s{S_W}, 12")
    a(f"s_add_u32 s60, s60, {PART}")
    a("v_add_u32 v19, s60, v18")
    stamp(a, 9)
    a("s_barrier")
    stamp(a, 10)
    for s in range(8):
        a(f"ds_read_b128 {vr(KX+4*s,4)}, v{24+s}")
        a(f"ds_read_b64_tr_b16 {vr(KW+4*s,2)}, v16 offset:{1024*s}")
        a(f"ds_read_b64_tr_b16 {vr(KW+4*s+2,2)}, v16 offset:{1024*s+256}")
        if s in (1, 3, 5): a("s_waitcnt lgkmcnt(6)")
    a("s_and_b32 s60, s5, 1")
    a("s_cmp_eq_u32 s60, 0")
    a("s_waitcnt lgkmcnt(0)")
    a("s_barrier")
    if PROF:
        a("s_cselect_b32 s97, 1, 0")
        stamp(a, 11)
        a("s_cmp_eq_u32 s97, 1")
    a("s_cbranch_scc0 L_kv_isv")
    for s in range(8):
        a(f"v_mfma_f32_32x32x16_bf16 {vr(KACC,16)}, {vr(KW+4*s,4)}, {vr(KX+4*s,4)}, {vr(KACC,16)}")
    a("s_branch L_kv_red")
    a.label("L_kv_isv")
    for s in range(8):
        a(f"v_mfma_f32_32x32x16_bf16 {vr(KACC,16)}, {vr(KX+4*s,4)}, {vr(KW+4*s,4)}, {vr(KACC,16)}")
    a.label("L_kv_red")
    a.nop(16)
    for q in range(4):
        a(f"ds_write_b128 v19, {vr(KACC+4*q,4)} offset:{1024*q}")
    a("s_waitcnt lgkmcnt(0)")
    a("s_barrier")
    stamp(a, 1)
    for r in range(2):
        for i in range(4): a(f"v_mov_b32 v{A_L[r]+i}, 0")
    c_gemm(a, 'q', "q", 0)
    stamp(a, 2)
    a.nop(8)
    for hd in range(2):
        for i in range(2):
            nb = 2*hd + i
            for qb in range(2):
                for d in range(2):
                    a(f"v_cvt_pk_bf16_f32 v{A_Q[hd]+4*i+2*qb+d}, v{accreg(nb,qb)+2*d}, v{accreg(nb,qb)+2*d+1}")
    a("s_nop 1")
    for hd in range(2):
        for i in range(2):
            b = A_Q[hd] + 4*i
            a(f"v_permlane16_swap_b32 v{b}, v{b+2}")
            a(f"v_permlane16_swap_b32 v{b+1}, v{b+3}")
    a("s_barrier")
    a(f"v_lshlrev_b32 v{A_KVADDR}, 4, v{V_LANE}")
    a(f"v_add_u32 v{A_KVADDR}, {KVR[0]}, v{A_KVADDR}")
    for i in range(2):
        a(f"ds_read_b128 {vr(A_K[0]+4*i,4)}, v{A_KVADDR} offset:{1024*i}")
    for i in range(2):
        a(f"ds_read_b128 {vr(A_V[0]+4*i,4)}, v{A_KVADDR} offset:{2048+1024*i}")
    for r in range(2):
        for i in range(16): a(f"v_mov_b32 v{A_O[r]+i}, 0")
    for i in range(8): a(f"v_mov_b32 v{A_P[1]+i}, 0")
    a("s_waitcnt lgkmcnt(0)")
    a(f"v_mfma_f32_32x32x16_bf16 {vr(A_S[0],16)}, {vr(A_K[0],4)}, {vr(A_Q[0],4)}, 0")
    a(f"v_mfma_f32_32x32x16_bf16 {vr(A_S[0],16)}, {vr(A_K[0]+4,4)}, {vr(A_Q[0]+4,4)}, {vr(A_S[0],16)}")
    a(f"s_mov_b32 s75, {KVR[0]}")
    a(f"s_mov_b32 s76, {KVR[1]}")
    a(f"s_mov_b32 s77, {KVR[2]}")
    a(f"s_mov_b32 s{S_CNT}, 0")
    a.nop(8)
    stamp(a, 3)
    a("s_branch L_att_entry")
    a(".p2align 6")
    a.label("L_att_loop")
    a("s_waitcnt lgkmcnt(0)")
    if opt("noabar", "0") != "1": a("s_barrier")
    a("s_mov_b32 s60, s75")
    a("s_mov_b32 s75, s76")
    a("s_mov_b32 s76, s77")
    a("s_mov_b32 s77, s60")
    a(f"v_lshlrev_b32 v{A_KVADDR}, 4, v{V_LANE}")
    a(f"v_add_u32 v{A_KVADDR}, s75, v{A_KVADDR}")
    for i in range(8):
        t = i - 1
        if i == 1:
            a.label("L_att_entry")
        for r in range(2):
            if r == 1 and opt("nolw", "0") != "1":
                a("s_waitcnt lgkmcnt(0)")
            ap = opt("aprio", "1")
            if ap == "1" and r == 0 and i % 2 == 0: a(f"s_setprio {3 - i//2}")
            if ap == "2" and r == 0 and i % 4 == 0: a(f"s_setprio {1 - i//4}")
            if ap == "3" and r == 0: a(f"s_setprio {3 - (i % 4)}")
            attn_step(a, t & 1 if t >= 0 else 1, r, 'K' if r == 0 else 'V', i*4096)
    a(f"s_add_u32 s{S_CNT}, s{S_CNT}, 1")
    a(f"s_cmp_lt_u32 s{S_CNT}, 8")
    a("s_cbranch_scc1 L_att_loop")
    attn_step(a, 1, 0, None, 0)
    a("s_waitcnt lgkmcnt(0)")
    attn_step(a, 1, 1, None, 0, do_qk=False)
    a("s_nop 1")
    Vp = A_V[1]; Pp = A_P[1]
    a(f"v_mfma_f32_32x32x16_bf16 {vr(A_O[1],16)}, {vr(Vp,4)}, {vr(Pp,4)}, {vr(A_O[1],16)}")
    a(f"v_mfma_f32_32x32x16_bf16 {vr(A_O[1],16)}, {vr(Vp+4,4)}, {vr(Pp+4,4)}, {vr(A_O[1],16)}")
    a(f"v_smfmac_f32_16x16x64_bf16 {vr(A_L[1],4)}, {vr(A_SEL,4)}, {vr(Pp,8)}, v{A_IDX}")
    stamp(a, 4)
    a.nop(16)
    a(f"s_mov_b32 s78, {fbits(2.0**-64)}")
    a(f"s_mov_b32 s79, {fbits(2.0**64)}")
    for r in range(2):
        ok = a.newlabel("rb_ok")
        a(f"v_add_f32 v{A_T}, v{A_L[r]}, v{A_L[r]+1}")
        a(f"v_mov_b32 v{A_T+3}, 0")
        for i in range(16):
            a(f"v_fma_f32 v{A_T+3}, v{A_O[r]+i}, 0, v{A_T+3}")
        a(f"v_cmp_le_f32 vcc, s78, v{A_T}")
        a(f"v_cmp_ge_f32 s[80:81], s79, v{A_T}")
        a(f"v_cmp_o_f32 s[82:83], v{A_T+3}, v{A_T+3}")
        a("s_nop 4")
        a("s_and_b64 s[80:81], s[80:81], vcc")
        a("s_and_b64 s[80:81], s[80:81], s[82:83]")
        a("s_cmp_eq_u64 s[80:81], -1")
        if opt("forceslow", "0") == "1": a("s_cmp_eq_u32 s3, 77")
        a(f"s_cbranch_scc1 {ok}")
        slow_path(a, r)
        a(f"v_add_f32 v{A_T}, v{A_L[r]}, v{A_L[r]+1}")
        a.label(ok)
        a(f"v_rcp_f32 v{A_T+1}, v{A_T}")
        a("s_nop 0")
        for i in range(16):
            a(f"v_mul_f32 v{A_O[r]+i}, v{A_T+1}, v{A_O[r]+i}")
    a(f"v_lshlrev_b32 v{A_T+2}, 4, v{V_LANE}")
    for r in range(2):
        for d in range(8):
            a(f"v_cvt_pk_bf16_f32 v{A_S[r]+d}, v{A_O[r]+2*d}, v{A_O[r]+2*d+1}")
        a(f"buffer_store_dwordx4 {vr(A_S[r],4)}, v{A_T+2}, s[{S_WSSRD}:{S_WSSRD+3}], s{S_OOFF} offen offset:{2048*r} sc1")
        a(f"buffer_store_dwordx4 {vr(A_S[r]+4,4)}, v{A_T+2}, s[{S_WSSRD}:{S_WSSRD+3}], s{S_OOFF} offen offset:{2048*r+1024} sc1")
    a(f"s_lshr_b32 s60, s{S_W}, 2")
    a("s_cmp_eq_u32 s60, 0")
    a(f"s_cselect_b32 s60, {4*SLOT}, 0")
    a(f"s_add_u32 s60, s60, {XPART}")
    a(f"s_and_b32 s62, s{S_W}, 3")
    a("s_lshl_b32 s62, s62, 12")
    a("s_add_u32 s60, s60, s62")
    a(f"v_add_u32 v{A_T+3}, s60, v{A_T+2}")
    for r in range(2):
        for i in range(2):
            a(f"ds_write_b128 v{A_T+3}, {vr(A_S[r]+4*i,4)} offset:{r*2048 + i*1024}")
    gemm_addr(a, 'o', 4)
    for i in range(32):
        a(f"v_mov_b32 v{G_ACC+i}, 0")
    a("s_waitcnt vmcnt(0) lgkmcnt(0)")
    a("s_barrier")
    stamp(a, 5)
    gemm_first_reads(a, 'o')
    c_gemm_chunk(a, 'o', False, True)
    c_gemm_chunk(a, 'o', False, False)
    gemm_move(a, 'o', 5)
    a("s_barrier")
    stamp(a, 6)
    gemm_first_reads(a, 'o')
    c_gemm_chunk(a, 'o', False, True)
    a(f"s_mov_b32 s{S_CNT}, 12")
    a(".p2align 6")
    a.label("L_o_loop")
    c_gemm_chunk(a, 'o', True, True)
    a(f"s_sub_u32 s{S_CNT}, s{S_CNT}, 1")
    a(f"s_cmp_lg_u32 s{S_CNT}, 0")
    a("s_cbranch_scc1 L_o_loop")
    c_gemm_chunk(a, 'o', False, False)
    if GPRIO: a("s_setprio 0")
    stamp(a, 7)
    a(f"s_lshl_b32 s7, s4, 7")
    a(f"s_and_b32 s60, s{S_W}, 3")
    a(f"s_lshl_b32 s60, s60, 5")
    a(f"s_add_u32 s7, s7, s60")
    a(f"s_lshl_b32 s7, s7, 12")
    a(f"s_lshl_b32 s60, s3, 11")
    a(f"s_add_u32 s7, s7, s60")
    a(f"s_lshl_b32 s60, s5, 8")
    a(f"s_add_u32 s7, s7, s60")
    a(f"s_lshr_b32 s60, s{S_W}, 2")
    a(f"s_lshl_b32 s60, s60, 7")
    a(f"s_add_u32 s7, s7, s60")
    t = G_TMP
    if opt("cst", "1") == "1":
        OST = 32768; RS = 144
        a(f"s_mul_i32 s60, s{S_W}, {32*RS}")
        a(f"s_add_u32 s60, s60, {OST}")
        a(f"v_and_b32 v{t}, 15, v{V_LANE}")
        a(f"v_mul_u32_u24 v{t}, {RS}, v{t}")
        a(f"v_lshrrev_b32 v{t+1}, 4, v{V_LANE}")
        a(f"v_lshl_add_u32 v{t}, v{t+1}, 3, v{t}")
        a(f"v_add_u32 v{t}, s60, v{t}")
        a(f"v_lshrrev_b32 v{t+1}, 3, v{V_LANE}")
        a(f"v_mul_u32_u24 v{t+2}, {RS}, v{t+1}")
        a(f"v_and_b32 v{t+3}, 7, v{V_LANE}")
        a(f"v_lshl_add_u32 v{t+2}, v{t+3}, 4, v{t+2}")
        a(f"v_add_u32 v{t+2}, s60, v{t+2}")
        a(f"v_lshlrev_b32 v{t+1}, 12, v{t+1}")
        a(f"v_lshl_add_u32 v{t+1}, v{t+3}, 4, v{t+1}")
        for nb in range(4):
            for qb in range(2):
                b = G_AF + 2*(2*nb + qb)
                for d in range(2):
                    a(f"v_cvt_pk_bf16_f32 v{b+d}, v{accreg(nb,qb)+2*d}, v{accreg(nb,qb)+2*d+1}")
        for nb in range(4):
            for qb in range(2):
                b = G_AF + 2*(2*nb + qb)
                a(f"ds_write_b64 v{t}, {vr(b,2)} offset:{qb*16*RS + nb*32}")
        a("s_waitcnt lgkmcnt(0)")
        for i in range(4):
            a(f"ds_read_b128 {vr(G_BF+4*i,4)}, v{t+2} offset:{8*i*RS}")
        for i in range(4):
            a(f"s_waitcnt lgkmcnt({3-i})")
            a(f"buffer_store_dwordx4 {vr(G_BF+4*i,4)}, v{t+1}, s[{S_OUTSRD}:{S_OUTSRD+3}], s7 offen {opt('outf','nt').replace('+',' ')}")
            if i < 3: a(f"s_add_u32 s7, s7, {8*4096}")
    else:
        a(f"v_and_b32 v{t}, 31, v{V_LANE}")
        a(f"v_lshlrev_b32 v{t}, 12, v{t}")
        a(f"v_lshrrev_b32 v{t+1}, 5, v{V_LANE}")
        a(f"v_lshl_add_u32 v{t}, v{t+1}, 4, v{t}")
        a.nop(8)
        for hd in range(2):
            for d in range(8):
                a(f"v_cvt_pk_bf16_f32 v{G_AF+8*hd+d}, v{G_ACC+16*hd+2*d}, v{G_ACC+16*hd+2*d+1}")
        a("s_nop 1")
        for hd in range(2):
            for qd in range(2):
                b = G_AF + 8*hd + 4*qd
                a(f"v_permlane32_swap_b32 v{b}, v{b+2}")
                a(f"v_permlane32_swap_b32 v{b+1}, v{b+3}")
        a("s_nop 1")
        for hd in range(2):
            for qd in range(2):
                b = G_AF + 8*hd + 4*qd
                a(f"buffer_store_dwordx4 {vr(b,4)}, v{t}, s[{S_OUTSRD}:{S_OUTSRD+3}], s7 offen offset:{hd*64 + qd*32}")
    if PROF:
        a("s_waitcnt vmcnt(0)")
        stamp(a, 8)
        stamp_flush(a)
    a("s_endpgm")

def l_dma_w(a, slot):
    a(f"s_add_u32 m0, s{S_M0W}, {slot*SLOT}")
    a("s_nop 0")
    for j in range(4):
        a(f"buffer_load_dwordx4 v{L_WOFF+j}, s[{S_WSRD}:{S_WSRD+3}], s{S_WSOFF} offen offset:{1024*j} {opt('wf','')} lds")
    a(f"s_add_u32 s{S_WSOFF}, s{S_WSOFF}, {64*2048}")
    a(f"s_and_b32 s{S_WSOFF}, s{S_WSOFF}, 0x1fffff")
def l_dma_x(a, mode, slot):
    a(f"s_add_u32 m0, s{S_M0X}, {slot*SLOT}")
    a("s_nop 0")
    for j in range(4):
        if mode == 'q':
            a(f"buffer_load_dwordx4 v{L_XOFF+j}, s[{S_XSRD}:{S_XSRD+3}], s{S_XSOFF} offen offset:{1024*j} {XFLAG} lds")
        else:
            a(f"buffer_load_dwordx4 v{L_XOFF}, s[{S_XSRD}:{S_XSRD+3}], s{S_XSOFF} offen offset:{1024*j} sc1 lds")
    a(f"s_add_u32 s{S_XSOFF}, s{S_XSOFF}, {128 if mode == 'q' else 4096}")
    a(f"s_and_b32 s{S_XSOFF}, s{S_XSOFF}, {2047 if mode == 'q' else 65535}")
def l_dma_chunk(a, mode, slot):
    if mode == 'o' and opt("nodma", "0") == "1": return
    l_dma_w(a, slot); l_dma_x(a, mode, slot)
def l_kv_dma(a, base_imm=None, base_sgpr=None):
    if base_imm is not None:
        a(f"s_add_u32 m0, s{S_T1}, {base_imm}")
    else:
        a(f"s_add_u32 m0, s{S_T1}, s{base_sgpr}")
    a("s_nop 0")
    for j in range(4):
        a(f"buffer_load_dwordx4 v{L_KVOFF}, s[{S_WSSRD}:{S_WSSRD+3}], s{S_KVSOFF} offen offset:{1024*j} sc1 lds")
    a("s_add_u32 m0, m0, 4096")
    a(f"s_add_u32 s60, s{S_KVSOFF}, 4096")
    for j in range(4):
        a(f"buffer_load_dwordx4 v{L_KVOFF}, s[{S_WSSRD}:{S_WSSRD+3}], s60 offen offset:{1024*j} sc1 lds")
    a(f"s_add_u32 s{S_KVSOFF}, s{S_KVSOFF}, 32768")

def gen_loader(a):
    L = V_LANE
    t0, t1, t2, t3 = L_T, L_T+1, L_T+2, L_T+3
    a(f"s_sub_u32 s{S_LW}, s{S_W}, 8")
    a("s_lshl_b32 s60, s3, 4")
    a("s_add_u32 s60, s60, s4")
    if opt("oline", "0") == "1":
        a("s_lshl_b32 s60, s60, 7")
        a(f"s_add_u32 s60, s60, {WS_FLAG}")
        a(f"v_and_b32 v{L_FADDR}, 7, v{L}")
        a(f"v_lshlrev_b32 v{L_FADDR}, 2, v{L_FADDR}")
    else:
        a("s_lshl_b32 s60, s60, 10")
        a(f"s_add_u32 s60, s60, {WS_FLAG}")
        a(f"v_and_b32 v{L_FADDR}, 7, v{L}")
        a(f"v_lshlrev_b32 v{L_FADDR}, 7, v{L_FADDR}")
    a(f"v_add_u32 v{L_FADDR}, s60, v{L_FADDR}")
    a("s_lshr_b32 s60, s5, 1")
    a("s_lshl_b32 s60, s60, 5")
    a("s_add_u32 s60, s60, s7")
    a(f"s_lshl_b32 s65, s{S_LW}, 3")
    a("s_add_u32 s60, s60, s65")
    a("s_lshl_b32 s72, s60, 11")
    a(f"v_lshrrev_b32 v{t0}, 4, v{L}")
    a(f"v_and_b32 v{t1}, 15, v{L}")
    a(f"s_and_b32 s65, s65, 15")
    for e in range(2):
        a(f"v_add_u32 v{t2}, {4*e}, v{t0}")
        a(f"v_add_u32 v{t3}, s65, v{t2}")
        a(f"v_xor_b32 v{t3}, v{t3}, v{t1}")
        a(f"v_lshlrev_b32 v{t3}, 4, v{t3}")
        a(f"v_lshl_add_u32 v{32+e}, v{t2}, 11, v{t3}")
        if e: a(f"v_subrev_u32 v{32+e}, {1024*e}, v{32+e}")
    a(f"v_lshlrev_b32 v34, 4, v{L}")
    a(f"s_lshl_b32 s74, s{S_LW}, 11")
    a("s_and_b32 s77, s5, 1")
    a("s_lshl_b32 s77, s77, 2")
    a("s_lshr_b32 s78, s2, 3")
    if opt("stgrot", "1") != "1":
        a("s_mov_b32 s77, 0"); a("s_mov_b32 s78, 0")
    if opt("stgrot", "1") != "1":
        a("s_mov_b32 s77, 0"); a("s_mov_b32 s78, 0")
    def x_round():
        a("s_and_b32 s77, s77, 7")
        a("s_lshl_b32 s60, s77, 13")
        a("s_add_u32 s60, s60, s74")
        a(f"s_add_u32 m0, s60, {XSTG}")
        a("s_lshl_b32 s65, s77, 8")
        a("s_add_u32 s65, s65, s72")
        for e in range(2):
            a(f"buffer_load_dwordx4 v{32+e}, s[{S_XSRD}:{S_XSRD+3}], s65 offen offset:{1024*e} {XFLAG} lds")
        a("s_add_u32 s77, s77, 1")
    def w_round():
        a("s_and_b32 s78, s78, 7")
        a("s_lshl_b32 s60, s78, 13")
        a("s_add_u32 s60, s60, s74")
        a(f"s_add_u32 m0, s60, {WSTG0}")
        a("s_add_u32 s78, s78, 1")
        for e in range(2):
            a(f"buffer_load_dwordx4 v34, s[{S_KWSRD}:{S_KWSRD+3}], s60 offen offset:{1024*e} {opt('kwf','')} lds")
    WLATE = opt("wlate", "0") == "1"
    if WLATE:
        a("s_lshr_b32 s60, s2, 4")
        a("s_and_b32 s60, s60, 15")
        a("s_lshl_b32 s60, s60, 2")
        a(f"s_add_u32 s60, s60, s{S_LW}")
        a("s_lshl_b32 s60, s60, 10")
        a(f"v_and_b32 v{t0}, 7, v{L}")
        a(f"v_lshlrev_b32 v{t0}, 7, v{t0}")
        a(f"buffer_load_dword v37, v{t0}, s[{S_KWSRD}:{S_KWSRD+3}], s60 offen")
        for r in range(8): x_round()
    else:
        for r in range(8):
            x_round(); w_round()
    stamp(a, 9)
    a(f"v_lshrrev_b32 v{t0}, 4, v{L}")
    a(f"v_bfe_u32 v{t1}, v{L}, 1, 3")
    a(f"v_lshlrev_b32 v{t2}, 1, v{t0}")
    a(f"v_xor_b32 v{t1}, v{t1}, v{t2}")
    a(f"v_lshlrev_b32 v{t0}, 11, v{t0}")
    a(f"v_and_b32 v{t2}, 1, v{L}")
    a(f"v_lshl_add_u32 v{t0}, v{t2}, 4, v{t0}")
    a(f"s_lshl_b32 s60, s{S_LW}, 15")
    a(f"s_lshl_b32 s65, s5, 8")
    a(f"s_add_u32 s60, s60, s65")
    a(f"v_add_u32 v{t0}, s60, v{t0}")
    for j in range(4):
        bj = (j ^ (j >> 1)) & 1
        a(f"v_xor_b32 v{t2}, {bj}, v{t1}")
        a(f"v_lshl_add_u32 v{L_WOFF+j}, v{t2}, 5, v{t0}")
        if j: a(f"v_add_u32 v{L_WOFF+j}, {j*(8192-1024)}, v{L_WOFF+j}")
    a(f"v_lshrrev_b32 v{t0}, 3, v{L}")
    a(f"s_lshl_b32 s60, s{S_LW}, 5")
    a(f"s_add_u32 s60, s60, s7")
    a(f"v_add_u32 v{t0}, s60, v{t0}")
    a(f"v_lshlrev_b32 v{t0}, 11, v{t0}")
    a(f"v_and_b32 v{t1}, 7, v{L}")
    a(f"v_lshrrev_b32 v{t2}, 4, v{L}")
    a(f"v_xor_b32 v{t1}, v{t1}, v{t2}")
    for e in range(4):
        if e & 1:
            a(f"v_xor_b32 v{t3}, 4, v{t1}")
            a(f"v_lshl_add_u32 v{L_XOFF+e}, v{t3}, 4, v{t0}")
        else:
            a(f"v_lshl_add_u32 v{L_XOFF+e}, v{t1}, 4, v{t0}")
        if e: a(f"v_add_u32 v{L_XOFF+e}, {e*(8*2048-1024)}, v{L_XOFF+e}")
    a(f"s_lshl_b32 s{S_M0W}, s{S_LW}, 12")
    a(f"s_lshl_b32 s{S_M0X}, s{S_LW}, 12")
    a(f"s_add_u32 s{S_M0X}, s{S_M0X}, {XPART}")
    a("s_and_b32 s60, s4, 3")
    a("s_lshl_b32 s60, s60, 2")
    a("s_lshl_b32 s65, s5, 1")
    a("s_add_u32 s60, s60, s65")
    a("s_and_b32 s60, s60, 15")
    if opt("rot", "1") != "1": a("s_mov_b32 s60, 0")
    a(f"s_lshl_b32 s{S_WSOFF}, s60, 17")
    a(f"s_lshl_b32 s{S_XSOFF}, s60, 7")
    if WLATE:
        if opt("c0first", "1") == "1":
            l_dma_chunk(a, 'q', 0)
            for r in range(8): w_round()
        else:
            for r in range(8): w_round()
            l_dma_chunk(a, 'q', 0)
    else:
        l_dma_chunk(a, 'q', 0)
    a(f"buffer_load_dword v{L_SNAP}, v{L_FADDR}, s[{S_WSSRD}:{S_WSSRD+3}], 0 offen sc1")
    NT = 0
    if opt("wqpf", "0") == "1":
        NT = 2
        a(f"v_lshrrev_b32 v{t0}, 1, v{L}")
        a(f"v_lshlrev_b32 v{t0}, 11, v{t0}")
        a(f"v_and_b32 v{t1}, 1, v{L}")
        a(f"v_lshl_add_u32 v{t0}, v{t1}, 7, v{t0}")
        a("s_lshl_b32 s60, s5, 8")
        a(f"v_add_u32 v{t0}, s60, v{t0}")
        a(f"s_lshl_b32 s60, s{S_LW}, 17")
        a(f"s_add_u32 s60, s60, s{S_WSOFF}")
        a("s_and_b32 s60, s60, 0x1fffff")
        a(f"buffer_load_dword v35, v{t0}, s[{S_WSRD}:{S_WSRD+3}], s60 offen")
        a("s_add_u32 s60, s60, 0x10000")
        a(f"buffer_load_dword v36, v{t0}, s[{S_WSRD}:{S_WSRD+3}], s60 offen")
    a(f"v_mov_b32 v{L_DBG}, s3")
    a(f"v_lshlrev_b32 v{L_DBG}, 7, v{L_DBG}")
    a(f"v_lshlrev_b32 v{L_KVOFF}, 4, v{L}")
    a(f"s_lshl_b32 s{S_T1}, s{S_LW}, 13")
    a(f"v_add_u32 v{L_KVOFF}, s{S_T1}, v{L_KVOFF}")
    a(f"s_lshl_b32 s{S_KVSOFF}, s3, 18")
    if WS_KV: a(f"s_add_u32 s{S_KVSOFF}, s{S_KVSOFF}, {WS_KV}")
    stamp(a, 10)
    a(f"s_waitcnt vmcnt({(1 if (WLATE and opt('c0first','1') == '1') else 9) + NT})")
    stamp(a, 11)
    a("s_barrier")
    a("s_barrier")
    if opt("k1early", "1") == "1":
        l_dma_chunk(a, 'q', 1)
        a("s_barrier")
        l_dma_chunk(a, 'q', 2)
        l_dma_chunk(a, 'q', 3)
    else:
        for c in (1, 2, 3): l_dma_chunk(a, 'q', c)
        a("s_barrier")
    a("s_waitcnt vmcnt(24)")
    a("s_barrier")
    a("s_waitcnt vmcnt(16)")
    a("s_barrier")
    a(f"s_cmp_ge_u32 s{S_LW}, 2")
    a("s_cbranch_scc1 L_l_dummy")
    a(f"s_lshl_b32 s60, s{S_LW}, 11")
    a(f"s_add_u32 s60, s60, {PART}")
    a(f"v_lshlrev_b32 v{t0}, 4, v{L}")
    a(f"v_add_u32 v{t1}, s60, v{t0}")
    for w in range(8):
        a(f"ds_read_b128 {vr(40+8*w,4)}, v{t1} offset:{4096*w}")
        a(f"ds_read_b128 {vr(44+8*w,4)}, v{t1} offset:{4096*w+1024}")
        if w == 3: a("s_waitcnt lgkmcnt(4)")
    a("s_waitcnt lgkmcnt(0)")
    for w in range(1, 8):
        for r in range(8):
            a(f"v_add_f32 v{40+r}, v{40+r}, v{40+8*w+r}")
    a("s_and_b32 s60, s5, 1")
    a("s_cmp_eq_u32 s60, 0")
    a(f"s_cselect_b32 s60, {fbits(CSCALE)}, 1.0")
    for r in range(8):
        a(f"v_mul_f32 v{40+r}, s60, v{40+r}")
    for d in range(4):
        a(f"v_cvt_pk_bf16_f32 v{36+d}, v{40+2*d}, v{41+2*d}")
    a("s_and_b32 s60, s5, 1")
    a("s_cmp_eq_u32 s60, 0")
    a("s_cbranch_scc0 L_l_nokswap")
    a("s_nop 1")
    a("v_permlane32_swap_b32 v36, v38")
    a("v_permlane32_swap_b32 v37, v39")
    a("s_nop 1")
    a.label("L_l_nokswap")
    a("s_lshr_b32 s60, s5, 1")
    a("s_lshl_b32 s65, s4, 2")
    a("s_add_u32 s60, s60, s65")
    a("s_lshl_b32 s60, s60, 12")
    a("s_and_b32 s65, s5, 1")
    a("s_lshl_b32 s65, s65, 11")
    a("s_add_u32 s60, s60, s65")
    a(f"s_lshl_b32 s65, s{S_LW}, 10")
    a("s_add_u32 s60, s60, s65")
    a("s_lshl_b32 s65, s3, 18")
    a("s_add_u32 s60, s60, s65")
    if WS_KV: a(f"s_add_u32 s60, s60, {WS_KV}")
    a(f"buffer_store_dwordx4 v[36:39], v{t0}, s[{S_WSSRD}:{S_WSSRD+3}], s60 offen sc1")
    a("s_branch L_l_red_done")
    a.label("L_l_dummy")
    a(f"buffer_load_dword v36, v{L_FADDR}, s[{S_WSSRD}:{S_WSSRD+3}], 0 offen sc1")
    a.label("L_l_red_done")
    a("s_waitcnt vmcnt(9)")
    a("s_barrier")
    l_dma_chunk(a, 'q', 4)
    l_dma_chunk(a, 'q', 0)
    a("s_waitcnt vmcnt(17)")
    a("s_barrier")
    l_dma_chunk(a, 'q', 6 % NSLOT)
    a("s_waitcnt vmcnt(16)")
    a("s_barrier")
    l_dma_chunk(a, 'q', 7 % NSLOT)
    a(f"s_cmp_eq_u32 s{S_LW}, 0")
    a("s_cbranch_scc0 L_l_nosig")
    a("s_mov_b64 exec, 1")
    a(f"v_mov_b32 v{t0}, 1")
    a(f"global_atomic_add v{L_DBG}, v{t0}, s[{S_DBG}:{S_DBG+1}]")
    a("s_mov_b64 exec, -1")
    a.label("L_l_nosig")
    for c in range(4, 10):
        a("s_waitcnt vmcnt(16)")
        a("s_barrier")
        l_dma_chunk(a, 'q', (c + 4) % NSLOT)
    a(f"s_cmp_eq_u32 s{S_LW}, 0")
    a("s_cbranch_scc0 L_l_kvdummy")
    a(f"global_load_dword v{L_TMP}, v{L_DBG}, s[{S_DBG}:{S_DBG+1}] sc1")
    a("s_branch L_l_kvpolled")
    a.label("L_l_kvdummy")
    a(f"buffer_load_dword v{L_TMP}, v{L_KVOFF}, s[{S_WSRD}:{S_WSRD+3}], 0 offen")
    a.label("L_l_kvpolled")
    for c in (10, 11):
        a("s_waitcnt vmcnt(17)")
        a("s_barrier")
        l_dma_chunk(a, 'q', (c + 4) % NSLOT)
    a("s_waitcnt vmcnt(16)")
    a(f"s_cmp_eq_u32 s{S_LW}, 0")
    a("s_cbranch_scc0 L_l_kvok")
    a(f"v_readfirstlane_b32 s60, v{L_TMP}")
    a("s_mov_b32 s65, 0x2000")
    a("s_nop 2")
    a("s_cmp_ge_u32 s60, 128")
    a("s_cbranch_scc1 L_l_kvok")
    a.label("L_l_kvpoll")
    a("s_sleep 32")
    a(f"global_load_dword v{L_TMP}, v{L_DBG}, s[{S_DBG}:{S_DBG+1}] sc1")
    a("s_waitcnt vmcnt(0)")
    a(f"v_readfirstlane_b32 s60, v{L_TMP}")
    a("s_nop 3")
    a("s_cmp_ge_u32 s60, 128")
    a("s_cbranch_scc1 L_l_kvok")
    a("s_sub_u32 s65, s65, 1")
    a("s_cmp_lg_u32 s65, 0")
    a("s_cbranch_scc1 L_l_kvpoll")
    a.label("L_l_kvok")
    a("s_barrier")
    l_kv_dma(a, base_imm=KVR[0])
    a("s_waitcnt vmcnt(16)")
    a("s_barrier")
    l_kv_dma(a, base_imm=KVR[1])
    a("s_waitcnt vmcnt(16)")
    a("s_barrier")
    l_kv_dma(a, base_imm=KVR[2])
    srd(a, S_WSRD, 48, 2 << 20)
    srd(a, S_XSRD, 52, WS_SIZE)
    a(f"s_lshl_b32 s60, s{S_LW}, 16")
    a(f"s_lshl_b32 s65, s3, 22")
    a(f"s_add_u32 s60, s60, s65")
    a(f"s_lshl_b32 s65, s4, 18")
    a(f"s_add_u32 s60, s60, s65")
    a(f"s_add_u32 s60, s60, {WS_O}")
    a(f"v_lshlrev_b32 v{t0}, 4, v{L}")
    a(f"v_add_u32 v{L_XOFF}, s60, v{t0}")
    a(f"s_lshl_b32 s{S_WSOFF}, s5, 18")
    a(f"s_lshl_b32 s{S_XSOFF}, s5, 13")
    a(f"s_add_u32 s{S_XSOFF}, s{S_XSOFF}, 8192")
    a(f"s_and_b32 s{S_XSOFF}, s{S_XSOFF}, 65535")
    a(f"v_lshrrev_b32 v{t1}, 1, v{L}")
    a("s_and_b32 s60, s4, 3")
    a("s_lshl_b32 s60, s60, 8")
    a(f"s_lshl_b32 s65, s{S_LW}, 6")
    a("s_add_u32 s60, s60, s65")
    a(f"v_add_u32 v{t1}, s60, v{t1}")
    a(f"v_lshlrev_b32 v{t1}, 11, v{t1}")
    a(f"v_and_b32 v{t2}, 1, v{L}")
    a(f"v_lshl_add_u32 v{t1}, v{t2}, 7, v{t1}")
    a("s_lshl_b32 s60, s5, 8")
    a(f"v_add_u32 v{t1}, s60, v{t1}")
    a("s_waitcnt vmcnt(16)")
    a("s_barrier")
    for j in range(1, 8):
        a("s_waitcnt vmcnt(8)")
        if opt("noabar", "0") != "1": a("s_barrier")
        if j <= 5:
            l_kv_dma(a, base_imm=KVR[(j - 1) % 3])
        if j == 1 and opt("wopf", "1") == "1":
            a(f"buffer_load_dword v{L_TMP}, v{t1}, s[{S_WSRD}:{S_WSRD+3}], 0 offen")
            a(f"s_mov_b32 s60, {32*2048}")
            a(f"buffer_load_dword v{L_TMP}, v{t1}, s[{S_WSRD}:{S_WSRD+3}], s60 offen")
        if j == 6:
            l_dma_w(a, 4); l_dma_w(a, 0)
        if j == 7:
            l_dma_w(a, 1)
            if opt("omb", "1") == "1":
                a(f"s_lshl_b32 s60, s{S_LW}, 12")
                a(f"s_add_u32 s60, s60, {((OS0_ + 2) % NSLOT)*SLOT + XPART}")
                a(f"v_mov_b32 v{t2}, s60")
                a(f"v_mov_b32 v{t3}, 0")
                a(f"ds_write_b32 v{t2}, v{t3}")
                a(f"ds_write_b32 v{t2}, v{t3} offset:{(((OS0_ + 4) % NSLOT) - ((OS0_ + 2) % NSLOT))*SLOT % 65536}" if False else f"v_add_u32 v{t2}, {(((OS0_ + 4) % NSLOT) - ((OS0_ + 2) % NSLOT))*SLOT}, v{t2}")
                a(f"ds_write_b32 v{t2}, v{t3}")
                a("s_movk_i32 s79, 0x5a5a")
                a("s_waitcnt lgkmcnt(0)")
    a("s_waitcnt vmcnt(0)")
    a("s_barrier")
    a(f"v_add_u32 v{L_SNAP}, 1, v{L_SNAP}")
    a(f"s_cmp_eq_u32 s{S_LW}, 0")
    a("s_cbranch_scc0 L_l_noflag")
    a(f"v_cmp_eq_u32 vcc, s5, v{L}")
    a("s_nop 4")
    a("s_mov_b64 exec, vcc")
    a(f"buffer_store_dword v{L_SNAP}, v{L_FADDR}, s[{S_WSSRD}:{S_WSSRD+3}], 0 offen sc1")
    a("s_mov_b64 exec, -1")
    a.label("L_l_noflag")
    l_dma_w(a, 2)
    TWO = opt("ostage", "1") == "2"
    OMB = ((OS0_ + 2) % NSLOT)*SLOT + XPART
    OMB2 = ((OS0_ + 4) % NSLOT)*SLOT + XPART
    def wait_flags(tag, mb, mask_lane):
        a(f"s_lshl_b32 s60, s{S_LW}, 12")
        a(f"s_add_u32 s60, s60, {mb}")
        a(f"v_mov_b32 v{t2}, s60")
        a(f"s_cmp_eq_u32 s{S_LW}, 0")
        a(f"s_cbranch_scc1 L_l_{tag}poll0")
        a.label(f"L_l_{tag}mb")
        a(f"ds_read_b32 v{t3}, v{t2}")
        a("s_waitcnt lgkmcnt(0)")
        a(f"v_readfirstlane_b32 s60, v{t3}")
        a("s_nop 3")
        a("s_cmp_eq_u32 s60, s79")
        a(f"s_cbranch_scc1 L_l_{tag}go")
        a("s_sleep 1")
        a(f"s_branch L_l_{tag}mb")
        a.label(f"L_l_{tag}poll0")
        a("s_mov_b32 s65, 0x8000")
        if mask_lane:
            a("s_add_u32 s72, s5, 1")
            a("s_and_b32 s72, s72, 7")
        a.label(f"L_l_{tag}poll")
        a(f"buffer_load_dword v{L_TMP}, v{L_FADDR}, s[{S_WSSRD}:{S_WSSRD+3}], 0 offen sc1")
        a("s_waitcnt vmcnt(0)")
        a(f"v_cmp_eq_u32 vcc, v{L_TMP}, v{L_SNAP}")
        a("s_nop 4")
        if mask_lane:
            a("s_lshr_b64 s[80:81], vcc, s72")
            a("s_bitcmp1_b32 s80, 0")
        else:
            a("s_cmp_eq_u64 vcc, -1")
        a(f"s_cbranch_scc1 L_l_{tag}set")
        a(f"s_sleep {opt('sleep','2')}")
        a("s_sub_u32 s65, s65, 1")
        a("s_cmp_lg_u32 s65, 0")
        a(f"s_cbranch_scc1 L_l_{tag}poll")
        a.label(f"L_l_{tag}set")
        a(f"v_mov_b32 v{t3}, s79")
        for lw in range(1, 4):
            a(f"ds_write_b32 v{t2}, v{t3} offset:{4096*lw}")
        a("s_waitcnt lgkmcnt(0)")
        a.label(f"L_l_{tag}go")
    if TWO:
        wait_flags("o1", OMB, True)
        for c in (2, 3):
            l_dma_x(a, 'o', (4 + c) % NSLOT)
        a("s_waitcnt vmcnt(0)")
        a("s_barrier")
        wait_flags("o2", OMB2, False)
        l_dma_x(a, 'o', (4 + 4) % NSLOT)
        l_dma_w(a, (4 + 4) % NSLOT)
    else:
        wait_flags("o1", OMB, False)
        for c in (2, 3, 4):
            l_dma_x(a, 'o', (4 + c) % NSLOT)
        l_dma_w(a, (4 + 4) % NSLOT)
        a("s_waitcnt vmcnt(8)")
        a("s_barrier")
    l_dma_chunk(a, 'o', (4 + 5) % NSLOT)
    l_dma_chunk(a, 'o', (4 + 6) % NSLOT)
    for c in range(3, 12):
        a("s_waitcnt vmcnt(16)")
        a("s_barrier")
        l_dma_chunk(a, 'o', (4 + c + 4) % NSLOT)
    a("s_waitcnt vmcnt(16)")
    a("s_barrier")
    a("s_waitcnt vmcnt(8)")
    a("s_barrier")
    a("s_waitcnt vmcnt(0)")
    a("s_barrier")
    if PROF:
        stamp(a, 8)
        stamp_flush(a)
    a("s_endpgm")

def gen_main(a):
    name = KNAME
    a(f".globl {name}\n.p2align 8\n.type {name},@function")
    a.label(name)
    a("s_cmp_ge_u32 s2, 256")
    a("s_cbranch_scc1 L_end")
    if opt("perm", "0") == "1":
        a("s_lshl_b32 s3, s2, 3")
        a("s_lshr_b32 s2, s2, 5")
        a("s_or_b32 s2, s2, s3")
        a("s_and_b32 s2, s2, 255")
    a("s_and_b32 s4, s2, 7")
    a("s_lshr_b32 s5, s2, 3")
    a("s_lshr_b32 s3, s4, 2")
    a("s_and_b32 s4, s4, 3")
    a("s_lshl_b32 s4, s4, 2")
    a("s_lshr_b32 s6, s5, 3")
    a("s_add_u32 s4, s4, s6")
    a("s_and_b32 s5, s5, 7")
    load_args(a, 3)
    a("v_lshrrev_b32 v1, 6, v0")
    a(f"v_and_b32 v{V_LANE}, 63, v0")
    a(f"v_readfirstlane_b32 s{S_W}, v1")
    srd(a, S_WSSRD, 52, WS_SIZE)
    srd(a, S_XSRD, 40, 4 << 20)
    srd(a, S_WSRD, 42, 2 << 20)
    a("s_and_b32 s60, s5, 1")
    a("s_cmp_eq_u32 s60, 0")
    a("s_cselect_b32 s54, s44, s46")
    a("s_cselect_b32 s55, s45, s47")
    srd(a, S_KWSRD, 54, 65536)
    srd(a, S_OUTSRD, 50, 8 << 20)
    a("s_lshl_b32 s7, s4, 7")
    stamp_init(a); stamp(a, 0)
    if opt("codepf", "0") == "1":
        lab = a.newlabel("cpf")
        a(f"s_cmp_eq_u32 s{S_W}, 7")
        a(f"s_cbranch_scc0 {lab}")
        a("s_getpc_b64 s[80:81]")
        a(f"v_lshlrev_b32 v4, 7, v{V_LANE}")
        for i in range(int(opt("codekb", "28")) // 8):
            a(f"global_load_dword v5, v4, s[80:81]")
            a(f"v_add_u32 v4, 8192, v4")
        a.label(lab)
    if opt("lfirst", "1") == "1":
        a(f"s_cmp_lt_u32 s{S_W}, 8")
        a("s_cbranch_scc1 L_compute")
        gen_loader(a)
        a.label("L_compute")
        gen_compute(a)
    else:
        a(f"s_cmp_ge_u32 s{S_W}, 8")
        a("s_cbranch_scc1 L_loader")
        gen_compute(a)
        a.label("L_loader")
        gen_loader(a)
    a.label("L_end")
    a("s_endpgm")
    return name, NVGPR, LDS_MAIN

DOC = """;
"""
def main(out_path):
    ref = open("cdna_kernels/" + NAME + ".s.ref").read().split("\n")
    header = [l for l in ref if l.startswith(";") and "@launch" not in l and "Override" not in l and "grid=ceil" not in l]
    a = Asm()
    name, vg, lds = gen_main(a)
    txt = "\n".join(header) + "\n"
    txt += f"; @launch grid=(256,1,1) block=(768,1,1) lds={lds}\n"
    txt += DOC
    txt += '.amdgcn_target "amdgcn-amd-amdhsa--gfx950"\n.text\n'
    txt += a.text()
    txt += '.section .rodata,"a"\n'
    txt += ".p2align 6\n" + kernel_desc(name, vg)
    open(out_path, "w").write(txt)
    nb = sum(1 for l in a.lines if l.strip() == "s_barrier")
    print("static barriers:", nb)

if __name__ == "__main__":
    if "--prof" in sys.argv:
        PROF = True
        sys.argv.remove("--prof")
    main(sys.argv[1] if len(sys.argv) > 1 else "cdna_kernels/" + NAME + ".s")
```

```python
import sys, math, os, struct
sys.path.insert(0, __file__.rsplit("/", 1)[0])
from asmlib import *

NAME = "concat_heads__grouped_kv_mqa__grouped_kv_mqa__prompt"
KNAME = NAME + "_kernel"
import os as _os
_O = dict(kv.split("=") for kv in _os.environ.get("GENOPT", "").split(",") if "=" in kv)
WS_BASE = int(_O.get("wsbase", "0")) << 20
WS_KV = WS_BASE
WS_O = WS_BASE + (1 << 20)
WS_FLAG = WS_BASE + (10 << 20)
WS_SIZE = 268435456
CSCALE = math.log2(math.e) / math.sqrt(32.0)
def fbits(x): return "0x%08x" % struct.unpack("<I", struct.pack("<f", x))[0]
OPT = dict(kv.split("=") for kv in os.environ.get("GENOPT", "").split(",") if "=" in kv)
def opt(k, d): return OPT.get(k, d)

OS0_ = 4
SLOT = 32768
NSLOT = 5
XPART = 16384
KVR = [32768, 65536, 98304]
PART = 131072
XSTG = 32768
WSTG0 = 98304
LDS_MAIN = 163840
NVGPR = 168

PROF = False
WS_PROF = 12 << 20
V_PROF = 167
S_WSSRD = 56
V_LANE = 2
def stamp(a, idx):
    if not PROF: return
    a("s_memtime s[92:93]")
    a("s_memrealtime s[94:95]")
    a("s_waitcnt lgkmcnt(0)")
    a(f"v_writelane_b32 v{V_PROF}, s92, {idx}")
    a(f"v_writelane_b32 v{V_PROF}, s94, {idx+32}")
def stamp_init(a):
    if not PROF: return
    a(f"v_mov_b32 v{V_PROF}, 0")
def stamp_flush(a):
    if not PROF: return
    a(f"s_mul_i32 s96, s2, 12")
    a(f"s_add_u32 s96, s96, s6")
    a(f"s_lshl_b32 s96, s96, 8")
    a(f"s_add_u32 s96, s96, {WS_PROF + (1<<20)}")
    a(f"v_lshlrev_b32 v{V_PROF-1}, 2, v{V_LANE}")
    a(f"buffer_store_dword v{V_PROF}, v{V_PROF-1}, s[{S_WSSRD}:{S_WSSRD+3}], s96 offen")
    a("s_waitcnt vmcnt(0)")

A_KVADDR = 1
A_SEL = 8
A_IDX = 12
A_Q = [16, 24]
A_O = [32, 48]
A_L = [64, 68]
A_S = [72, 88]
A_P = [104, 112]
A_K = [120, 128]
A_V = [136, 144]
A_T = 152
G_ACC = 32
G_AF = 72
G_BF = 104
G_TMP = 124
L_WOFF = 8
L_XOFF = 12
L_KVOFF = 16
L_DBG = 17
L_TMP = 18
L_SNAP = 19
L_FADDR = 20
L_T = 24
S_XSRD = 8
S_WSRD = 12
S_DBG = 36
S_W = 6
S_LW = 62
S_M0W = 63
S_M0X = 64
S_WSOFF = 66
S_XSOFF = 67
S_CNT = 69
S_T0 = 70
S_T1 = 71
S_KVSOFF = 73
S_OUTSRD = 84
S_KWSRD = 88
S_OOFF = 61
XFLAG = "nt" if opt("xnt", "0") == "1" else ""

def load_args(a, p_sgpr):
    a("s_load_dwordx16 s[16:31], s[0:1], 0")
    a("s_load_dwordx4 s[32:35], s[0:1], 64")
    a("s_load_dwordx2 s[50:51], s[0:1], 80")
    a(f"s_load_dwordx2 s[{S_DBG}:{S_DBG+1}], s[0:1], 88")
    a("s_load_dwordx2 s[52:53], s[0:1], 96")
    a("s_waitcnt lgkmcnt(0)")
    a(f"s_cmp_eq_u32 s{p_sgpr}, 0")
    for i in range(5):
        for h in range(2):
            a(f"s_cselect_b32 s{40+2*i+h}, s{16+2*i+h}, s{26+2*i+h}")

G_A = 128
G_B = 132
S_CUR = 75
S_DELTA = 76
GPRIO = opt("gprio", "1") == "1"
def accreg(nb, qb): return G_ACC + 4*(2*nb + qb)
def gemm_addr(a, mode, first_slot):
    lane = V_LANE
    t0, t1, t2, t3 = G_TMP, G_TMP+1, G_TMP+2, G_TMP+3
    a(f"v_bfe_u32 v{t0}, v{lane}, 2, 2")
    a(f"v_lshrrev_b32 v{t1}, 4, v{lane}")
    if mode == 'q':
        a(f"v_lshl_add_u32 v{t2}, v{t1}, 3, v{t0}")
    else:
        a(f"v_lshrrev_b32 v{t2}, 1, v{t1}")
        a(f"v_lshlrev_b32 v{t2}, 4, v{t2}")
        a(f"v_and_b32 v{t3}, 1, v{t1}")
        a(f"v_lshl_add_u32 v{t2}, v{t3}, 2, v{t2}")
        a(f"v_add_u32 v{t2}, v{t2}, v{t0}")
    a(f"v_lshlrev_b32 v{t2}, 8, v{t2}")
    a(f"v_and_b32 v{t3}, 3, v{lane}")
    a(f"v_lshl_add_u32 v{t2}, v{t3}, 3, v{t2}")
    a(f"v_lshlrev_b32 v{t0}, 1, v{t0}")
    a(f"v_and_b32 v{t1}, 1, v{t1}")
    a(f"v_xor_b32 v{t0}, v{t0}, v{t1}")
    a(f"s_lshr_b32 s{S_T0}, s{S_W}, 2")
    a(f"s_lshl_b32 s{S_T0}, s{S_T0}, 2")
    a(f"v_xor_b32 v{t0}, s{S_T0}, v{t0}")
    if first_slot: a(f"v_add_u32 v{t2}, {first_slot*SLOT}, v{t2}")
    for nb in range(4):
        a(f"v_xor_b32 v{t1}, {nb}, v{t0}")
        a(f"v_lshl_add_u32 v{G_A+nb}, v{t1}, 5, v{t2}")
    if mode == 'q':
        a(f"s_and_b32 s{S_T0}, s{S_W}, 3")
        a(f"s_lshl_b32 s{S_T0}, s{S_T0}, 5")
        a(f"v_and_b32 v{t0}, 15, v{lane}")
        a(f"v_add_u32 v{t0}, s{S_T0}, v{t0}")
        a(f"v_bfe_u32 v{t1}, v{t0}, 1, 3")
        a(f"v_lshrrev_b32 v{t2}, 4, v{lane}")
        a(f"v_xor_b32 v{t1}, v{t1}, v{t2}")
        a(f"v_lshlrev_b32 v{t0}, 7, v{t0}")
        a(f"v_add_u32 v{t0}, {XPART + first_slot*SLOT}, v{t0}")
        a(f"v_lshl_add_u32 v{G_B}, v{t1}, 4, v{t0}")
        a(f"v_xor_b32 v{G_B+1}, 64, v{G_B}")
    else:
        a(f"s_and_b32 s{S_T0}, s{S_W}, 3")
        a(f"s_lshl_b32 s{S_T0}, s{S_T0}, 12")
        a(f"s_add_u32 s{S_T0}, s{S_T0}, {XPART + first_slot*SLOT}")
        a(f"v_and_b32 v{t0}, 15, v{lane}")
        a(f"v_lshlrev_b32 v{t0}, 4, v{t0}")
        a(f"v_lshrrev_b32 v{t1}, 5, v{lane}")
        a(f"v_lshl_add_u32 v{t0}, v{t1}, 10, v{t0}")
        a(f"v_bfe_u32 v{t1}, v{lane}, 4, 1")
        a(f"v_lshl_add_u32 v{t0}, v{t1}, 9, v{t0}")
        a(f"v_add_u32 v{G_B}, s{S_T0}, v{t0}")
    a(f"s_mov_b32 s{S_CUR}, {first_slot*SLOT}")

def gemm_read_list(mode, st):
    L = []
    af = G_AF + 16*st; bf = G_BF + 8*st
    for qb in range(2):
        if mode == 'q': L.append(f"ds_read_b128 {vr(bf+4*qb,4)}, v{G_B+st} offset:{qb*2048}")
        else: L.append(f"ds_read_b128 {vr(bf+4*qb,4)}, v{G_B} offset:{st*2048 + qb*256}")
    second = 1024 if mode == 'q' else 2048
    for nb in range(4):
        L.append(f"ds_read_b64_tr_b16 {vr(af+4*nb,2)}, v{G_A+nb} offset:{st*8192}")
        L.append(f"ds_read_b64_tr_b16 {vr(af+4*nb+2,2)}, v{G_A+(nb^1)} offset:{st*8192 + second}")
    return L

def gemm_move(a, mode, nslot):
    a(f"s_add_u32 s{S_T0}, s{S_CUR}, {SLOT}")
    a(f"s_cmp_eq_u32 s{S_T0}, {SLOT*nslot}")
    a(f"s_cselect_b32 s{S_T0}, 0, s{S_T0}")
    a(f"s_sub_u32 s{S_DELTA}, s{S_T0}, s{S_CUR}")
    a(f"s_mov_b32 s{S_CUR}, s{S_T0}")
    for nb in range(4): a(f"v_add_u32 v{G_A+nb}, s{S_DELTA}, v{G_A+nb}")
    for j in range(2 if mode == 'q' else 1): a(f"v_add_u32 v{G_B+j}, s{S_DELTA}, v{G_B+j}")

def c_gemm_chunk(a, mode, barrier, next_reads):
    if barrier:
        a("s_barrier")
    for st in range(2):
        if GPRIO: a(f"s_setprio {3 - 2*st}")
        a("s_waitcnt lgkmcnt(0)")
        if st == 0: rl = gemm_read_list(mode, 1)
        else: rl = gemm_read_list(mode, 0) if next_reads else []
        af = G_AF + 16*st; bf = G_BF + 8*st
        k = 0
        for nb in range(4):
            for qb in range(2):
                acc = accreg(nb, qb)
                a(f"v_mfma_f32_16x16x32_bf16 {vr(acc,4)}, {vr(af+4*nb,4)}, {vr(bf+4*qb,4)}, {vr(acc,4)}")
                n = 2 if (2*nb + qb) in (0, 2) else 1
                for _ in range(n):
                    if k < len(rl): a(rl[k]); k += 1
        while k < len(rl): a(rl[k]); k += 1
        if st == 0 and next_reads:
            gemm_move(a, mode, 5)

def gemm_first_reads(a, mode):
    for r in gemm_read_list(mode, 0): a(r)

def c_gemm(a, mode, tag, first_slot):
    for i in range(32):
        a(f"v_mov_b32 v{G_ACC+i}, 0")
    for c in range(3):
        a("s_barrier")
        gemm_first_reads(a, mode)
        c_gemm_chunk(a, mode, False, False)
        gemm_move(a, mode, 5)
    a("s_barrier")
    gemm_first_reads(a, mode)
    c_gemm_chunk(a, mode, False, True)
    a(f"s_mov_b32 s{S_CNT}, 11")
    a(".p2align 6")
    a.label(f"L_{tag}_loop")
    c_gemm_chunk(a, mode, True, True)
    a(f"s_sub_u32 s{S_CNT}, s{S_CNT}, 1")
    a(f"s_cmp_lg_u32 s{S_CNT}, 0")
    a(f"s_cbranch_scc1 L_{tag}_loop")
    c_gemm_chunk(a, mode, False, False)
    if GPRIO: a("s_setprio 0")

def attn_step(a, t, r, read, off, do_qk=True):
    S = A_S[r]; Sn = A_S[r ^ 1]
    P = A_P[r]; Pp = A_P[r ^ 1]
    tn = t if r == 0 else t + 1
    Kn = A_K[tn & 1]; Qn = A_Q[r ^ 1]
    tp = t - 1 if r == 0 else t
    Vp = A_V[tp & 1]; Op = A_O[r ^ 1]; Lp = A_L[r ^ 1]
    E = lambda i: a(f"v_exp_f32 v{S+i}, v{S+i}")
    C = lambda i: a(f"v_cvt_pk_bf16_f32 v{P+i//2}, v{S+i}, v{S+i+1}")
    def RD(i):
        if read == 'K': a(f"ds_read_b128 {vr(A_K[(t+1)&1]+4*i,4)}, v{A_KVADDR} offset:{off+1024*i}")
        if read == 'V': a(f"ds_read_b128 {vr(A_V[(t+1)&1]+4*i,4)}, v{A_KVADDR} offset:{off+2048+1024*i}")
    qs = opt("qswap", "0") == "1"
    if do_qk: a(f"v_mfma_f32_32x32x16_bf16 {vr(Sn,16)}, {vr(Qn if qs else Kn,4)}, {vr(Kn if qs else Qn,4)}, 0")
    RD(0)
    E(0); E(1); E(2); E(3)
    if do_qk: a(f"v_mfma_f32_32x32x16_bf16 {vr(Sn,16)}, {vr((Qn if qs else Kn)+4,4)}, {vr((Kn if qs else Qn)+4,4)}, {vr(Sn,16)}")
    RD(1)
    E(4); E(5); E(6); C(0); C(2)
    def PV(k):
        if opt("pswap", "0") == "1": a(f"v_mfma_f32_32x32x16_bf16 {vr(Op,16)}, {vr(Pp+4*k,4)}, {vr(Vp+4*k,4)}, {vr(Op,16)}")
        else: a(f"v_mfma_f32_32x32x16_bf16 {vr(Op,16)}, {vr(Vp+4*k,4)}, {vr(Pp+4*k,4)}, {vr(Op,16)}")
    PV(0)
    E(7); E(8); E(9); C(4); C(6)
    PV(1)
    E(10); E(11); E(12); C(8); C(10)
    if opt("nosum", "0") != "1": a(f"v_smfmac_f32_16x16x64_bf16 {vr(Lp,4)}, {vr(A_SEL,4)}, {vr(Pp,8)}, v{A_IDX}")
    E(13); E(14); E(15); C(12); C(14)

def slow_path(a, r):
    Q = A_Q[r]; O = A_O[r]; L = A_L[r]
    S = A_S[0]; NM = A_S[1]; P = A_P[0]; K = A_K[0]; V = A_V[0]
    M = A_T + 4; ADDR = A_T + 5
    l1 = a.newlabel("slow1"); l2 = a.newlabel("slow2")
    a(f"v_lshlrev_b32 v{ADDR}, 4, v{V_LANE}")
    a(f"s_lshl_b32 s60, s3, 18")
    if WS_KV: a(f"s_add_u32 s60, s60, {WS_KV}")
    a(f"s_mov_b32 s62, 64")
    a(f"v_mov_b32 v{M}, 0xff800000")
    a.label(l1)
    a(f"buffer_load_dwordx4 {vr(K,4)}, v{ADDR}, s[{S_WSSRD}:{S_WSSRD+3}], s60 offen sc1")
    a(f"buffer_load_dwordx4 {vr(K+4,4)}, v{ADDR}, s[{S_WSSRD}:{S_WSSRD+3}], s60 offen offset:1024 sc1")
    a("s_waitcnt vmcnt(0)")
    a(f"v_mfma_f32_32x32x16_bf16 {vr(S,16)}, {vr(K,4)}, {vr(Q,4)}, 0")
    a(f"v_mfma_f32_32x32x16_bf16 {vr(S,16)}, {vr(K+4,4)}, {vr(Q+4,4)}, {vr(S,16)}")
    a.nop(16)
    for i in range(8):
        a(f"v_max3_f32 v{M}, v{S+2*i}, v{S+2*i+1}, v{M}")
    a("s_add_u32 s60, s60, 4096")
    a("s_sub_u32 s62, s62, 1")
    a("s_cmp_lg_u32 s62, 0")
    a(f"s_cbranch_scc1 {l1}")
    a(f"v_mov_b32 v{M+2}, v{M}")
    a("s_nop 1")
    a(f"v_permlane32_swap_b32 v{M+2}, v{M}")
    a("s_nop 1")
    a(f"v_max_f32 v{M}, v{M}, v{M+2}")
    a(f"v_sub_f32 v{M}, 0, v{M}")
    for i in range(16): a(f"v_mov_b32 v{NM+i}, v{M}")
    for i in range(16): a(f"v_mov_b32 v{O+i}, 0")
    for i in range(4): a(f"v_mov_b32 v{L+i}, 0")
    a(f"s_lshl_b32 s60, s3, 18")
    if WS_KV: a(f"s_add_u32 s60, s60, {WS_KV}")
    a(f"s_mov_b32 s62, 64")
    a.label(l2)
    a(f"buffer_load_dwordx4 {vr(K,4)}, v{ADDR}, s[{S_WSSRD}:{S_WSSRD+3}], s60 offen sc1")
    a(f"buffer_load_dwordx4 {vr(K+4,4)}, v{ADDR}, s[{S_WSSRD}:{S_WSSRD+3}], s60 offen offset:1024 sc1")
    a(f"buffer_load_dwordx4 {vr(V,4)}, v{ADDR}, s[{S_WSSRD}:{S_WSSRD+3}], s60 offen offset:2048 sc1")
    a(f"buffer_load_dwordx4 {vr(V+4,4)}, v{ADDR}, s[{S_WSSRD}:{S_WSSRD+3}], s60 offen offset:3072 sc1")
    a("s_waitcnt vmcnt(0)")
    a(f"v_mfma_f32_32x32x16_bf16 {vr(S,16)}, {vr(K,4)}, {vr(Q,4)}, {vr(NM,16)}")
    a(f"v_mfma_f32_32x32x16_bf16 {vr(S,16)}, {vr(K+4,4)}, {vr(Q+4,4)}, {vr(S,16)}")
    a.nop(16)
    for i in range(16): a(f"v_exp_f32 v{S+i}, v{S+i}")
    a("s_nop 1")
    for i in range(8): a(f"v_cvt_pk_bf16_f32 v{P+i}, v{S+2*i}, v{S+2*i+1}")
    a("s_nop 2")
    a(f"v_mfma_f32_32x32x16_bf16 {vr(O,16)}, {vr(V,4)}, {vr(P,4)}, {vr(O,16)}")
    a(f"v_mfma_f32_32x32x16_bf16 {vr(O,16)}, {vr(V+4,4)}, {vr(P+4,4)}, {vr(O,16)}")
    a(f"v_smfmac_f32_16x16x64_bf16 {vr(L,4)}, {vr(A_SEL,4)}, {vr(P,8)}, v{A_IDX}")
    a.nop(16)
    a("s_add_u32 s60, s60, 4096")
    a("s_sub_u32 s62, s62, 1")
    a("s_cmp_lg_u32 s62, 0")
    a(f"s_cbranch_scc1 {l2}")

def gen_compute(a):
    a(f"v_and_b32 v{A_T}, 6, v{V_LANE}")
    a(f"v_mov_b32 v{A_T+1}, 0x3f803f80")
    a(f"v_cmp_eq_u32 vcc, 0, v{A_T}")
    a("s_nop 1")
    a(f"v_cndmask_b32 v{A_SEL}, 0, v{A_T+1}, vcc")
    a(f"v_cndmask_b32 v{A_SEL+1}, 0, v{A_T+1}, vcc")
    a(f"v_cmp_eq_u32 vcc, 4, v{A_T}")
    a("s_nop 1")
    a(f"v_cndmask_b32 v{A_SEL+2}, 0, v{A_T+1}, vcc")
    a(f"v_cndmask_b32 v{A_SEL+3}, 0, v{A_T+1}, vcc")
    a(f"v_and_b32 v{A_T}, 1, v{V_LANE}")
    a(f"v_mov_b32 v{A_T+1}, 0x4444")
    a(f"v_mov_b32 v{A_T+2}, 0xeeee")
    a(f"v_cmp_eq_u32 vcc, 0, v{A_T}")
    a("s_nop 1")
    a(f"v_cndmask_b32 v{A_IDX}, v{A_T+2}, v{A_T+1}, vcc")
    a(f"s_lshl_b32 s{S_OOFF}, s3, 22")
    a(f"s_add_u32 s{S_OOFF}, s{S_OOFF}, {WS_O}")
    a("s_lshl_b32 s60, s4, 2")
    a(f"s_and_b32 s62, s{S_W}, 3")
    a("s_add_u32 s60, s60, s62")
    a("s_lshl_b32 s60, s60, 16")
    a(f"s_add_u32 s{S_OOFF}, s{S_OOFF}, s60")
    a("s_lshl_b32 s60, s5, 2")
    a(f"s_lshr_b32 s62, s{S_W}, 2")
    a("s_lshl_b32 s62, s62, 1")
    a("s_add_u32 s60, s60, s62")
    a("s_lshl_b32 s60, s60, 11")
    a(f"s_add_u32 s{S_OOFF}, s{S_OOFF}, s60")
    for i in range(8): a(f"v_mov_b32 v{A_V[1]+i}, 0")
    KX = 32; KACC = 64; KW = 80
    a(f"v_and_b32 v20, 31, v{V_LANE}")
    a(f"v_lshrrev_b32 v21, 5, v{V_LANE}")
    a(f"v_and_b32 v22, 15, v{V_LANE}")
    a(f"s_lshl_b32 s60, s{S_W}, 13")
    a(f"s_add_u32 s60, s60, {XSTG}")
    a("v_lshlrev_b32 v20, 8, v20")
    a("v_add_u32 v20, s60, v20")
    for s in range(8):
        a(f"v_or_b32 v23, {2*s}, v21")
        a("v_xor_b32 v23, v23, v22")
        a(f"v_lshl_add_u32 v{24+s}, v23, 4, v20")
    a(f"s_lshl_b32 s60, s{S_W}, 13")
    a(f"s_add_u32 s62, s60, {WSTG0}")
    a(f"v_bfe_u32 v16, v{V_LANE}, 2, 2")
    a("v_lshl_add_u32 v16, v21, 3, v16")
    a("v_lshlrev_b32 v16, 6, v16")
    a(f"v_bfe_u32 v17, v{V_LANE}, 4, 1")
    a("v_lshl_add_u32 v16, v17, 5, v16")
    a(f"v_and_b32 v17, 3, v{V_LANE}")
    a("v_lshl_add_u32 v16, v17, 3, v16")
    a("v_add_u32 v16, s62, v16")
    for i in range(16):
        a(f"v_mov_b32 v{KACC+i}, 0")
    gemm_addr(a, 'q', 0)
    a(f"v_lshlrev_b32 v18, 4, v{V_LANE}")
    a(f"s_lshl_b32 s60, s{S_W}, 12")
    a(f"s_add_u32 s60, s60, {PART}")
    a("v_add_u32 v19, s60, v18")
    stamp(a, 9)
    a("s_barrier")
    stamp(a, 10)
    for s in range(8):
        a(f"ds_read_b128 {vr(KX+4*s,4)}, v{24+s}")
        a(f"ds_read_b64_tr_b16 {vr(KW+4*s,2)}, v16 offset:{1024*s}")
        a(f"ds_read_b64_tr_b16 {vr(KW+4*s+2,2)}, v16 offset:{1024*s+256}")
        if s in (1, 3, 5): a("s_waitcnt lgkmcnt(6)")
    a("s_and_b32 s60, s5, 1")
    a("s_cmp_eq_u32 s60, 0")
    a("s_waitcnt lgkmcnt(0)")
    a("s_barrier")
    if PROF:
        a("s_cselect_b32 s97, 1, 0")
        stamp(a, 11)
        a("s_cmp_eq_u32 s97, 1")
    a("s_cbranch_scc0 L_kv_isv")
    for s in range(8):
        a(f"v_mfma_f32_32x32x16_bf16 {vr(KACC,16)}, {vr(KW+4*s,4)}, {vr(KX+4*s,4)}, {vr(KACC,16)}")
    a("s_branch L_kv_red")
    a.label("L_kv_isv")
    for s in range(8):
        a(f"v_mfma_f32_32x32x16_bf16 {vr(KACC,16)}, {vr(KX+4*s,4)}, {vr(KW+4*s,4)}, {vr(KACC,16)}")
    a.label("L_kv_red")
    a.nop(16)
    for q in range(4):
        a(f"ds_write_b128 v19, {vr(KACC+4*q,4)} offset:{1024*q}")
    a("s_waitcnt lgkmcnt(0)")
    a("s_barrier")
    stamp(a, 1)
    for r in range(2):
        for i in range(4): a(f"v_mov_b32 v{A_L[r]+i}, 0")
    c_gemm(a, 'q', "q", 0)
    stamp(a, 2)
    a.nop(8)
    for hd in range(2):
        for i in range(2):
            nb = 2*hd + i
            for qb in range(2):
                for d in range(2):
                    a(f"v_cvt_pk_bf16_f32 v{A_Q[hd]+4*i+2*qb+d}, v{accreg(nb,qb)+2*d}, v{accreg(nb,qb)+2*d+1}")
    a("s_nop 1")
    for hd in range(2):
        for i in range(2):
            b = A_Q[hd] + 4*i
            a(f"v_permlane16_swap_b32 v{b}, v{b+2}")
            a(f"v_permlane16_swap_b32 v{b+1}, v{b+3}")
    a("s_barrier")
    a(f"v_lshlrev_b32 v{A_KVADDR}, 4, v{V_LANE}")
    a(f"v_add_u32 v{A_KVADDR}, {KVR[0]}, v{A_KVADDR}")
    for i in range(2):
        a(f"ds_read_b128 {vr(A_K[0]+4*i,4)}, v{A_KVADDR} offset:{1024*i}")
    for i in range(2):
        a(f"ds_read_b128 {vr(A_V[0]+4*i,4)}, v{A_KVADDR} offset:{2048+1024*i}")
    for r in range(2):
        for i in range(16): a(f"v_mov_b32 v{A_O[r]+i}, 0")
    for i in range(8): a(f"v_mov_b32 v{A_P[1]+i}, 0")
    a("s_waitcnt lgkmcnt(0)")
    a(f"v_mfma_f32_32x32x16_bf16 {vr(A_S[0],16)}, {vr(A_K[0],4)}, {vr(A_Q[0],4)}, 0")
    a(f"v_mfma_f32_32x32x16_bf16 {vr(A_S[0],16)}, {vr(A_K[0]+4,4)}, {vr(A_Q[0]+4,4)}, {vr(A_S[0],16)}")
    a(f"s_mov_b32 s75, {KVR[0]}")
    a(f"s_mov_b32 s76, {KVR[1]}")
    a(f"s_mov_b32 s77, {KVR[2]}")
    a(f"s_mov_b32 s{S_CNT}, 0")
    a.nop(8)
    stamp(a, 3)
    a("s_branch L_att_entry")
    a(".p2align 6")
    a.label("L_att_loop")
    a("s_waitcnt lgkmcnt(0)")
    if opt("noabar", "0") != "1": a("s_barrier")
    a("s_mov_b32 s60, s75")
    a("s_mov_b32 s75, s76")
    a("s_mov_b32 s76, s77")
    a("s_mov_b32 s77, s60")
    a(f"v_lshlrev_b32 v{A_KVADDR}, 4, v{V_LANE}")
    a(f"v_add_u32 v{A_KVADDR}, s75, v{A_KVADDR}")
    for i in range(8):
        t = i - 1
        if i == 1:
            a.label("L_att_entry")
        for r in range(2):
            if r == 1 and opt("nolw", "0") != "1":
                a("s_waitcnt lgkmcnt(0)")
            ap = opt("aprio", "1")
            if ap == "1" and r == 0 and i % 2 == 0: a(f"s_setprio {3 - i//2}")
            if ap == "2" and r == 0 and i % 4 == 0: a(f"s_setprio {1 - i//4}")
            if ap == "3" and r == 0: a(f"s_setprio {3 - (i % 4)}")
            attn_step(a, t & 1 if t >= 0 else 1, r, 'K' if r == 0 else 'V', i*4096)
    a(f"s_add_u32 s{S_CNT}, s{S_CNT}, 1")
    a(f"s_cmp_lt_u32 s{S_CNT}, 8")
    a("s_cbranch_scc1 L_att_loop")
    attn_step(a, 1, 0, None, 0)
    a("s_waitcnt lgkmcnt(0)")
    attn_step(a, 1, 1, None, 0, do_qk=False)
    a("s_nop 1")
    Vp = A_V[1]; Pp = A_P[1]
    a(f"v_mfma_f32_32x32x16_bf16 {vr(A_O[1],16)}, {vr(Vp,4)}, {vr(Pp,4)}, {vr(A_O[1],16)}")
    a(f"v_mfma_f32_32x32x16_bf16 {vr(A_O[1],16)}, {vr(Vp+4,4)}, {vr(Pp+4,4)}, {vr(A_O[1],16)}")
    a(f"v_smfmac_f32_16x16x64_bf16 {vr(A_L[1],4)}, {vr(A_SEL,4)}, {vr(Pp,8)}, v{A_IDX}")
    stamp(a, 4)
    a.nop(16)
    a(f"s_mov_b32 s78, {fbits(2.0**-64)}")
    a(f"s_mov_b32 s79, {fbits(2.0**64)}")
    for r in range(2):
        ok = a.newlabel("rb_ok")
        a(f"v_add_f32 v{A_T}, v{A_L[r]}, v{A_L[r]+1}")
        a(f"v_mov_b32 v{A_T+3}, 0")
        for i in range(16):
            a(f"v_fma_f32 v{A_T+3}, v{A_O[r]+i}, 0, v{A_T+3}")
        a(f"v_cmp_le_f32 vcc, s78, v{A_T}")
        a(f"v_cmp_ge_f32 s[80:81], s79, v{A_T}")
        a(f"v_cmp_o_f32 s[82:83], v{A_T+3}, v{A_T+3}")
        a("s_nop 4")
        a("s_and_b64 s[80:81], s[80:81], vcc")
        a("s_and_b64 s[80:81], s[80:81], s[82:83]")
        a("s_cmp_eq_u64 s[80:81], -1")
        if opt("forceslow", "0") == "1": a("s_cmp_eq_u32 s3, 77")
        a(f"s_cbranch_scc1 {ok}")
        slow_path(a, r)
        a(f"v_add_f32 v{A_T}, v{A_L[r]}, v{A_L[r]+1}")
        a.label(ok)
        a(f"v_rcp_f32 v{A_T+1}, v{A_T}")
        a("s_nop 0")
        for i in range(16):
            a(f"v_mul_f32 v{A_O[r]+i}, v{A_T+1}, v{A_O[r]+i}")
    a(f"v_lshlrev_b32 v{A_T+2}, 4, v{V_LANE}")
    for r in range(2):
        for d in range(8):
            a(f"v_cvt_pk_bf16_f32 v{A_S[r]+d}, v{A_O[r]+2*d}, v{A_O[r]+2*d+1}")
        a(f"buffer_store_dwordx4 {vr(A_S[r],4)}, v{A_T+2}, s[{S_WSSRD}:{S_WSSRD+3}], s{S_OOFF} offen offset:{2048*r} sc1")
        a(f"buffer_store_dwordx4 {vr(A_S[r]+4,4)}, v{A_T+2}, s[{S_WSSRD}:{S_WSSRD+3}], s{S_OOFF} offen offset:{2048*r+1024} sc1")
    a(f"s_lshr_b32 s60, s{S_W}, 2")
    a("s_cmp_eq_u32 s60, 0")
    a(f"s_cselect_b32 s60, {4*SLOT}, 0")
    a(f"s_add_u32 s60, s60, {XPART}")
    a(f"s_and_b32 s62, s{S_W}, 3")
    a("s_lshl_b32 s62, s62, 12")
    a("s_add_u32 s60, s60, s62")
    a(f"v_add_u32 v{A_T+3}, s60, v{A_T+2}")
    for r in range(2):
        for i in range(2):
            a(f"ds_write_b128 v{A_T+3}, {vr(A_S[r]+4*i,4)} offset:{r*2048 + i*1024}")
    gemm_addr(a, 'o', 4)
    for i in range(32):
        a(f"v_mov_b32 v{G_ACC+i}, 0")
    a("s_waitcnt vmcnt(0) lgkmcnt(0)")
    a("s_barrier")
    stamp(a, 5)
    gemm_first_reads(a, 'o')
    c_gemm_chunk(a, 'o', False, True)
    c_gemm_chunk(a, 'o', False, False)
    gemm_move(a, 'o', 5)
    a("s_barrier")
    stamp(a, 6)
    gemm_first_reads(a, 'o')
    c_gemm_chunk(a, 'o', False, True)
    a(f"s_mov_b32 s{S_CNT}, 12")
    a(".p2align 6")
    a.label("L_o_loop")
    c_gemm_chunk(a, 'o', True, True)
    a(f"s_sub_u32 s{S_CNT}, s{S_CNT}, 1")
    a(f"s_cmp_lg_u32 s{S_CNT}, 0")
    a("s_cbranch_scc1 L_o_loop")
    c_gemm_chunk(a, 'o', False, False)
    if GPRIO: a("s_setprio 0")
    stamp(a, 7)
    a(f"s_lshl_b32 s7, s4, 7")
    a(f"s_and_b32 s60, s{S_W}, 3")
    a(f"s_lshl_b32 s60, s60, 5")
    a(f"s_add_u32 s7, s7, s60")
    a(f"s_lshl_b32 s7, s7, 12")
    a(f"s_lshl_b32 s60, s3, 11")
    a(f"s_add_u32 s7, s7, s60")
    a(f"s_lshl_b32 s60, s5, 8")
    a(f"s_add_u32 s7, s7, s60")
    a(f"s_lshr_b32 s60, s{S_W}, 2")
    a(f"s_lshl_b32 s60, s60, 7")
    a(f"s_add_u32 s7, s7, s60")
    t = G_TMP
    if opt("cst", "1") == "1":
        OST = 32768; RS = 144
        a(f"s_mul_i32 s60, s{S_W}, {32*RS}")
        a(f"s_add_u32 s60, s60, {OST}")
        a(f"v_and_b32 v{t}, 15, v{V_LANE}")
        a(f"v_mul_u32_u24 v{t}, {RS}, v{t}")
        a(f"v_lshrrev_b32 v{t+1}, 4, v{V_LANE}")
        a(f"v_lshl_add_u32 v{t}, v{t+1}, 3, v{t}")
        a(f"v_add_u32 v{t}, s60, v{t}")
        a(f"v_lshrrev_b32 v{t+1}, 3, v{V_LANE}")
        a(f"v_mul_u32_u24 v{t+2}, {RS}, v{t+1}")
        a(f"v_and_b32 v{t+3}, 7, v{V_LANE}")
        a(f"v_lshl_add_u32 v{t+2}, v{t+3}, 4, v{t+2}")
        a(f"v_add_u32 v{t+2}, s60, v{t+2}")
        a(f"v_lshlrev_b32 v{t+1}, 12, v{t+1}")
        a(f"v_lshl_add_u32 v{t+1}, v{t+3}, 4, v{t+1}")
        for nb in range(4):
            for qb in range(2):
                b = G_AF + 2*(2*nb + qb)
                for d in range(2):
                    a(f"v_cvt_pk_bf16_f32 v{b+d}, v{accreg(nb,qb)+2*d}, v{accreg(nb,qb)+2*d+1}")
        for nb in range(4):
            for qb in range(2):
                b = G_AF + 2*(2*nb + qb)
                a(f"ds_write_b64 v{t}, {vr(b,2)} offset:{qb*16*RS + nb*32}")
        a("s_waitcnt lgkmcnt(0)")
        for i in range(4):
            a(f"ds_read_b128 {vr(G_BF+4*i,4)}, v{t+2} offset:{8*i*RS}")
        for i in range(4):
            a(f"s_waitcnt lgkmcnt({3-i})")
            a(f"buffer_store_dwordx4 {vr(G_BF+4*i,4)}, v{t+1}, s[{S_OUTSRD}:{S_OUTSRD+3}], s7 offen {opt('outf','nt')}")
            if i < 3: a(f"s_add_u32 s7, s7, {8*4096}")
    else:
        a(f"v_and_b32 v{t}, 31, v{V_LANE}")
        a(f"v_lshlrev_b32 v{t}, 12, v{t}")
        a(f"v_lshrrev_b32 v{t+1}, 5, v{V_LANE}")
        a(f"v_lshl_add_u32 v{t}, v{t+1}, 4, v{t}")
        a.nop(8)
        for hd in range(2):
            for d in range(8):
                a(f"v_cvt_pk_bf16_f32 v{G_AF+8*hd+d}, v{G_ACC+16*hd+2*d}, v{G_ACC+16*hd+2*d+1}")
        a("s_nop 1")
        for hd in range(2):
            for qd in range(2):
                b = G_AF + 8*hd + 4*qd
                a(f"v_permlane32_swap_b32 v{b}, v{b+2}")
                a(f"v_permlane32_swap_b32 v{b+1}, v{b+3}")
        a("s_nop 1")
        for hd in range(2):
            for qd in range(2):
                b = G_AF + 8*hd + 4*qd
                a(f"buffer_store_dwordx4 {vr(b,4)}, v{t}, s[{S_OUTSRD}:{S_OUTSRD+3}], s7 offen offset:{hd*64 + qd*32}")
    if PROF:
        a("s_waitcnt vmcnt(0)")
        stamp(a, 8)
        stamp_flush(a)
    a("s_endpgm")

def l_dma_w(a, slot):
    a(f"s_add_u32 m0, s{S_M0W}, {slot*SLOT}")
    a("s_nop 0")
    for j in range(4):
        a(f"buffer_load_dwordx4 v{L_WOFF+j}, s[{S_WSRD}:{S_WSRD+3}], s{S_WSOFF} offen offset:{1024*j} {opt('wf','')} lds")
    a(f"s_add_u32 s{S_WSOFF}, s{S_WSOFF}, {64*2048}")
    a(f"s_and_b32 s{S_WSOFF}, s{S_WSOFF}, 0x1fffff")
def l_dma_x(a, mode, slot):
    a(f"s_add_u32 m0, s{S_M0X}, {slot*SLOT}")
    a("s_nop 0")
    for j in range(4):
        if mode == 'q':
            a(f"buffer_load_dwordx4 v{L_XOFF+j}, s[{S_XSRD}:{S_XSRD+3}], s{S_XSOFF} offen offset:{1024*j} {XFLAG} lds")
        else:
            a(f"buffer_load_dwordx4 v{L_XOFF}, s[{S_XSRD}:{S_XSRD+3}], s{S_XSOFF} offen offset:{1024*j} sc1 lds")
    a(f"s_add_u32 s{S_XSOFF}, s{S_XSOFF}, {128 if mode == 'q' else 4096}")
    a(f"s_and_b32 s{S_XSOFF}, s{S_XSOFF}, {2047 if mode == 'q' else 65535}")
def l_dma_chunk(a, mode, slot):
    if mode == 'o' and opt("nodma", "0") == "1": return
    l_dma_w(a, slot); l_dma_x(a, mode, slot)
def l_kv_dma(a, base_imm=None, base_sgpr=None):
    if base_imm is not None:
        a(f"s_add_u32 m0, s{S_T1}, {base_imm}")
    else:
        a(f"s_add_u32 m0, s{S_T1}, s{base_sgpr}")
    a("s_nop 0")
    for j in range(4):
        a(f"buffer_load_dwordx4 v{L_KVOFF}, s[{S_WSSRD}:{S_WSSRD+3}], s{S_KVSOFF} offen offset:{1024*j} sc1 lds")
    a("s_add_u32 m0, m0, 4096")
    a(f"s_add_u32 s60, s{S_KVSOFF}, 4096")
    for j in range(4):
        a(f"buffer_load_dwordx4 v{L_KVOFF}, s[{S_WSSRD}:{S_WSSRD+3}], s60 offen offset:{1024*j} sc1 lds")
    a(f"s_add_u32 s{S_KVSOFF}, s{S_KVSOFF}, 32768")

def gen_loader(a):
    L = V_LANE
    t0, t1, t2, t3 = L_T, L_T+1, L_T+2, L_T+3
    a(f"s_sub_u32 s{S_LW}, s{S_W}, 8")
    a("s_lshl_b32 s60, s3, 4")
    a("s_add_u32 s60, s60, s4")
    if opt("oline", "0") == "1":
        a("s_lshl_b32 s60, s60, 7")
        a(f"s_add_u32 s60, s60, {WS_FLAG}")
        a(f"v_and_b32 v{L_FADDR}, 7, v{L}")
        a(f"v_lshlrev_b32 v{L_FADDR}, 2, v{L_FADDR}")
    else:
        a("s_lshl_b32 s60, s60, 10")
        a(f"s_add_u32 s60, s60, {WS_FLAG}")
        a(f"v_and_b32 v{L_FADDR}, 7, v{L}")
        a(f"v_lshlrev_b32 v{L_FADDR}, 7, v{L_FADDR}")
    a(f"v_add_u32 v{L_FADDR}, s60, v{L_FADDR}")
    a("s_lshr_b32 s60, s5, 1")
    a("s_lshl_b32 s60, s60, 5")
    a("s_add_u32 s60, s60, s7")
    a(f"s_lshl_b32 s65, s{S_LW}, 3")
    a("s_add_u32 s60, s60, s65")
    a("s_lshl_b32 s72, s60, 11")
    a(f"v_lshrrev_b32 v{t0}, 4, v{L}")
    a(f"v_and_b32 v{t1}, 15, v{L}")
    a(f"s_and_b32 s65, s65, 15")
    for e in range(2):
        a(f"v_add_u32 v{t2}, {4*e}, v{t0}")
        a(f"v_add_u32 v{t3}, s65, v{t2}")
        a(f"v_xor_b32 v{t3}, v{t3}, v{t1}")
        a(f"v_lshlrev_b32 v{t3}, 4, v{t3}")
        a(f"v_lshl_add_u32 v{32+e}, v{t2}, 11, v{t3}")
        if e: a(f"v_subrev_u32 v{32+e}, {1024*e}, v{32+e}")
    a(f"v_lshlrev_b32 v34, 4, v{L}")
    a(f"s_lshl_b32 s74, s{S_LW}, 11")
    a("s_and_b32 s77, s5, 1")
    a("s_lshl_b32 s77, s77, 2")
    a("s_lshr_b32 s78, s2, 3")
    if opt("stgrot", "1") != "1":
        a("s_mov_b32 s77, 0"); a("s_mov_b32 s78, 0")
    if opt("stgrot", "1") != "1":
        a("s_mov_b32 s77, 0"); a("s_mov_b32 s78, 0")
    def x_round():
        a("s_and_b32 s77, s77, 7")
        a("s_lshl_b32 s60, s77, 13")
        a("s_add_u32 s60, s60, s74")
        a(f"s_add_u32 m0, s60, {XSTG}")
        a("s_lshl_b32 s65, s77, 8")
        a("s_add_u32 s65, s65, s72")
        for e in range(2):
            a(f"buffer_load_dwordx4 v{32+e}, s[{S_XSRD}:{S_XSRD+3}], s65 offen offset:{1024*e} {XFLAG} lds")
        a("s_add_u32 s77, s77, 1")
    def w_round():
        a("s_and_b32 s78, s78, 7")
        a("s_lshl_b32 s60, s78, 13")
        a("s_add_u32 s60, s60, s74")
        a(f"s_add_u32 m0, s60, {WSTG0}")
        a("s_add_u32 s78, s78, 1")
        for e in range(2):
            a(f"buffer_load_dwordx4 v34, s[{S_KWSRD}:{S_KWSRD+3}], s60 offen offset:{1024*e} {opt('kwf','')} lds")
    WLATE = opt("wlate", "0") == "1"
    if WLATE:
        a("s_lshr_b32 s60, s2, 4")
        a("s_and_b32 s60, s60, 15")
        a("s_lshl_b32 s60, s60, 2")
        a(f"s_add_u32 s60, s60, s{S_LW}")
        a("s_lshl_b32 s60, s60, 10")
        a(f"v_and_b32 v{t0}, 7, v{L}")
        a(f"v_lshlrev_b32 v{t0}, 7, v{t0}")
        a(f"buffer_load_dword v37, v{t0}, s[{S_KWSRD}:{S_KWSRD+3}], s60 offen")
        for r in range(8): x_round()
    else:
        for r in range(8):
            x_round(); w_round()
    stamp(a, 9)
    a(f"v_lshrrev_b32 v{t0}, 4, v{L}")
    a(f"v_bfe_u32 v{t1}, v{L}, 1, 3")
    a(f"v_lshlrev_b32 v{t2}, 1, v{t0}")
    a(f"v_xor_b32 v{t1}, v{t1}, v{t2}")
    a(f"v_lshlrev_b32 v{t0}, 11, v{t0}")
    a(f"v_and_b32 v{t2}, 1, v{L}")
    a(f"v_lshl_add_u32 v{t0}, v{t2}, 4, v{t0}")
    a(f"s_lshl_b32 s60, s{S_LW}, 15")
    a(f"s_lshl_b32 s65, s5, 8")
    a(f"s_add_u32 s60, s60, s65")
    a(f"v_add_u32 v{t0}, s60, v{t0}")
    for j in range(4):
        bj = (j ^ (j >> 1)) & 1
        a(f"v_xor_b32 v{t2}, {bj}, v{t1}")
        a(f"v_lshl_add_u32 v{L_WOFF+j}, v{t2}, 5, v{t0}")
        if j: a(f"v_add_u32 v{L_WOFF+j}, {j*(8192-1024)}, v{L_WOFF+j}")
    a(f"v_lshrrev_b32 v{t0}, 3, v{L}")
    a(f"s_lshl_b32 s60, s{S_LW}, 5")
    a(f"s_add_u32 s60, s60, s7")
    a(f"v_add_u32 v{t0}, s60, v{t0}")
    a(f"v_lshlrev_b32 v{t0}, 11, v{t0}")
    a(f"v_and_b32 v{t1}, 7, v{L}")
    a(f"v_lshrrev_b32 v{t2}, 4, v{L}")
    a(f"v_xor_b32 v{t1}, v{t1}, v{t2}")
    for e in range(4):
        if e & 1:
            a(f"v_xor_b32 v{t3}, 4, v{t1}")
            a(f"v_lshl_add_u32 v{L_XOFF+e}, v{t3}, 4, v{t0}")
        else:
            a(f"v_lshl_add_u32 v{L_XOFF+e}, v{t1}, 4, v{t0}")
        if e: a(f"v_add_u32 v{L_XOFF+e}, {e*(8*2048-1024)}, v{L_XOFF+e}")
    a(f"s_lshl_b32 s{S_M0W}, s{S_LW}, 12")
    a(f"s_lshl_b32 s{S_M0X}, s{S_LW}, 12")
    a(f"s_add_u32 s{S_M0X}, s{S_M0X}, {XPART}")
    a("s_and_b32 s60, s4, 3")
    a("s_lshl_b32 s60, s60, 2")
    a("s_lshl_b32 s65, s5, 1")
    a("s_add_u32 s60, s60, s65")
    a("s_and_b32 s60, s60, 15")
    if opt("rot", "1") != "1": a("s_mov_b32 s60, 0")
    a(f"s_lshl_b32 s{S_WSOFF}, s60, 17")
    a(f"s_lshl_b32 s{S_XSOFF}, s60, 7")
    if WLATE:
        if opt("c0first", "1") == "1":
            l_dma_chunk(a, 'q', 0)
            for r in range(8): w_round()
        else:
            for r in range(8): w_round()
            l_dma_chunk(a, 'q', 0)
    else:
        l_dma_chunk(a, 'q', 0)
    a(f"buffer_load_dword v{L_SNAP}, v{L_FADDR}, s[{S_WSSRD}:{S_WSSRD+3}], 0 offen sc1")
    NT = 0
    if opt("wqpf", "0") == "1":
        NT = 2
        a(f"v_lshrrev_b32 v{t0}, 1, v{L}")
        a(f"v_lshlrev_b32 v{t0}, 11, v{t0}")
        a(f"v_and_b32 v{t1}, 1, v{L}")
        a(f"v_lshl_add_u32 v{t0}, v{t1}, 7, v{t0}")
        a("s_lshl_b32 s60, s5, 8")
        a(f"v_add_u32 v{t0}, s60, v{t0}")
        a(f"s_lshl_b32 s60, s{S_LW}, 17")
        a(f"s_add_u32 s60, s60, s{S_WSOFF}")
        a("s_and_b32 s60, s60, 0x1fffff")
        a(f"buffer_load_dword v35, v{t0}, s[{S_WSRD}:{S_WSRD+3}], s60 offen")
        a("s_add_u32 s60, s60, 0x10000")
        a(f"buffer_load_dword v36, v{t0}, s[{S_WSRD}:{S_WSRD+3}], s60 offen")
    a(f"v_mov_b32 v{L_DBG}, s3")
    a(f"v_lshlrev_b32 v{L_DBG}, 7, v{L_DBG}")
    a(f"v_lshlrev_b32 v{L_KVOFF}, 4, v{L}")
    a(f"s_lshl_b32 s{S_T1}, s{S_LW}, 13")
    a(f"v_add_u32 v{L_KVOFF}, s{S_T1}, v{L_KVOFF}")
    a(f"s_lshl_b32 s{S_KVSOFF}, s3, 18")
    if WS_KV: a(f"s_add_u32 s{S_KVSOFF}, s{S_KVSOFF}, {WS_KV}")
    stamp(a, 10)
    a(f"s_waitcnt vmcnt({(1 if (WLATE and opt('c0first','1') == '1') else 9) + NT})")
    stamp(a, 11)
    a("s_barrier")
    a("s_barrier")
    if opt("k1early", "1") == "1":
        l_dma_chunk(a, 'q', 1)
        a("s_barrier")
        l_dma_chunk(a, 'q', 2)
        l_dma_chunk(a, 'q', 3)
    else:
        for c in (1, 2, 3): l_dma_chunk(a, 'q', c)
        a("s_barrier")
    a("s_waitcnt vmcnt(24)")
    a("s_barrier")
    a(f"s_cmp_ge_u32 s{S_LW}, 2")
    a("s_cbranch_scc1 L_l_dummy")
    a(f"s_lshl_b32 s60, s{S_LW}, 11")
    a(f"s_add_u32 s60, s60, {PART}")
    a(f"v_lshlrev_b32 v{t0}, 4, v{L}")
    a(f"v_add_u32 v{t1}, s60, v{t0}")
    for w in range(8):
        a(f"ds_read_b128 {vr(40+8*w,4)}, v{t1} offset:{4096*w}")
        a(f"ds_read_b128 {vr(44+8*w,4)}, v{t1} offset:{4096*w+1024}")
        if w == 3: a("s_waitcnt lgkmcnt(4)")
    a("s_waitcnt lgkmcnt(0)")
    for w in range(1, 8):
        for r in range(8):
            a(f"v_add_f32 v{40+r}, v{40+r}, v{40+8*w+r}")
    a("s_and_b32 s60, s5, 1")
    a("s_cmp_eq_u32 s60, 0")
    a(f"s_cselect_b32 s60, {fbits(CSCALE)}, 1.0")
    for r in range(8):
        a(f"v_mul_f32 v{40+r}, s60, v{40+r}")
    for d in range(4):
        a(f"v_cvt_pk_bf16_f32 v{36+d}, v{40+2*d}, v{41+2*d}")
    a("s_and_b32 s60, s5, 1")
    a("s_cmp_eq_u32 s60, 0")
    a("s_cbranch_scc0 L_l_nokswap")
    a("s_nop 1")
    a("v_permlane32_swap_b32 v36, v38")
    a("v_permlane32_swap_b32 v37, v39")
    a("s_nop 1")
    a.label("L_l_nokswap")
    a("s_lshr_b32 s60, s5, 1")
    a("s_lshl_b32 s65, s4, 2")
    a("s_add_u32 s60, s60, s65")
    a("s_lshl_b32 s60, s60, 12")
    a("s_and_b32 s65, s5, 1")
    a("s_lshl_b32 s65, s65, 11")
    a("s_add_u32 s60, s60, s65")
    a(f"s_lshl_b32 s65, s{S_LW}, 10")
    a("s_add_u32 s60, s60, s65")
    a("s_lshl_b32 s65, s3, 18")
    a("s_add_u32 s60, s60, s65")
    if WS_KV: a(f"s_add_u32 s60, s60, {WS_KV}")
    a(f"buffer_store_dwordx4 v[36:39], v{t0}, s[{S_WSSRD}:{S_WSSRD+3}], s60 offen sc1")
    a("s_branch L_l_red_done")
    a.label("L_l_dummy")
    a(f"buffer_load_dword v36, v{L_FADDR}, s[{S_WSSRD}:{S_WSSRD+3}], 0 offen sc1")
    a.label("L_l_red_done")
    a("s_waitcnt vmcnt(17)")
    a("s_barrier")
    l_dma_chunk(a, 'q', 4)
    l_dma_chunk(a, 'q', 0)
    a("s_waitcnt vmcnt(25)")
    a("s_barrier")
    l_dma_chunk(a, 'q', 6 % NSLOT)
    a("s_waitcnt vmcnt(16)")
    a("s_barrier")
    l_dma_chunk(a, 'q', 7 % NSLOT)
    a(f"s_cmp_eq_u32 s{S_LW}, 0")
    a("s_cbranch_scc0 L_l_nosig")
    a("s_mov_b64 exec, 1")
    a(f"v_mov_b32 v{t0}, 1")
    a(f"global_atomic_add v{L_DBG}, v{t0}, s[{S_DBG}:{S_DBG+1}]")
    a("s_mov_b64 exec, -1")
    a.label("L_l_nosig")
    for c in range(4, 10):
        a("s_waitcnt vmcnt(16)")
        a("s_barrier")
        l_dma_chunk(a, 'q', (c + 4) % NSLOT)
    a(f"s_cmp_eq_u32 s{S_LW}, 0")
    a("s_cbranch_scc0 L_l_kvdummy")
    a(f"global_load_dword v{L_TMP}, v{L_DBG}, s[{S_DBG}:{S_DBG+1}] sc1")
    a("s_branch L_l_kvpolled")
    a.label("L_l_kvdummy")
    a(f"buffer_load_dword v{L_TMP}, v{L_KVOFF}, s[{S_WSRD}:{S_WSRD+3}], 0 offen")
    a.label("L_l_kvpolled")
    for c in (10, 11):
        a("s_waitcnt vmcnt(17)")
        a("s_barrier")
        l_dma_chunk(a, 'q', (c + 4) % NSLOT)
    a("s_waitcnt vmcnt(16)")
    a(f"s_cmp_eq_u32 s{S_LW}, 0")
    a("s_cbranch_scc0 L_l_kvok")
    a(f"v_readfirstlane_b32 s60, v{L_TMP}")
    a("s_mov_b32 s65, 0x2000")
    a("s_nop 2")
    a("s_cmp_ge_u32 s60, 128")
    a("s_cbranch_scc1 L_l_kvok")
    a.label("L_l_kvpoll")
    a("s_sleep 32")
    a(f"global_load_dword v{L_TMP}, v{L_DBG}, s[{S_DBG}:{S_DBG+1}] sc1")
    a("s_waitcnt vmcnt(0)")
    a(f"v_readfirstlane_b32 s60, v{L_TMP}")
    a("s_nop 3")
    a("s_cmp_ge_u32 s60, 128")
    a("s_cbranch_scc1 L_l_kvok")
    a("s_sub_u32 s65, s65, 1")
    a("s_cmp_lg_u32 s65, 0")
    a("s_cbranch_scc1 L_l_kvpoll")
    a.label("L_l_kvok")
    a("s_barrier")
    l_kv_dma(a, base_imm=KVR[0])
    a("s_waitcnt vmcnt(16)")
    a("s_barrier")
    l_kv_dma(a, base_imm=KVR[1])
    a("s_waitcnt vmcnt(16)")
    a("s_barrier")
    l_kv_dma(a, base_imm=KVR[2])
    srd(a, S_WSRD, 48, 2 << 20)
    srd(a, S_XSRD, 52, WS_SIZE)
    a(f"s_lshl_b32 s60, s{S_LW}, 16")
    a(f"s_lshl_b32 s65, s3, 22")
    a(f"s_add_u32 s60, s60, s65")
    a(f"s_lshl_b32 s65, s4, 18")
    a(f"s_add_u32 s60, s60, s65")
    a(f"s_add_u32 s60, s60, {WS_O}")
    a(f"v_lshlrev_b32 v{t0}, 4, v{L}")
    a(f"v_add_u32 v{L_XOFF}, s60, v{t0}")
    a(f"s_lshl_b32 s{S_WSOFF}, s5, 18")
    a(f"s_lshl_b32 s{S_XSOFF}, s5, 13")
    a(f"s_add_u32 s{S_XSOFF}, s{S_XSOFF}, 8192")
    a(f"s_and_b32 s{S_XSOFF}, s{S_XSOFF}, 65535")
    a(f"v_lshrrev_b32 v{t1}, 1, v{L}")
    a("s_and_b32 s60, s4, 3")
    a("s_lshl_b32 s60, s60, 8")
    a(f"s_lshl_b32 s65, s{S_LW}, 6")
    a("s_add_u32 s60, s60, s65")
    a(f"v_add_u32 v{t1}, s60, v{t1}")
    a(f"v_lshlrev_b32 v{t1}, 11, v{t1}")
    a(f"v_and_b32 v{t2}, 1, v{L}")
    a(f"v_lshl_add_u32 v{t1}, v{t2}, 7, v{t1}")
    a("s_lshl_b32 s60, s5, 8")
    a(f"v_add_u32 v{t1}, s60, v{t1}")
    a("s_waitcnt vmcnt(16)")
    a("s_barrier")
    for j in range(1, 8):
        a("s_waitcnt vmcnt(8)")
        if opt("noabar", "0") != "1": a("s_barrier")
        if j <= 5:
            l_kv_dma(a, base_imm=KVR[(j - 1) % 3])
        if j == 1 and opt("wopf", "1") == "1":
            a(f"buffer_load_dword v{L_TMP}, v{t1}, s[{S_WSRD}:{S_WSRD+3}], 0 offen")
            a(f"s_mov_b32 s60, {32*2048}")
            a(f"buffer_load_dword v{L_TMP}, v{t1}, s[{S_WSRD}:{S_WSRD+3}], s60 offen")
        if j == 6:
            l_dma_w(a, 4); l_dma_w(a, 0)
        if j == 7:
            l_dma_w(a, 1)
            if opt("omb", "1") == "1":
                a(f"s_lshl_b32 s60, s{S_LW}, 12")
                a(f"s_add_u32 s60, s60, {((OS0_ + 2) % NSLOT)*SLOT + XPART}")
                a(f"v_mov_b32 v{t2}, s60")
                a(f"v_mov_b32 v{t3}, 0")
                a(f"ds_write_b32 v{t2}, v{t3}")
                a(f"ds_write_b32 v{t2}, v{t3} offset:{(((OS0_ + 4) % NSLOT) - ((OS0_ + 2) % NSLOT))*SLOT % 65536}" if False else f"v_add_u32 v{t2}, {(((OS0_ + 4) % NSLOT) - ((OS0_ + 2) % NSLOT))*SLOT}, v{t2}")
                a(f"ds_write_b32 v{t2}, v{t3}")
                a("s_movk_i32 s79, 0x5a5a")
                a("s_waitcnt lgkmcnt(0)")
    a("s_waitcnt vmcnt(0)")
    a("s_barrier")
    a(f"v_add_u32 v{L_SNAP}, 1, v{L_SNAP}")
    a(f"s_cmp_eq_u32 s{S_LW}, 0")
    a("s_cbranch_scc0 L_l_noflag")
    a(f"v_cmp_eq_u32 vcc, s5, v{L}")
    a("s_nop 4")
    a("s_mov_b64 exec, vcc")
    a(f"buffer_store_dword v{L_SNAP}, v{L_FADDR}, s[{S_WSSRD}:{S_WSSRD+3}], 0 offen sc1")
    a("s_mov_b64 exec, -1")
    a.label("L_l_noflag")
    l_dma_w(a, 2)
    TWO = opt("ostage", "1") == "2"
    OMB = ((OS0_ + 2) % NSLOT)*SLOT + XPART
    OMB2 = ((OS0_ + 4) % NSLOT)*SLOT + XPART
    def wait_flags(tag, mb, mask_lane):
        a(f"s_lshl_b32 s60, s{S_LW}, 12")
        a(f"s_add_u32 s60, s60, {mb}")
        a(f"v_mov_b32 v{t2}, s60")
        a(f"s_cmp_eq_u32 s{S_LW}, 0")
        a(f"s_cbranch_scc1 L_l_{tag}poll0")
        a.label(f"L_l_{tag}mb")
        a(f"ds_read_b32 v{t3}, v{t2}")
        a("s_waitcnt lgkmcnt(0)")
        a(f"v_readfirstlane_b32 s60, v{t3}")
        a("s_nop 3")
        a("s_cmp_eq_u32 s60, s79")
        a(f"s_cbranch_scc1 L_l_{tag}go")
        a("s_sleep 1")
        a(f"s_branch L_l_{tag}mb")
        a.label(f"L_l_{tag}poll0")
        a("s_mov_b32 s65, 0x8000")
        if mask_lane:
            a("s_add_u32 s72, s5, 1")
            a("s_and_b32 s72, s72, 7")
        a.label(f"L_l_{tag}poll")
        a(f"buffer_load_dword v{L_TMP}, v{L_FADDR}, s[{S_WSSRD}:{S_WSSRD+3}], 0 offen sc1")
        a("s_waitcnt vmcnt(0)")
        a(f"v_cmp_eq_u32 vcc, v{L_TMP}, v{L_SNAP}")
        a("s_nop 4")
        if mask_lane:
            a("s_lshr_b64 s[80:81], vcc, s72")
            a("s_bitcmp1_b32 s80, 0")
        else:
            a("s_cmp_eq_u64 vcc, -1")
        a(f"s_cbranch_scc1 L_l_{tag}set")
        a(f"s_sleep {opt('sleep','2')}")
        a("s_sub_u32 s65, s65, 1")
        a("s_cmp_lg_u32 s65, 0")
        a(f"s_cbranch_scc1 L_l_{tag}poll")
        a.label(f"L_l_{tag}set")
        a(f"v_mov_b32 v{t3}, s79")
        for lw in range(1, 4):
            a(f"ds_write_b32 v{t2}, v{t3} offset:{4096*lw}")
        a("s_waitcnt lgkmcnt(0)")
        a.label(f"L_l_{tag}go")
    if TWO:
        wait_flags("o1", OMB, True)
        for c in (2, 3):
            l_dma_x(a, 'o', (4 + c) % NSLOT)
        a("s_waitcnt vmcnt(0)")
        a("s_barrier")
        wait_flags("o2", OMB2, False)
        l_dma_x(a, 'o', (4 + 4) % NSLOT)
        l_dma_w(a, (4 + 4) % NSLOT)
    else:
        wait_flags("o1", OMB, False)
        for c in (2, 3, 4):
            l_dma_x(a, 'o', (4 + c) % NSLOT)
        l_dma_w(a, (4 + 4) % NSLOT)
        a("s_waitcnt vmcnt(8)")
        a("s_barrier")
    l_dma_chunk(a, 'o', (4 + 5) % NSLOT)
    l_dma_chunk(a, 'o', (4 + 6) % NSLOT)
    for c in range(3, 12):
        a("s_waitcnt vmcnt(16)")
        a("s_barrier")
        l_dma_chunk(a, 'o', (4 + c + 4) % NSLOT)
    a("s_waitcnt vmcnt(16)")
    a("s_barrier")
    a("s_waitcnt vmcnt(8)")
    a("s_barrier")
    a("s_waitcnt vmcnt(0)")
    a("s_barrier")
    if PROF:
        stamp(a, 8)
        stamp_flush(a)
    a("s_endpgm")

def gen_main(a):
    name = KNAME
    a(f".globl {name}\n.p2align 8\n.type {name},@function")
    a.label(name)
    a("s_cmp_ge_u32 s2, 256")
    a("s_cbranch_scc1 L_end")
    if opt("perm", "0") == "1":
        a("s_lshl_b32 s3, s2, 3")
        a("s_lshr_b32 s2, s2, 5")
        a("s_or_b32 s2, s2, s3")
        a("s_and_b32 s2, s2, 255")
    a("s_and_b32 s4, s2, 7")
    a("s_lshr_b32 s5, s2, 3")
    a("s_lshr_b32 s3, s4, 2")
    a("s_and_b32 s4, s4, 3")
    a("s_lshl_b32 s4, s4, 2")
    a("s_lshr_b32 s6, s5, 3")
    a("s_add_u32 s4, s4, s6")
    a("s_and_b32 s5, s5, 7")
    load_args(a, 3)
    a("v_lshrrev_b32 v1, 6, v0")
    a(f"v_and_b32 v{V_LANE}, 63, v0")
    a(f"v_readfirstlane_b32 s{S_W}, v1")
    srd(a, S_WSSRD, 52, WS_SIZE)
    srd(a, S_XSRD, 40, 4 << 20)
    srd(a, S_WSRD, 42, 2 << 20)
    a("s_and_b32 s60, s5, 1")
    a("s_cmp_eq_u32 s60, 0")
    a("s_cselect_b32 s54, s44, s46")
    a("s_cselect_b32 s55, s45, s47")
    srd(a, S_KWSRD, 54, 65536)
    srd(a, S_OUTSRD, 50, 8 << 20)
    a("s_lshl_b32 s7, s4, 7")
    stamp_init(a); stamp(a, 0)
    if opt("codepf", "0") == "1":
        lab = a.newlabel("cpf")
        a(f"s_cmp_eq_u32 s{S_W}, 7")
        a(f"s_cbranch_scc0 {lab}")
        a("s_getpc_b64 s[80:81]")
        a(f"v_lshlrev_b32 v4, 7, v{V_LANE}")
        for i in range(int(opt("codekb", "28")) // 8):
            a(f"global_load_dword v5, v4, s[80:81]")
            a(f"v_add_u32 v4, 8192, v4")
        a.label(lab)
    if opt("lfirst", "1") == "1":
        a(f"s_cmp_lt_u32 s{S_W}, 8")
        a("s_cbranch_scc1 L_compute")
        gen_loader(a)
        a.label("L_compute")
        gen_compute(a)
    else:
        a(f"s_cmp_ge_u32 s{S_W}, 8")
        a("s_cbranch_scc1 L_loader")
        gen_compute(a)
        a.label("L_loader")
        gen_loader(a)
    a.label("L_end")
    a("s_endpgm")
    return name, NVGPR, LDS_MAIN

DOC = """;
"""
def main(out_path):
    ref = open("cdna_kernels/" + NAME + ".s.ref").read().split("\n")
    header = [l for l in ref if l.startswith(";") and "@launch" not in l and "Override" not in l and "grid=ceil" not in l]
    a = Asm()
    name, vg, lds = gen_main(a)
    txt = "\n".join(header) + "\n"
    txt += f"; @launch grid=(256,1,1) block=(768,1,1) lds={lds}\n"
    txt += DOC
    txt += '.amdgcn_target "amdgcn-amd-amdhsa--gfx950"\n.text\n'
    txt += a.text()
    txt += '.section .rodata,"a"\n'
    txt += ".p2align 6\n" + kernel_desc(name, vg)
    open(out_path, "w").write(txt)
    nb = sum(1 for l in a.lines if l.strip() == "s_barrier")
    print("static barriers:", nb)

if __name__ == "__main__":
    if "--prof" in sys.argv:
        PROF = True
        sys.argv.remove("--prof")
    main(sys.argv[1] if len(sys.argv) > 1 else "cdna_kernels/" + NAME + ".s")
```

```python
import sys, math, os, struct
sys.path.insert(0, __file__.rsplit("/", 1)[0])
from asmlib import *

NAME = "concat_heads__grouped_kv_mqa__grouped_kv_mqa__prompt"
KNAME = NAME + "_kernel"
import os as _os
_O = dict(kv.split("=") for kv in _os.environ.get("GENOPT", "").split(",") if "=" in kv)
WS_BASE = int(_O.get("wsbase", "0")) << 20
WS_KV = WS_BASE
WS_O = WS_BASE + (1 << 20)
WS_FLAG = WS_BASE + (10 << 20)
WS_SIZE = 268435456
CSCALE = math.log2(math.e) / math.sqrt(32.0)
def fbits(x): return "0x%08x" % struct.unpack("<I", struct.pack("<f", x))[0]
OPT = dict(kv.split("=") for kv in os.environ.get("GENOPT", "").split(",") if "=" in kv)
def opt(k, d): return OPT.get(k, d)

OS0_ = 4
SLOT = 32768
NSLOT = 5
XPART = 16384
KVR = [32768, 65536, 98304]
PART = 131072
XSTG = 32768
WSTG0 = 98304
LDS_MAIN = 163840
NVGPR = 168

PROF = False
WS_PROF = 12 << 20
V_PROF = 167
S_WSSRD = 56
V_LANE = 2
def stamp(a, idx):
    if not PROF: return
    a("s_memtime s[92:93]")
    a("s_memrealtime s[94:95]")
    a("s_waitcnt lgkmcnt(0)")
    a(f"v_writelane_b32 v{V_PROF}, s92, {idx}")
    a(f"v_writelane_b32 v{V_PROF}, s94, {idx+32}")
def stamp_init(a):
    if not PROF: return
    a(f"v_mov_b32 v{V_PROF}, 0")
def stamp_flush(a):
    if not PROF: return
    a(f"s_mul_i32 s96, s2, 12")
    a(f"s_add_u32 s96, s96, s6")
    a(f"s_lshl_b32 s96, s96, 8")
    a(f"s_add_u32 s96, s96, {WS_PROF + (1<<20)}")
    a(f"v_lshlrev_b32 v{V_PROF-1}, 2, v{V_LANE}")
    a(f"buffer_store_dword v{V_PROF}, v{V_PROF-1}, s[{S_WSSRD}:{S_WSSRD+3}], s96 offen")
    a("s_waitcnt vmcnt(0)")

A_KVADDR = 1
A_SEL = 8
A_IDX = 12
A_Q = [16, 24]
A_O = [32, 48]
A_L = [64, 68]
A_S = [72, 88]
A_P = [104, 112]
A_K = [120, 128]
A_V = [136, 144]
A_T = 152
G_ACC = 32
G_AF = 72
G_BF = 104
G_TMP = 124
L_WOFF = 8
L_XOFF = 12
L_KVOFF = 16
L_DBG = 17
L_TMP = 18
L_SNAP = 19
L_FADDR = 20
L_T = 24
S_XSRD = 8
S_WSRD = 12
S_DBG = 36
S_W = 6
S_LW = 62
S_M0W = 63
S_M0X = 64
S_WSOFF = 66
S_XSOFF = 67
S_CNT = 69
S_T0 = 70
S_T1 = 71
S_KVSOFF = 73
S_OUTSRD = 84
S_KWSRD = 88
S_OOFF = 61
XFLAG = "nt" if opt("xnt", "0") == "1" else opt("xf", "")

def load_args(a, p_sgpr):
    a("s_load_dwordx16 s[16:31], s[0:1], 0")
    a("s_load_dwordx4 s[32:35], s[0:1], 64")
    a("s_load_dwordx2 s[50:51], s[0:1], 80")
    a(f"s_load_dwordx2 s[{S_DBG}:{S_DBG+1}], s[0:1], 88")
    a("s_load_dwordx2 s[52:53], s[0:1], 96")
    a("s_waitcnt lgkmcnt(0)")
    a(f"s_cmp_eq_u32 s{p_sgpr}, 0")
    for i in range(5):
        for h in range(2):
            a(f"s_cselect_b32 s{40+2*i+h}, s{16+2*i+h}, s{26+2*i+h}")

G_A = 128
G_B = 132
S_CUR = 75
S_DELTA = 76
GPRIO = opt("gprio", "1") == "1"
def accreg(nb, qb): return G_ACC + 4*(2*nb + qb)
def gemm_addr(a, mode, first_slot):
    lane = V_LANE
    t0, t1, t2, t3 = G_TMP, G_TMP+1, G_TMP+2, G_TMP+3
    a(f"v_bfe_u32 v{t0}, v{lane}, 2, 2")
    a(f"v_lshrrev_b32 v{t1}, 4, v{lane}")
    if mode == 'q':
        a(f"v_lshl_add_u32 v{t2}, v{t1}, 3, v{t0}")
    else:
        a(f"v_lshrrev_b32 v{t2}, 1, v{t1}")
        a(f"v_lshlrev_b32 v{t2}, 4, v{t2}")
        a(f"v_and_b32 v{t3}, 1, v{t1}")
        a(f"v_lshl_add_u32 v{t2}, v{t3}, 2, v{t2}")
        a(f"v_add_u32 v{t2}, v{t2}, v{t0}")
    a(f"v_lshlrev_b32 v{t2}, 8, v{t2}")
    a(f"v_and_b32 v{t3}, 3, v{lane}")
    a(f"v_lshl_add_u32 v{t2}, v{t3}, 3, v{t2}")
    a(f"v_lshlrev_b32 v{t0}, 1, v{t0}")
    a(f"v_and_b32 v{t1}, 1, v{t1}")
    a(f"v_xor_b32 v{t0}, v{t0}, v{t1}")
    a(f"s_lshr_b32 s{S_T0}, s{S_W}, 2")
    a(f"s_lshl_b32 s{S_T0}, s{S_T0}, 2")
    a(f"v_xor_b32 v{t0}, s{S_T0}, v{t0}")
    if first_slot: a(f"v_add_u32 v{t2}, {first_slot*SLOT}, v{t2}")
    for nb in range(4):
        a(f"v_xor_b32 v{t1}, {nb}, v{t0}")
        a(f"v_lshl_add_u32 v{G_A+nb}, v{t1}, 5, v{t2}")
    if mode == 'q':
        a(f"s_and_b32 s{S_T0}, s{S_W}, 3")
        a(f"s_lshl_b32 s{S_T0}, s{S_T0}, 5")
        a(f"v_and_b32 v{t0}, 15, v{lane}")
        a(f"v_add_u32 v{t0}, s{S_T0}, v{t0}")
        a(f"v_bfe_u32 v{t1}, v{t0}, 1, 3")
        a(f"v_lshrrev_b32 v{t2}, 4, v{lane}")
        a(f"v_xor_b32 v{t1}, v{t1}, v{t2}")
        a(f"v_lshlrev_b32 v{t0}, 7, v{t0}")
        a(f"v_add_u32 v{t0}, {XPART + first_slot*SLOT}, v{t0}")
        a(f"v_lshl_add_u32 v{G_B}, v{t1}, 4, v{t0}")
        a(f"v_xor_b32 v{G_B+1}, 64, v{G_B}")
    else:
        a(f"s_and_b32 s{S_T0}, s{S_W}, 3")
        a(f"s_lshl_b32 s{S_T0}, s{S_T0}, 12")
        a(f"s_add_u32 s{S_T0}, s{S_T0}, {XPART + first_slot*SLOT}")
        a(f"v_and_b32 v{t0}, 15, v{lane}")
        a(f"v_lshlrev_b32 v{t0}, 4, v{t0}")
        a(f"v_lshrrev_b32 v{t1}, 5, v{lane}")
        a(f"v_lshl_add_u32 v{t0}, v{t1}, 10, v{t0}")
        a(f"v_bfe_u32 v{t1}, v{lane}, 4, 1")
        a(f"v_lshl_add_u32 v{t0}, v{t1}, 9, v{t0}")
        a(f"v_add_u32 v{G_B}, s{S_T0}, v{t0}")
    a(f"s_mov_b32 s{S_CUR}, {first_slot*SLOT}")

def gemm_read_list(mode, st):
    L = []
    af = G_AF + 16*st; bf = G_BF + 8*st
    for qb in range(2):
        if mode == 'q': L.append(f"ds_read_b128 {vr(bf+4*qb,4)}, v{G_B+st} offset:{qb*2048}")
        else: L.append(f"ds_read_b128 {vr(bf+4*qb,4)}, v{G_B} offset:{st*2048 + qb*256}")
    second = 1024 if mode == 'q' else 2048
    for nb in range(4):
        L.append(f"ds_read_b64_tr_b16 {vr(af+4*nb,2)}, v{G_A+nb} offset:{st*8192}")
        L.append(f"ds_read_b64_tr_b16 {vr(af+4*nb+2,2)}, v{G_A+(nb^1)} offset:{st*8192 + second}")
    return L

def gemm_move(a, mode, nslot):
    a(f"s_add_u32 s{S_T0}, s{S_CUR}, {SLOT}")
    a(f"s_cmp_eq_u32 s{S_T0}, {SLOT*nslot}")
    a(f"s_cselect_b32 s{S_T0}, 0, s{S_T0}")
    a(f"s_sub_u32 s{S_DELTA}, s{S_T0}, s{S_CUR}")
    a(f"s_mov_b32 s{S_CUR}, s{S_T0}")
    for nb in range(4): a(f"v_add_u32 v{G_A+nb}, s{S_DELTA}, v{G_A+nb}")
    for j in range(2 if mode == 'q' else 1): a(f"v_add_u32 v{G_B+j}, s{S_DELTA}, v{G_B+j}")

def c_gemm_chunk(a, mode, barrier, next_reads):
    if barrier:
        a("s_barrier")
    for st in range(2):
        if GPRIO: a(f"s_setprio {3 - 2*st}")
        a("s_waitcnt lgkmcnt(0)")
        if st == 0: rl = gemm_read_list(mode, 1)
        else: rl = gemm_read_list(mode, 0) if next_reads else []
        af = G_AF + 16*st; bf = G_BF + 8*st
        k = 0
        for nb in range(4):
            for qb in range(2):
                acc = accreg(nb, qb)
                a(f"v_mfma_f32_16x16x32_bf16 {vr(acc,4)}, {vr(af+4*nb,4)}, {vr(bf+4*qb,4)}, {vr(acc,4)}")
                n = 2 if (2*nb + qb) in (0, 2) else 1
                for _ in range(n):
                    if k < len(rl): a(rl[k]); k += 1
        while k < len(rl): a(rl[k]); k += 1
        if st == 0 and next_reads:
            gemm_move(a, mode, 5)

def gemm_first_reads(a, mode):
    for r in gemm_read_list(mode, 0): a(r)

def c_gemm(a, mode, tag, first_slot):
    for i in range(32):
        a(f"v_mov_b32 v{G_ACC+i}, 0")
    a("s_barrier")
    gemm_first_reads(a, mode)
    a(f"s_mov_b32 s{S_CNT}, 15")
    a(".p2align 6")
    a.label(f"L_{tag}_loop")
    c_gemm_chunk(a, mode, True, True)
    a(f"s_sub_u32 s{S_CNT}, s{S_CNT}, 1")
    a(f"s_cmp_lg_u32 s{S_CNT}, 0")
    a(f"s_cbranch_scc1 L_{tag}_loop")
    c_gemm_chunk(a, mode, False, False)
    if GPRIO: a("s_setprio 0")

def attn_step(a, t, r, read, off, do_qk=True):
    S = A_S[r]; Sn = A_S[r ^ 1]
    P = A_P[r]; Pp = A_P[r ^ 1]
    tn = t if r == 0 else t + 1
    Kn = A_K[tn & 1]; Qn = A_Q[r ^ 1]
    tp = t - 1 if r == 0 else t
    Vp = A_V[tp & 1]; Op = A_O[r ^ 1]; Lp = A_L[r ^ 1]
    E = lambda i: a(f"v_exp_f32 v{S+i}, v{S+i}")
    C = lambda i: a(f"v_cvt_pk_bf16_f32 v{P+i//2}, v{S+i}, v{S+i+1}")
    def RD(i):
        if read == 'K': a(f"ds_read_b128 {vr(A_K[(t+1)&1]+4*i,4)}, v{A_KVADDR} offset:{off+1024*i}")
        if read == 'V': a(f"ds_read_b128 {vr(A_V[(t+1)&1]+4*i,4)}, v{A_KVADDR} offset:{off+2048+1024*i}")
    qs = opt("qswap", "0") == "1"
    if do_qk: a(f"v_mfma_f32_32x32x16_bf16 {vr(Sn,16)}, {vr(Qn if qs else Kn,4)}, {vr(Kn if qs else Qn,4)}, 0")
    RD(0)
    E(0); E(1); E(2); E(3)
    if do_qk: a(f"v_mfma_f32_32x32x16_bf16 {vr(Sn,16)}, {vr((Qn if qs else Kn)+4,4)}, {vr((Kn if qs else Qn)+4,4)}, {vr(Sn,16)}")
    RD(1)
    E(4); E(5); E(6); C(0); C(2)
    def PV(k):
        if opt("pswap", "0") == "1": a(f"v_mfma_f32_32x32x16_bf16 {vr(Op,16)}, {vr(Pp+4*k,4)}, {vr(Vp+4*k,4)}, {vr(Op,16)}")
        else: a(f"v_mfma_f32_32x32x16_bf16 {vr(Op,16)}, {vr(Vp+4*k,4)}, {vr(Pp+4*k,4)}, {vr(Op,16)}")
    PV(0)
    E(7); E(8); E(9); C(4); C(6)
    PV(1)
    E(10); E(11); E(12); C(8); C(10)
    if opt("nosum", "0") != "1": a(f"v_smfmac_f32_16x16x64_bf16 {vr(Lp,4)}, {vr(A_SEL,4)}, {vr(Pp,8)}, v{A_IDX}")
    E(13); E(14); E(15); C(12); C(14)

def slow_path(a, r):
    Q = A_Q[r]; O = A_O[r]; L = A_L[r]
    S = A_S[0]; NM = A_S[1]; P = A_P[0]; K = A_K[0]; V = A_V[0]
    M = A_T + 4; ADDR = A_T + 5
    l1 = a.newlabel("slow1"); l2 = a.newlabel("slow2")
    a(f"v_lshlrev_b32 v{ADDR}, 4, v{V_LANE}")
    a(f"s_lshl_b32 s60, s3, 18")
    if WS_KV: a(f"s_add_u32 s60, s60, {WS_KV}")
    a(f"s_mov_b32 s62, 64")
    a(f"v_mov_b32 v{M}, 0xff800000")
    a.label(l1)
    a(f"buffer_load_dwordx4 {vr(K,4)}, v{ADDR}, s[{S_WSSRD}:{S_WSSRD+3}], s60 offen sc1")
    a(f"buffer_load_dwordx4 {vr(K+4,4)}, v{ADDR}, s[{S_WSSRD}:{S_WSSRD+3}], s60 offen offset:1024 sc1")
    a("s_waitcnt vmcnt(0)")
    a(f"v_mfma_f32_32x32x16_bf16 {vr(S,16)}, {vr(K,4)}, {vr(Q,4)}, 0")
    a(f"v_mfma_f32_32x32x16_bf16 {vr(S,16)}, {vr(K+4,4)}, {vr(Q+4,4)}, {vr(S,16)}")
    a.nop(16)
    for i in range(8):
        a(f"v_max3_f32 v{M}, v{S+2*i}, v{S+2*i+1}, v{M}")
    a("s_add_u32 s60, s60, 4096")
    a("s_sub_u32 s62, s62, 1")
    a("s_cmp_lg_u32 s62, 0")
    a(f"s_cbranch_scc1 {l1}")
    a(f"v_mov_b32 v{M+2}, v{M}")
    a("s_nop 1")
    a(f"v_permlane32_swap_b32 v{M+2}, v{M}")
    a("s_nop 1")
    a(f"v_max_f32 v{M}, v{M}, v{M+2}")
    a(f"v_sub_f32 v{M}, 0, v{M}")
    for i in range(16): a(f"v_mov_b32 v{NM+i}, v{M}")
    for i in range(16): a(f"v_mov_b32 v{O+i}, 0")
    for i in range(4): a(f"v_mov_b32 v{L+i}, 0")
    a(f"s_lshl_b32 s60, s3, 18")
    if WS_KV: a(f"s_add_u32 s60, s60, {WS_KV}")
    a(f"s_mov_b32 s62, 64")
    a.label(l2)
    a(f"buffer_load_dwordx4 {vr(K,4)}, v{ADDR}, s[{S_WSSRD}:{S_WSSRD+3}], s60 offen sc1")
    a(f"buffer_load_dwordx4 {vr(K+4,4)}, v{ADDR}, s[{S_WSSRD}:{S_WSSRD+3}], s60 offen offset:1024 sc1")
    a(f"buffer_load_dwordx4 {vr(V,4)}, v{ADDR}, s[{S_WSSRD}:{S_WSSRD+3}], s60 offen offset:2048 sc1")
    a(f"buffer_load_dwordx4 {vr(V+4,4)}, v{ADDR}, s[{S_WSSRD}:{S_WSSRD+3}], s60 offen offset:3072 sc1")
    a("s_waitcnt vmcnt(0)")
    a(f"v_mfma_f32_32x32x16_bf16 {vr(S,16)}, {vr(K,4)}, {vr(Q,4)}, {vr(NM,16)}")
    a(f"v_mfma_f32_32x32x16_bf16 {vr(S,16)}, {vr(K+4,4)}, {vr(Q+4,4)}, {vr(S,16)}")
    a.nop(16)
    for i in range(16): a(f"v_exp_f32 v{S+i}, v{S+i}")
    a("s_nop 1")
    for i in range(8): a(f"v_cvt_pk_bf16_f32 v{P+i}, v{S+2*i}, v{S+2*i+1}")
    a("s_nop 2")
    a(f"v_mfma_f32_32x32x16_bf16 {vr(O,16)}, {vr(V,4)}, {vr(P,4)}, {vr(O,16)}")
    a(f"v_mfma_f32_32x32x16_bf16 {vr(O,16)}, {vr(V+4,4)}, {vr(P+4,4)}, {vr(O,16)}")
    a(f"v_smfmac_f32_16x16x64_bf16 {vr(L,4)}, {vr(A_SEL,4)}, {vr(P,8)}, v{A_IDX}")
    a.nop(16)
    a("s_add_u32 s60, s60, 4096")
    a("s_sub_u32 s62, s62, 1")
    a("s_cmp_lg_u32 s62, 0")
    a(f"s_cbranch_scc1 {l2}")

def gen_compute(a):
    a(f"v_and_b32 v{A_T}, 6, v{V_LANE}")
    a(f"v_mov_b32 v{A_T+1}, 0x3f803f80")
    a(f"v_cmp_eq_u32 vcc, 0, v{A_T}")
    a("s_nop 1")
    a(f"v_cndmask_b32 v{A_SEL}, 0, v{A_T+1}, vcc")
    a(f"v_cndmask_b32 v{A_SEL+1}, 0, v{A_T+1}, vcc")
    a(f"v_cmp_eq_u32 vcc, 4, v{A_T}")
    a("s_nop 1")
    a(f"v_cndmask_b32 v{A_SEL+2}, 0, v{A_T+1}, vcc")
    a(f"v_cndmask_b32 v{A_SEL+3}, 0, v{A_T+1}, vcc")
    a(f"v_and_b32 v{A_T}, 1, v{V_LANE}")
    a(f"v_mov_b32 v{A_T+1}, 0x4444")
    a(f"v_mov_b32 v{A_T+2}, 0xeeee")
    a(f"v_cmp_eq_u32 vcc, 0, v{A_T}")
    a("s_nop 1")
    a(f"v_cndmask_b32 v{A_IDX}, v{A_T+2}, v{A_T+1}, vcc")
    a(f"s_lshl_b32 s{S_OOFF}, s3, 22")
    a(f"s_add_u32 s{S_OOFF}, s{S_OOFF}, {WS_O}")
    a("s_lshl_b32 s60, s4, 2")
    a(f"s_and_b32 s62, s{S_W}, 3")
    a("s_add_u32 s60, s60, s62")
    a("s_lshl_b32 s60, s60, 16")
    a(f"s_add_u32 s{S_OOFF}, s{S_OOFF}, s60")
    a("s_lshl_b32 s60, s5, 2")
    a(f"s_lshr_b32 s62, s{S_W}, 2")
    a("s_lshl_b32 s62, s62, 1")
    a("s_add_u32 s60, s60, s62")
    a("s_lshl_b32 s60, s60, 11")
    a(f"s_add_u32 s{S_OOFF}, s{S_OOFF}, s60")
    for i in range(8): a(f"v_mov_b32 v{A_V[1]+i}, 0")
    KX = 32; KACC = 64; KW = 80
    a(f"v_and_b32 v20, 31, v{V_LANE}")
    a(f"v_lshrrev_b32 v21, 5, v{V_LANE}")
    a(f"v_and_b32 v22, 15, v{V_LANE}")
    a(f"s_lshl_b32 s60, s{S_W}, 13")
    a(f"s_add_u32 s60, s60, {XSTG}")
    a("v_lshlrev_b32 v20, 8, v20")
    a("v_add_u32 v20, s60, v20")
    for s in range(8):
        a(f"v_or_b32 v23, {2*s}, v21")
        a("v_xor_b32 v23, v23, v22")
        a(f"v_lshl_add_u32 v{24+s}, v23, 4, v20")
    a(f"s_lshl_b32 s60, s{S_W}, 13")
    a(f"s_add_u32 s62, s60, {WSTG0}")
    a(f"v_bfe_u32 v16, v{V_LANE}, 2, 2")
    a("v_lshl_add_u32 v16, v21, 3, v16")
    a("v_lshlrev_b32 v16, 6, v16")
    a(f"v_bfe_u32 v17, v{V_LANE}, 4, 1")
    a("v_lshl_add_u32 v16, v17, 5, v16")
    a(f"v_and_b32 v17, 3, v{V_LANE}")
    a("v_lshl_add_u32 v16, v17, 3, v16")
    a("v_add_u32 v16, s62, v16")
    for i in range(16):
        a(f"v_mov_b32 v{KACC+i}, 0")
    gemm_addr(a, 'q', 0)
    a(f"v_lshlrev_b32 v18, 4, v{V_LANE}")
    a(f"s_lshl_b32 s60, s{S_W}, 12")
    a(f"s_add_u32 s60, s60, {PART}")
    a("v_add_u32 v19, s60, v18")
    stamp(a, 9)
    a("s_barrier")
    stamp(a, 10)
    for s in range(8):
        a(f"ds_read_b128 {vr(KX+4*s,4)}, v{24+s}")
        a(f"ds_read_b64_tr_b16 {vr(KW+4*s,2)}, v16 offset:{1024*s}")
        a(f"ds_read_b64_tr_b16 {vr(KW+4*s+2,2)}, v16 offset:{1024*s+256}")
        if s in (1, 3, 5): a("s_waitcnt lgkmcnt(6)")
    a("s_and_b32 s60, s5, 1")
    a("s_cmp_eq_u32 s60, 0")
    a("s_waitcnt lgkmcnt(0)")
    a("s_barrier")
    if PROF:
        a("s_cselect_b32 s97, 1, 0")
        stamp(a, 11)
        a("s_cmp_eq_u32 s97, 1")
    a("s_cbranch_scc0 L_kv_isv")
    for s in range(8):
        a(f"v_mfma_f32_32x32x16_bf16 {vr(KACC,16)}, {vr(KW+4*s,4)}, {vr(KX+4*s,4)}, {vr(KACC,16)}")
    a("s_branch L_kv_red")
    a.label("L_kv_isv")
    for s in range(8):
        a(f"v_mfma_f32_32x32x16_bf16 {vr(KACC,16)}, {vr(KX+4*s,4)}, {vr(KW+4*s,4)}, {vr(KACC,16)}")
    a.label("L_kv_red")
    a.nop(16)
    for q in range(4):
        a(f"ds_write_b128 v19, {vr(KACC+4*q,4)} offset:{1024*q}")
    a("s_waitcnt lgkmcnt(0)")
    a("s_barrier")
    stamp(a, 1)
    for r in range(2):
        for i in range(4): a(f"v_mov_b32 v{A_L[r]+i}, 0")
    c_gemm(a, 'q', "q", 0)
    stamp(a, 2)
    a.nop(8)
    for hd in range(2):
        for i in range(2):
            nb = 2*hd + i
            for qb in range(2):
                for d in range(2):
                    a(f"v_cvt_pk_bf16_f32 v{A_Q[hd]+4*i+2*qb+d}, v{accreg(nb,qb)+2*d}, v{accreg(nb,qb)+2*d+1}")
    a("s_nop 1")
    for hd in range(2):
        for i in range(2):
            b = A_Q[hd] + 4*i
            a(f"v_permlane16_swap_b32 v{b}, v{b+2}")
            a(f"v_permlane16_swap_b32 v{b+1}, v{b+3}")
    a("s_barrier")
    a(f"v_lshlrev_b32 v{A_KVADDR}, 4, v{V_LANE}")
    a(f"v_add_u32 v{A_KVADDR}, {KVR[0]}, v{A_KVADDR}")
    for i in range(2):
        a(f"ds_read_b128 {vr(A_K[0]+4*i,4)}, v{A_KVADDR} offset:{1024*i}")
    for i in range(2):
        a(f"ds_read_b128 {vr(A_V[0]+4*i,4)}, v{A_KVADDR} offset:{2048+1024*i}")
    for r in range(2):
        for i in range(16): a(f"v_mov_b32 v{A_O[r]+i}, 0")
    for i in range(8): a(f"v_mov_b32 v{A_P[1]+i}, 0")
    a("s_waitcnt lgkmcnt(0)")
    a(f"v_mfma_f32_32x32x16_bf16 {vr(A_S[0],16)}, {vr(A_K[0],4)}, {vr(A_Q[0],4)}, 0")
    a(f"v_mfma_f32_32x32x16_bf16 {vr(A_S[0],16)}, {vr(A_K[0]+4,4)}, {vr(A_Q[0]+4,4)}, {vr(A_S[0],16)}")
    a(f"s_mov_b32 s75, {KVR[0]}")
    a(f"s_mov_b32 s76, {KVR[1]}")
    a(f"s_mov_b32 s77, {KVR[2]}")
    a(f"s_mov_b32 s{S_CNT}, 0")
    a.nop(8)
    stamp(a, 3)
    a("s_branch L_att_entry")
    a(".p2align 6")
    a.label("L_att_loop")
    a("s_waitcnt lgkmcnt(0)")
    if opt("noabar", "0") != "1": a("s_barrier")
    a("s_mov_b32 s60, s75")
    a("s_mov_b32 s75, s76")
    a("s_mov_b32 s76, s77")
    a("s_mov_b32 s77, s60")
    a(f"v_lshlrev_b32 v{A_KVADDR}, 4, v{V_LANE}")
    a(f"v_add_u32 v{A_KVADDR}, s75, v{A_KVADDR}")
    for i in range(8):
        t = i - 1
        if i == 1:
            a.label("L_att_entry")
        for r in range(2):
            if r == 1 and opt("nolw", "0") != "1":
                a("s_waitcnt lgkmcnt(0)")
            ap = opt("aprio", "1")
            if ap == "1" and r == 0 and i % 2 == 0: a(f"s_setprio {3 - i//2}")
            if ap == "2" and r == 0 and i % 4 == 0: a(f"s_setprio {1 - i//4}")
            if ap == "3" and r == 0: a(f"s_setprio {3 - (i % 4)}")
            attn_step(a, t & 1 if t >= 0 else 1, r, 'K' if r == 0 else 'V', i*4096)
    a(f"s_add_u32 s{S_CNT}, s{S_CNT}, 1")
    a(f"s_cmp_lt_u32 s{S_CNT}, 8")
    a("s_cbranch_scc1 L_att_loop")
    attn_step(a, 1, 0, None, 0)
    a("s_waitcnt lgkmcnt(0)")
    attn_step(a, 1, 1, None, 0, do_qk=False)
    a("s_nop 1")
    Vp = A_V[1]; Pp = A_P[1]
    a(f"v_mfma_f32_32x32x16_bf16 {vr(A_O[1],16)}, {vr(Vp,4)}, {vr(Pp,4)}, {vr(A_O[1],16)}")
    a(f"v_mfma_f32_32x32x16_bf16 {vr(A_O[1],16)}, {vr(Vp+4,4)}, {vr(Pp+4,4)}, {vr(A_O[1],16)}")
    a(f"v_smfmac_f32_16x16x64_bf16 {vr(A_L[1],4)}, {vr(A_SEL,4)}, {vr(Pp,8)}, v{A_IDX}")
    stamp(a, 4)
    a.nop(16)
    a(f"s_mov_b32 s78, {fbits(2.0**-64)}")
    a(f"s_mov_b32 s79, {fbits(2.0**64)}")
    for r in range(2):
        ok = a.newlabel("rb_ok")
        a(f"v_add_f32 v{A_T}, v{A_L[r]}, v{A_L[r]+1}")
        a(f"v_mov_b32 v{A_T+3}, 0")
        for i in range(16):
            a(f"v_fma_f32 v{A_T+3}, v{A_O[r]+i}, 0, v{A_T+3}")
        a(f"v_cmp_le_f32 vcc, s78, v{A_T}")
        a(f"v_cmp_ge_f32 s[80:81], s79, v{A_T}")
        a(f"v_cmp_o_f32 s[82:83], v{A_T+3}, v{A_T+3}")
        a("s_nop 4")
        a("s_and_b64 s[80:81], s[80:81], vcc")
        a("s_and_b64 s[80:81], s[80:81], s[82:83]")
        a("s_cmp_eq_u64 s[80:81], -1")
        if opt("forceslow", "0") == "1": a("s_cmp_eq_u32 s3, 77")
        a(f"s_cbranch_scc1 {ok}")
        slow_path(a, r)
        a(f"v_add_f32 v{A_T}, v{A_L[r]}, v{A_L[r]+1}")
        a.label(ok)
        a(f"v_rcp_f32 v{A_T+1}, v{A_T}")
        a("s_nop 0")
        for i in range(16):
            a(f"v_mul_f32 v{A_O[r]+i}, v{A_T+1}, v{A_O[r]+i}")
    a(f"v_lshlrev_b32 v{A_T+2}, 4, v{V_LANE}")
    for r in range(2):
        for d in range(8):
            a(f"v_cvt_pk_bf16_f32 v{A_S[r]+d}, v{A_O[r]+2*d}, v{A_O[r]+2*d+1}")
        a(f"buffer_store_dwordx4 {vr(A_S[r],4)}, v{A_T+2}, s[{S_WSSRD}:{S_WSSRD+3}], s{S_OOFF} offen offset:{2048*r} sc1")
        a(f"buffer_store_dwordx4 {vr(A_S[r]+4,4)}, v{A_T+2}, s[{S_WSSRD}:{S_WSSRD+3}], s{S_OOFF} offen offset:{2048*r+1024} sc1")
    a(f"s_lshr_b32 s60, s{S_W}, 2")
    a("s_cmp_eq_u32 s60, 0")
    a(f"s_cselect_b32 s60, {4*SLOT}, 0")
    a(f"s_add_u32 s60, s60, {XPART}")
    a(f"s_and_b32 s62, s{S_W}, 3")
    a("s_lshl_b32 s62, s62, 12")
    a("s_add_u32 s60, s60, s62")
    a(f"v_add_u32 v{A_T+3}, s60, v{A_T+2}")
    for r in range(2):
        for i in range(2):
            a(f"ds_write_b128 v{A_T+3}, {vr(A_S[r]+4*i,4)} offset:{r*2048 + i*1024}")
    gemm_addr(a, 'o', 4)
    for i in range(32):
        a(f"v_mov_b32 v{G_ACC+i}, 0")
    a("s_waitcnt vmcnt(0) lgkmcnt(0)")
    a("s_barrier")
    stamp(a, 5)
    gemm_first_reads(a, 'o')
    c_gemm_chunk(a, 'o', False, True)
    c_gemm_chunk(a, 'o', False, False)
    gemm_move(a, 'o', 5)
    a("s_barrier")
    stamp(a, 6)
    gemm_first_reads(a, 'o')
    c_gemm_chunk(a, 'o', False, True)
    a(f"s_mov_b32 s{S_CNT}, 12")
    a(".p2align 6")
    a.label("L_o_loop")
    c_gemm_chunk(a, 'o', True, True)
    a(f"s_sub_u32 s{S_CNT}, s{S_CNT}, 1")
    a(f"s_cmp_lg_u32 s{S_CNT}, 0")
    a("s_cbranch_scc1 L_o_loop")
    c_gemm_chunk(a, 'o', False, False)
    if GPRIO: a("s_setprio 0")
    stamp(a, 7)
    a(f"s_lshl_b32 s7, s4, 7")
    a(f"s_and_b32 s60, s{S_W}, 3")
    a(f"s_lshl_b32 s60, s60, 5")
    a(f"s_add_u32 s7, s7, s60")
    a(f"s_lshl_b32 s7, s7, 12")
    a(f"s_lshl_b32 s60, s3, 11")
    a(f"s_add_u32 s7, s7, s60")
    a(f"s_lshl_b32 s60, s5, 8")
    a(f"s_add_u32 s7, s7, s60")
    a(f"s_lshr_b32 s60, s{S_W}, 2")
    a(f"s_lshl_b32 s60, s60, 7")
    a(f"s_add_u32 s7, s7, s60")
    t = G_TMP
    if opt("cst", "1") == "1":
        OST = 32768; RS = 144
        a(f"s_mul_i32 s60, s{S_W}, {32*RS}")
        a(f"s_add_u32 s60, s60, {OST}")
        a(f"v_and_b32 v{t}, 15, v{V_LANE}")
        a(f"v_mul_u32_u24 v{t}, {RS}, v{t}")
        a(f"v_lshrrev_b32 v{t+1}, 4, v{V_LANE}")
        a(f"v_lshl_add_u32 v{t}, v{t+1}, 3, v{t}")
        a(f"v_add_u32 v{t}, s60, v{t}")
        a(f"v_lshrrev_b32 v{t+1}, 3, v{V_LANE}")
        a(f"v_mul_u32_u24 v{t+2}, {RS}, v{t+1}")
        a(f"v_and_b32 v{t+3}, 7, v{V_LANE}")
        a(f"v_lshl_add_u32 v{t+2}, v{t+3}, 4, v{t+2}")
        a(f"v_add_u32 v{t+2}, s60, v{t+2}")
        a(f"v_lshlrev_b32 v{t+1}, 12, v{t+1}")
        a(f"v_lshl_add_u32 v{t+1}, v{t+3}, 4, v{t+1}")
        for nb in range(4):
            for qb in range(2):
                b = G_AF + 2*(2*nb + qb)
                for d in range(2):
                    a(f"v_cvt_pk_bf16_f32 v{b+d}, v{accreg(nb,qb)+2*d}, v{accreg(nb,qb)+2*d+1}")
        for nb in range(4):
            for qb in range(2):
                b = G_AF + 2*(2*nb + qb)
                a(f"ds_write_b64 v{t}, {vr(b,2)} offset:{qb*16*RS + nb*32}")
        a("s_waitcnt lgkmcnt(0)")
        for i in range(4):
            a(f"ds_read_b128 {vr(G_BF+4*i,4)}, v{t+2} offset:{8*i*RS}")
        for i in range(4):
            a(f"s_waitcnt lgkmcnt({3-i})")
            a(f"buffer_store_dwordx4 {vr(G_BF+4*i,4)}, v{t+1}, s[{S_OUTSRD}:{S_OUTSRD+3}], s7 offen {opt('outf','nt').replace('+',' ')}")
            if i < 3: a(f"s_add_u32 s7, s7, {8*4096}")
    else:
        a(f"v_and_b32 v{t}, 31, v{V_LANE}")
        a(f"v_lshlrev_b32 v{t}, 12, v{t}")
        a(f"v_lshrrev_b32 v{t+1}, 5, v{V_LANE}")
        a(f"v_lshl_add_u32 v{t}, v{t+1}, 4, v{t}")
        a.nop(8)
        for hd in range(2):
            for d in range(8):
                a(f"v_cvt_pk_bf16_f32 v{G_AF+8*hd+d}, v{G_ACC+16*hd+2*d}, v{G_ACC+16*hd+2*d+1}")
        a("s_nop 1")
        for hd in range(2):
            for qd in range(2):
                b = G_AF + 8*hd + 4*qd
                a(f"v_permlane32_swap_b32 v{b}, v{b+2}")
                a(f"v_permlane32_swap_b32 v{b+1}, v{b+3}")
        a("s_nop 1")
        for hd in range(2):
            for qd in range(2):
                b = G_AF + 8*hd + 4*qd
                a(f"buffer_store_dwordx4 {vr(b,4)}, v{t}, s[{S_OUTSRD}:{S_OUTSRD+3}], s7 offen offset:{hd*64 + qd*32}")
    if PROF:
        a("s_waitcnt vmcnt(0)")
        stamp(a, 8)
        stamp_flush(a)
    a("s_endpgm")

def l_dma_w(a, slot):
    a(f"s_add_u32 m0, s{S_M0W}, {slot*SLOT}")
    a("s_nop 0")
    for j in range(4):
        a(f"buffer_load_dwordx4 v{L_WOFF+j}, s[{S_WSRD}:{S_WSRD+3}], s{S_WSOFF} offen offset:{1024*j} {opt('wf','')} lds")
    a(f"s_add_u32 s{S_WSOFF}, s{S_WSOFF}, {64*2048}")
    a(f"s_and_b32 s{S_WSOFF}, s{S_WSOFF}, 0x1fffff")
def l_dma_x(a, mode, slot):
    a(f"s_add_u32 m0, s{S_M0X}, {slot*SLOT}")
    a("s_nop 0")
    for j in range(4):
        if mode == 'q':
            a(f"buffer_load_dwordx4 v{L_XOFF+j}, s[{S_XSRD}:{S_XSRD+3}], s{S_XSOFF} offen offset:{1024*j} {XFLAG} lds")
        else:
            a(f"buffer_load_dwordx4 v{L_XOFF}, s[{S_XSRD}:{S_XSRD+3}], s{S_XSOFF} offen offset:{1024*j} sc1 lds")
    a(f"s_add_u32 s{S_XSOFF}, s{S_XSOFF}, {128 if mode == 'q' else 4096}")
    a(f"s_and_b32 s{S_XSOFF}, s{S_XSOFF}, {2047 if mode == 'q' else 65535}")
def l_dma_chunk(a, mode, slot):
    if mode == 'o' and opt("nodma", "0") == "1": return
    l_dma_w(a, slot); l_dma_x(a, mode, slot)
def l_kv_dma(a, base_imm=None, base_sgpr=None):
    if base_imm is not None:
        a(f"s_add_u32 m0, s{S_T1}, {base_imm}")
    else:
        a(f"s_add_u32 m0, s{S_T1}, s{base_sgpr}")
    a("s_nop 0")
    for j in range(4):
        a(f"buffer_load_dwordx4 v{L_KVOFF}, s[{S_WSSRD}:{S_WSSRD+3}], s{S_KVSOFF} offen offset:{1024*j} sc1 lds")
    a("s_add_u32 m0, m0, 4096")
    a(f"s_add_u32 s60, s{S_KVSOFF}, 4096")
    for j in range(4):
        a(f"buffer_load_dwordx4 v{L_KVOFF}, s[{S_WSSRD}:{S_WSSRD+3}], s60 offen offset:{1024*j} sc1 lds")
    a(f"s_add_u32 s{S_KVSOFF}, s{S_KVSOFF}, 32768")

def gen_loader(a):
    L = V_LANE
    t0, t1, t2, t3 = L_T, L_T+1, L_T+2, L_T+3
    a(f"s_sub_u32 s{S_LW}, s{S_W}, 8")
    a("s_lshl_b32 s60, s3, 4")
    a("s_add_u32 s60, s60, s4")
    if opt("oline", "0") == "1":
        a("s_lshl_b32 s60, s60, 7")
        a(f"s_add_u32 s60, s60, {WS_FLAG}")
        a(f"v_and_b32 v{L_FADDR}, 7, v{L}")
        a(f"v_lshlrev_b32 v{L_FADDR}, 2, v{L_FADDR}")
    else:
        a("s_lshl_b32 s60, s60, 10")
        a(f"s_add_u32 s60, s60, {WS_FLAG}")
        a(f"v_and_b32 v{L_FADDR}, 7, v{L}")
        a(f"v_lshlrev_b32 v{L_FADDR}, 7, v{L_FADDR}")
    a(f"v_add_u32 v{L_FADDR}, s60, v{L_FADDR}")
    a("s_lshr_b32 s60, s5, 1")
    a("s_lshl_b32 s60, s60, 5")
    a("s_add_u32 s60, s60, s7")
    a(f"s_lshl_b32 s65, s{S_LW}, 3")
    a("s_add_u32 s60, s60, s65")
    a("s_lshl_b32 s72, s60, 11")
    a(f"v_lshrrev_b32 v{t0}, 4, v{L}")
    a(f"v_and_b32 v{t1}, 15, v{L}")
    a(f"s_and_b32 s65, s65, 15")
    for e in range(2):
        a(f"v_add_u32 v{t2}, {4*e}, v{t0}")
        a(f"v_add_u32 v{t3}, s65, v{t2}")
        a(f"v_xor_b32 v{t3}, v{t3}, v{t1}")
        a(f"v_lshlrev_b32 v{t3}, 4, v{t3}")
        a(f"v_lshl_add_u32 v{32+e}, v{t2}, 11, v{t3}")
        if e: a(f"v_subrev_u32 v{32+e}, {1024*e}, v{32+e}")
    a(f"v_lshlrev_b32 v34, 4, v{L}")
    a(f"s_lshl_b32 s74, s{S_LW}, 11")
    a("s_and_b32 s77, s5, 1")
    a("s_lshl_b32 s77, s77, 2")
    a("s_lshr_b32 s78, s2, 3")
    if opt("stgrot", "1") != "1":
        a("s_mov_b32 s77, 0"); a("s_mov_b32 s78, 0")
    if opt("stgrot", "1") != "1":
        a("s_mov_b32 s77, 0"); a("s_mov_b32 s78, 0")
    def x_round():
        a("s_and_b32 s77, s77, 7")
        a("s_lshl_b32 s60, s77, 13")
        a("s_add_u32 s60, s60, s74")
        a(f"s_add_u32 m0, s60, {XSTG}")
        a("s_lshl_b32 s65, s77, 8")
        a("s_add_u32 s65, s65, s72")
        for e in range(2):
            a(f"buffer_load_dwordx4 v{32+e}, s[{S_XSRD}:{S_XSRD+3}], s65 offen offset:{1024*e} {XFLAG} lds")
        a("s_add_u32 s77, s77, 1")
    def w_round():
        a("s_and_b32 s78, s78, 7")
        a("s_lshl_b32 s60, s78, 13")
        a("s_add_u32 s60, s60, s74")
        a(f"s_add_u32 m0, s60, {WSTG0}")
        a("s_add_u32 s78, s78, 1")
        for e in range(2):
            a(f"buffer_load_dwordx4 v34, s[{S_KWSRD}:{S_KWSRD+3}], s60 offen offset:{1024*e} {opt('kwf','')} lds")
    WLATE = opt("wlate", "0") == "1"
    if WLATE:
        a("s_lshr_b32 s60, s2, 4")
        a("s_and_b32 s60, s60, 15")
        a("s_lshl_b32 s60, s60, 2")
        a(f"s_add_u32 s60, s60, s{S_LW}")
        a("s_lshl_b32 s60, s60, 10")
        a(f"v_and_b32 v{t0}, 7, v{L}")
        a(f"v_lshlrev_b32 v{t0}, 7, v{t0}")
        a(f"buffer_load_dword v37, v{t0}, s[{S_KWSRD}:{S_KWSRD+3}], s60 offen")
        for r in range(8): x_round()
    else:
        for r in range(8):
            x_round(); w_round()
    stamp(a, 9)
    a(f"v_lshrrev_b32 v{t0}, 4, v{L}")
    a(f"v_bfe_u32 v{t1}, v{L}, 1, 3")
    a(f"v_lshlrev_b32 v{t2}, 1, v{t0}")
    a(f"v_xor_b32 v{t1}, v{t1}, v{t2}")
    a(f"v_lshlrev_b32 v{t0}, 11, v{t0}")
    a(f"v_and_b32 v{t2}, 1, v{L}")
    a(f"v_lshl_add_u32 v{t0}, v{t2}, 4, v{t0}")
    a(f"s_lshl_b32 s60, s{S_LW}, 15")
    a(f"s_lshl_b32 s65, s5, 8")
    a(f"s_add_u32 s60, s60, s65")
    a(f"v_add_u32 v{t0}, s60, v{t0}")
    for j in range(4):
        bj = (j ^ (j >> 1)) & 1
        a(f"v_xor_b32 v{t2}, {bj}, v{t1}")
        a(f"v_lshl_add_u32 v{L_WOFF+j}, v{t2}, 5, v{t0}")
        if j: a(f"v_add_u32 v{L_WOFF+j}, {j*(8192-1024)}, v{L_WOFF+j}")
    a(f"v_lshrrev_b32 v{t0}, 3, v{L}")
    a(f"s_lshl_b32 s60, s{S_LW}, 5")
    a(f"s_add_u32 s60, s60, s7")
    a(f"v_add_u32 v{t0}, s60, v{t0}")
    a(f"v_lshlrev_b32 v{t0}, 11, v{t0}")
    a(f"v_and_b32 v{t1}, 7, v{L}")
    a(f"v_lshrrev_b32 v{t2}, 4, v{L}")
    a(f"v_xor_b32 v{t1}, v{t1}, v{t2}")
    for e in range(4):
        if e & 1:
            a(f"v_xor_b32 v{t3}, 4, v{t1}")
            a(f"v_lshl_add_u32 v{L_XOFF+e}, v{t3}, 4, v{t0}")
        else:
            a(f"v_lshl_add_u32 v{L_XOFF+e}, v{t1}, 4, v{t0}")
        if e: a(f"v_add_u32 v{L_XOFF+e}, {e*(8*2048-1024)}, v{L_XOFF+e}")
    a(f"s_lshl_b32 s{S_M0W}, s{S_LW}, 12")
    a(f"s_lshl_b32 s{S_M0X}, s{S_LW}, 12")
    a(f"s_add_u32 s{S_M0X}, s{S_M0X}, {XPART}")
    a("s_and_b32 s60, s4, 3")
    a("s_lshl_b32 s60, s60, 2")
    a("s_lshl_b32 s65, s5, 1")
    a("s_add_u32 s60, s60, s65")
    a("s_and_b32 s60, s60, 15")
    if opt("rot", "1") != "1": a("s_mov_b32 s60, 0")
    a(f"s_lshl_b32 s{S_WSOFF}, s60, 17")
    a(f"s_lshl_b32 s{S_XSOFF}, s60, 7")
    if WLATE:
        if opt("c0first", "1") == "1":
            l_dma_chunk(a, 'q', 0)
            for r in range(8): w_round()
        else:
            for r in range(8): w_round()
            l_dma_chunk(a, 'q', 0)
    else:
        l_dma_chunk(a, 'q', 0)
    a(f"buffer_load_dword v{L_SNAP}, v{L_FADDR}, s[{S_WSSRD}:{S_WSSRD+3}], 0 offen sc1")
    NT = 0
    if opt("wqpf", "0") == "1":
        NT = 2
        a(f"v_lshrrev_b32 v{t0}, 1, v{L}")
        a(f"v_lshlrev_b32 v{t0}, 11, v{t0}")
        a(f"v_and_b32 v{t1}, 1, v{L}")
        a(f"v_lshl_add_u32 v{t0}, v{t1}, 7, v{t0}")
        a("s_lshl_b32 s60, s5, 8")
        a(f"v_add_u32 v{t0}, s60, v{t0}")
        a(f"s_lshl_b32 s60, s{S_LW}, 17")
        a(f"s_add_u32 s60, s60, s{S_WSOFF}")
        a("s_and_b32 s60, s60, 0x1fffff")
        a(f"buffer_load_dword v35, v{t0}, s[{S_WSRD}:{S_WSRD+3}], s60 offen")
        a("s_add_u32 s60, s60, 0x10000")
        a(f"buffer_load_dword v36, v{t0}, s[{S_WSRD}:{S_WSRD+3}], s60 offen")
    a(f"v_mov_b32 v{L_DBG}, s3")
    a(f"v_lshlrev_b32 v{L_DBG}, 7, v{L_DBG}")
    a(f"v_lshlrev_b32 v{L_KVOFF}, 4, v{L}")
    a(f"s_lshl_b32 s{S_T1}, s{S_LW}, 13")
    a(f"v_add_u32 v{L_KVOFF}, s{S_T1}, v{L_KVOFF}")
    a(f"s_lshl_b32 s{S_KVSOFF}, s3, 18")
    if WS_KV: a(f"s_add_u32 s{S_KVSOFF}, s{S_KVSOFF}, {WS_KV}")
    stamp(a, 10)
    a(f"s_waitcnt vmcnt({(1 if (WLATE and opt('c0first','1') == '1') else 9) + NT})")
    stamp(a, 11)
    a("s_barrier")
    a("s_barrier")
    if opt("k1early", "1") == "1":
        l_dma_chunk(a, 'q', 1)
        a("s_barrier")
        l_dma_chunk(a, 'q', 2)
        l_dma_chunk(a, 'q', 3)
    else:
        for c in (1, 2, 3): l_dma_chunk(a, 'q', c)
        a("s_barrier")
    a("s_waitcnt vmcnt(24)")
    a("s_barrier")
    a("s_waitcnt vmcnt(16)")
    a("s_barrier")
    a(f"s_cmp_ge_u32 s{S_LW}, 2")
    a("s_cbranch_scc1 L_l_dummy")
    a(f"s_lshl_b32 s60, s{S_LW}, 11")
    a(f"s_add_u32 s60, s60, {PART}")
    a(f"v_lshlrev_b32 v{t0}, 4, v{L}")
    a(f"v_add_u32 v{t1}, s60, v{t0}")
    for w in range(8):
        a(f"ds_read_b128 {vr(40+8*w,4)}, v{t1} offset:{4096*w}")
        a(f"ds_read_b128 {vr(44+8*w,4)}, v{t1} offset:{4096*w+1024}")
        if w == 3: a("s_waitcnt lgkmcnt(4)")
    a("s_waitcnt lgkmcnt(0)")
    for w in range(1, 8):
        for r in range(8):
            a(f"v_add_f32 v{40+r}, v{40+r}, v{40+8*w+r}")
    a("s_and_b32 s60, s5, 1")
    a("s_cmp_eq_u32 s60, 0")
    a(f"s_cselect_b32 s60, {fbits(CSCALE)}, 1.0")
    for r in range(8):
        a(f"v_mul_f32 v{40+r}, s60, v{40+r}")
    for d in range(4):
        a(f"v_cvt_pk_bf16_f32 v{36+d}, v{40+2*d}, v{41+2*d}")
    a("s_and_b32 s60, s5, 1")
    a("s_cmp_eq_u32 s60, 0")
    a("s_cbranch_scc0 L_l_nokswap")
    a("s_nop 1")
    a("v_permlane32_swap_b32 v36, v38")
    a("v_permlane32_swap_b32 v37, v39")
    a("s_nop 1")
    a.label("L_l_nokswap")
    a("s_lshr_b32 s60, s5, 1")
    a("s_lshl_b32 s65, s4, 2")
    a("s_add_u32 s60, s60, s65")
    a("s_lshl_b32 s60, s60, 12")
    a("s_and_b32 s65, s5, 1")
    a("s_lshl_b32 s65, s65, 11")
    a("s_add_u32 s60, s60, s65")
    a(f"s_lshl_b32 s65, s{S_LW}, 10")
    a("s_add_u32 s60, s60, s65")
    a("s_lshl_b32 s65, s3, 18")
    a("s_add_u32 s60, s60, s65")
    if WS_KV: a(f"s_add_u32 s60, s60, {WS_KV}")
    a(f"buffer_store_dwordx4 v[36:39], v{t0}, s[{S_WSSRD}:{S_WSSRD+3}], s60 offen sc1")
    a("s_branch L_l_red_done")
    a.label("L_l_dummy")
    a(f"buffer_load_dword v36, v{L_FADDR}, s[{S_WSSRD}:{S_WSSRD+3}], 0 offen sc1")
    a.label("L_l_red_done")
    a("s_waitcnt vmcnt(9)")
    a("s_barrier")
    l_dma_chunk(a, 'q', 4)
    l_dma_chunk(a, 'q', 0)
    a("s_waitcnt vmcnt(17)")
    a("s_barrier")
    l_dma_chunk(a, 'q', 6 % NSLOT)
    a("s_waitcnt vmcnt(16)")
    a("s_barrier")
    l_dma_chunk(a, 'q', 7 % NSLOT)
    a(f"s_cmp_eq_u32 s{S_LW}, 0")
    a("s_cbranch_scc0 L_l_nosig")
    a("s_mov_b64 exec, 1")
    a(f"v_mov_b32 v{t0}, 1")
    a(f"global_atomic_add v{L_DBG}, v{t0}, s[{S_DBG}:{S_DBG+1}]")
    a("s_mov_b64 exec, -1")
    a.label("L_l_nosig")
    for c in range(4, 10):
        a("s_waitcnt vmcnt(16)")
        a("s_barrier")
        l_dma_chunk(a, 'q', (c + 4) % NSLOT)
    a(f"s_cmp_eq_u32 s{S_LW}, 0")
    a("s_cbranch_scc0 L_l_kvdummy")
    a(f"global_load_dword v{L_TMP}, v{L_DBG}, s[{S_DBG}:{S_DBG+1}] sc1")
    a("s_branch L_l_kvpolled")
    a.label("L_l_kvdummy")
    a(f"buffer_load_dword v{L_TMP}, v{L_KVOFF}, s[{S_WSRD}:{S_WSRD+3}], 0 offen")
    a.label("L_l_kvpolled")
    for c in (10, 11):
        a("s_waitcnt vmcnt(17)")
        a("s_barrier")
        l_dma_chunk(a, 'q', (c + 4) % NSLOT)
    a("s_waitcnt vmcnt(16)")
    a(f"s_cmp_eq_u32 s{S_LW}, 0")
    a("s_cbranch_scc0 L_l_kvok")
    a(f"v_readfirstlane_b32 s60, v{L_TMP}")
    a("s_mov_b32 s65, 0x2000")
    a("s_nop 2")
    a("s_cmp_ge_u32 s60, 128")
    a("s_cbranch_scc1 L_l_kvok")
    a.label("L_l_kvpoll")
    a("s_sleep 32")
    a(f"global_load_dword v{L_TMP}, v{L_DBG}, s[{S_DBG}:{S_DBG+1}] sc1")
    a("s_waitcnt vmcnt(0)")
    a(f"v_readfirstlane_b32 s60, v{L_TMP}")
    a("s_nop 3")
    a("s_cmp_ge_u32 s60, 128")
    a("s_cbranch_scc1 L_l_kvok")
    a("s_sub_u32 s65, s65, 1")
    a("s_cmp_lg_u32 s65, 0")
    a("s_cbranch_scc1 L_l_kvpoll")
    a.label("L_l_kvok")
    a("s_barrier")
    l_kv_dma(a, base_imm=KVR[0])
    a("s_waitcnt vmcnt(16)")
    a("s_barrier")
    l_kv_dma(a, base_imm=KVR[1])
    a("s_waitcnt vmcnt(16)")
    a("s_barrier")
    l_kv_dma(a, base_imm=KVR[2])
    srd(a, S_WSRD, 48, 2 << 20)
    srd(a, S_XSRD, 52, WS_SIZE)
    a(f"s_lshl_b32 s60, s{S_LW}, 16")
    a(f"s_lshl_b32 s65, s3, 22")
    a(f"s_add_u32 s60, s60, s65")
    a(f"s_lshl_b32 s65, s4, 18")
    a(f"s_add_u32 s60, s60, s65")
    a(f"s_add_u32 s60, s60, {WS_O}")
    a(f"v_lshlrev_b32 v{t0}, 4, v{L}")
    a(f"v_add_u32 v{L_XOFF}, s60, v{t0}")
    a(f"s_lshl_b32 s{S_WSOFF}, s5, 18")
    a(f"s_lshl_b32 s{S_XSOFF}, s5, 13")
    a(f"s_add_u32 s{S_XSOFF}, s{S_XSOFF}, 8192")
    a(f"s_and_b32 s{S_XSOFF}, s{S_XSOFF}, 65535")
    a(f"v_lshrrev_b32 v{t1}, 1, v{L}")
    a("s_and_b32 s60, s4, 3")
    a("s_lshl_b32 s60, s60, 8")
    a(f"s_lshl_b32 s65, s{S_LW}, 6")
    a("s_add_u32 s60, s60, s65")
    a(f"v_add_u32 v{t1}, s60, v{t1}")
    a(f"v_lshlrev_b32 v{t1}, 11, v{t1}")
    a(f"v_and_b32 v{t2}, 1, v{L}")
    a(f"v_lshl_add_u32 v{t1}, v{t2}, 7, v{t1}")
    a("s_lshl_b32 s60, s5, 8")
    a(f"v_add_u32 v{t1}, s60, v{t1}")
    a("s_waitcnt vmcnt(16)")
    a("s_barrier")
    for j in range(1, 8):
        a("s_waitcnt vmcnt(8)")
        if opt("noabar", "0") != "1": a("s_barrier")
        if j <= 5:
            l_kv_dma(a, base_imm=KVR[(j - 1) % 3])
        if j == 1 and opt("wopf", "1") == "1":
            a(f"buffer_load_dword v{L_TMP}, v{t1}, s[{S_WSRD}:{S_WSRD+3}], 0 offen")
            a(f"s_mov_b32 s60, {32*2048}")
            a(f"buffer_load_dword v{L_TMP}, v{t1}, s[{S_WSRD}:{S_WSRD+3}], s60 offen")
        if j == 2 and opt("tlb", "0") == "1":
            a(f"v_lshlrev_b32 v{t2}, 13, v{L}")
            a("s_lshl_b32 s60, s4, 19")
            a(f"buffer_load_dword v{L_TMP}, v{t2}, s[{S_OUTSRD}:{S_OUTSRD+3}], s60 offen")
            a(f"v_lshlrev_b32 v{t2}, 12, v{L}")
            a(f"s_lshl_b32 s60, s3, 22")
            a(f"s_lshl_b32 s65, s4, 18")
            a(f"s_add_u32 s60, s60, s65")
            a(f"s_add_u32 s60, s60, {WS_O}")
            a(f"buffer_load_dword v{L_TMP}, v{t2}, s[{S_WSSRD}:{S_WSSRD+3}], s60 offen sc1")
        if j == 6:
            l_dma_w(a, 4); l_dma_w(a, 0)
        if j == 7:
            l_dma_w(a, 1)
            if opt("omb", "1") == "1":
                a(f"s_lshl_b32 s60, s{S_LW}, 12")
                a(f"s_add_u32 s60, s60, {((OS0_ + 2) % NSLOT)*SLOT + XPART}")
                a(f"v_mov_b32 v{t2}, s60")
                a(f"v_mov_b32 v{t3}, 0")
                a(f"ds_write_b32 v{t2}, v{t3}")
                a(f"ds_write_b32 v{t2}, v{t3} offset:{(((OS0_ + 4) % NSLOT) - ((OS0_ + 2) % NSLOT))*SLOT % 65536}" if False else f"v_add_u32 v{t2}, {(((OS0_ + 4) % NSLOT) - ((OS0_ + 2) % NSLOT))*SLOT}, v{t2}")
                a(f"ds_write_b32 v{t2}, v{t3}")
                a("s_movk_i32 s79, 0x5a5a")
                a("s_waitcnt lgkmcnt(0)")
    a("s_waitcnt vmcnt(0)")
    a("s_barrier")
    a(f"v_add_u32 v{L_SNAP}, 1, v{L_SNAP}")
    a(f"s_cmp_eq_u32 s{S_LW}, 0")
    a("s_cbranch_scc0 L_l_noflag")
    a(f"v_cmp_eq_u32 vcc, s5, v{L}")
    a("s_nop 4")
    a("s_mov_b64 exec, vcc")
    a(f"buffer_store_dword v{L_SNAP}, v{L_FADDR}, s[{S_WSSRD}:{S_WSSRD+3}], 0 offen sc1")
    a("s_mov_b64 exec, -1")
    a.label("L_l_noflag")
    l_dma_w(a, 2)
    TWO = opt("ostage", "1") == "2"
    OMB = ((OS0_ + 2) % NSLOT)*SLOT + XPART
    OMB2 = ((OS0_ + 4) % NSLOT)*SLOT + XPART
    def wait_flags(tag, mb, mask_lane):
        a(f"s_lshl_b32 s60, s{S_LW}, 12")
        a(f"s_add_u32 s60, s60, {mb}")
        a(f"v_mov_b32 v{t2}, s60")
        a(f"s_cmp_eq_u32 s{S_LW}, 0")
        a(f"s_cbranch_scc1 L_l_{tag}poll0")
        a.label(f"L_l_{tag}mb")
        a(f"ds_read_b32 v{t3}, v{t2}")
        a("s_waitcnt lgkmcnt(0)")
        a(f"v_readfirstlane_b32 s60, v{t3}")
        a("s_nop 3")
        a("s_cmp_eq_u32 s60, s79")
        a(f"s_cbranch_scc1 L_l_{tag}go")
        a("s_sleep 1")
        a(f"s_branch L_l_{tag}mb")
        a.label(f"L_l_{tag}poll0")
        a("s_mov_b32 s65, 0x8000")
        if mask_lane:
            a("s_add_u32 s72, s5, 1")
            a("s_and_b32 s72, s72, 7")
        a.label(f"L_l_{tag}poll")
        a(f"buffer_load_dword v{L_TMP}, v{L_FADDR}, s[{S_WSSRD}:{S_WSSRD+3}], 0 offen sc1")
        a("s_waitcnt vmcnt(0)")
        a(f"v_cmp_eq_u32 vcc, v{L_TMP}, v{L_SNAP}")
        a("s_nop 4")
        if mask_lane:
            a("s_lshr_b64 s[80:81], vcc, s72")
            a("s_bitcmp1_b32 s80, 0")
        else:
            a("s_cmp_eq_u64 vcc, -1")
        a(f"s_cbranch_scc1 L_l_{tag}set")
        a(f"s_sleep {opt('sleep','2')}")
        a("s_sub_u32 s65, s65, 1")
        a("s_cmp_lg_u32 s65, 0")
        a(f"s_cbranch_scc1 L_l_{tag}poll")
        a.label(f"L_l_{tag}set")
        a(f"v_mov_b32 v{t3}, s79")
        for lw in range(1, 4):
            a(f"ds_write_b32 v{t2}, v{t3} offset:{4096*lw}")
        a("s_waitcnt lgkmcnt(0)")
        a.label(f"L_l_{tag}go")
    if TWO:
        wait_flags("o1", OMB, True)
        for c in (2, 3):
            l_dma_x(a, 'o', (4 + c) % NSLOT)
        a("s_waitcnt vmcnt(0)")
        a("s_barrier")
        wait_flags("o2", OMB2, False)
        l_dma_x(a, 'o', (4 + 4) % NSLOT)
        l_dma_w(a, (4 + 4) % NSLOT)
    else:
        wait_flags("o1", OMB, False)
        for c in (2, 3, 4):
            l_dma_x(a, 'o', (4 + c) % NSLOT)
        l_dma_w(a, (4 + 4) % NSLOT)
        a("s_waitcnt vmcnt(8)")
        a("s_barrier")
    l_dma_chunk(a, 'o', (4 + 5) % NSLOT)
    l_dma_chunk(a, 'o', (4 + 6) % NSLOT)
    for c in range(3, 12):
        a("s_waitcnt vmcnt(16)")
        a("s_barrier")
        l_dma_chunk(a, 'o', (4 + c + 4) % NSLOT)
    a("s_waitcnt vmcnt(16)")
    a("s_barrier")
    a("s_waitcnt vmcnt(8)")
    a("s_barrier")
    a("s_waitcnt vmcnt(0)")
    a("s_barrier")
    if PROF:
        stamp(a, 8)
        stamp_flush(a)
    a("s_endpgm")

def gen_main(a):
    name = KNAME
    a(f".globl {name}\n.p2align 8\n.type {name},@function")
    a.label(name)
    a("s_cmp_ge_u32 s2, 256")
    a("s_cbranch_scc1 L_end")
    if opt("perm", "0") == "1":
        a("s_lshl_b32 s3, s2, 3")
        a("s_lshr_b32 s2, s2, 5")
        a("s_or_b32 s2, s2, s3")
        a("s_and_b32 s2, s2, 255")
    a("s_and_b32 s4, s2, 7")
    a("s_lshr_b32 s5, s2, 3")
    a("s_lshr_b32 s3, s4, 2")
    a("s_and_b32 s4, s4, 3")
    a("s_lshl_b32 s4, s4, 2")
    a("s_lshr_b32 s6, s5, 3")
    a("s_add_u32 s4, s4, s6")
    a("s_and_b32 s5, s5, 7")
    load_args(a, 3)
    a("v_lshrrev_b32 v1, 6, v0")
    a(f"v_and_b32 v{V_LANE}, 63, v0")
    a(f"v_readfirstlane_b32 s{S_W}, v1")
    srd(a, S_WSSRD, 52, WS_SIZE)
    srd(a, S_XSRD, 40, 4 << 20)
    srd(a, S_WSRD, 42, 2 << 20)
    a("s_and_b32 s60, s5, 1")
    a("s_cmp_eq_u32 s60, 0")
    a("s_cselect_b32 s54, s44, s46")
    a("s_cselect_b32 s55, s45, s47")
    srd(a, S_KWSRD, 54, 65536)
    srd(a, S_OUTSRD, 50, 8 << 20)
    a("s_lshl_b32 s7, s4, 7")
    stamp_init(a); stamp(a, 0)
    if opt("codepf", "0") == "1":
        lab = a.newlabel("cpf")
        a(f"s_cmp_eq_u32 s{S_W}, 7")
        a(f"s_cbranch_scc0 {lab}")
        a("s_getpc_b64 s[80:81]")
        a(f"v_lshlrev_b32 v4, 7, v{V_LANE}")
        for i in range(int(opt("codekb", "28")) // 8):
            a(f"global_load_dword v5, v4, s[80:81]")
            a(f"v_add_u32 v4, 8192, v4")
        a.label(lab)
    if opt("lfirst", "1") == "1":
        a(f"s_cmp_lt_u32 s{S_W}, 8")
        a("s_cbranch_scc1 L_compute")
        gen_loader(a)
        a.label("L_compute")
        gen_compute(a)
    else:
        a(f"s_cmp_ge_u32 s{S_W}, 8")
        a("s_cbranch_scc1 L_loader")
        gen_compute(a)
        a.label("L_loader")
        gen_loader(a)
    a.label("L_end")
    a("s_endpgm")
    return name, NVGPR, LDS_MAIN

DOC = """;
"""
def main(out_path):
    ref = open("cdna_kernels/" + NAME + ".s.ref").read().split("\n")
    header = [l for l in ref if l.startswith(";") and "@launch" not in l and "Override" not in l and "grid=ceil" not in l]
    a = Asm()
    name, vg, lds = gen_main(a)
    txt = "\n".join(header) + "\n"
    txt += f"; @launch grid=(256,1,1) block=(768,1,1) lds={lds}\n"
    txt += DOC
    txt += '.amdgcn_target "amdgcn-amd-amdhsa--gfx950"\n.text\n'
    txt += a.text()
    txt += '.section .rodata,"a"\n'
    txt += ".p2align 6\n" + kernel_desc(name, vg)
    open(out_path, "w").write(txt)
    nb = sum(1 for l in a.lines if l.strip() == "s_barrier")
    print("static barriers:", nb)

if __name__ == "__main__":
    if "--prof" in sys.argv:
        PROF = True
        sys.argv.remove("--prof")
    main(sys.argv[1] if len(sys.argv) > 1 else "cdna_kernels/" + NAME + ".s")
```
